```python
import torch

def _softmax(x, axis=-1):
    return torch.softmax(x, dim=axis)

def _gelu(x):
    return torch.nn.functional.gelu(x, approximate='tanh')

def _silu(x):
    return torch.nn.functional.silu(x)

def _sigmoid(x):
    return torch.sigmoid(x)

def _layernorm(x, axis=-1, eps=1e-05):
    m = x.mean(dim=axis, keepdim=True)
    v = x.var(dim=axis, keepdim=True, unbiased=False)
    return (x - m) / torch.sqrt(v + eps)

def _scatter_add(tgt, idx, src, axis=0):
    return tgt.clone().index_add_(axis, idx, src)

def _segment_sum(src, seg, n):
    out = torch.zeros((n,) + src.shape[1:], dtype=src.dtype)
    return out.index_add_(0, seg, src)

def _pad(x, pw):
    flat = tuple((v for pair in reversed(pw) for v in pair))
    return torch.nn.functional.pad(x, flat)
kernel_name = 'adaLN_cond__spectral_fnet__moe_arch_mod__prompt'

def setup_inputs():

    _w = lambda a: (lambda t: t.to(torch.bfloat16) if t.is_floating_point() else t)(torch.as_tensor(a))

    def _A_setup():
        B, S, D = (1, 2048, 448)
        ns = torch.arange(S)[:, None] * torch.arange(S)[None, :]
        nd = torch.arange(D)[:, None] * torch.arange(D)[None, :]
        Ws_re = torch.cos(-2.0 * torch.pi * ns / S).to(float)
        Ws_im = torch.sin(-2.0 * torch.pi * ns / S).to(float)
        Wd_re = torch.cos(-2.0 * torch.pi * nd / D).to(float)
        Wd_im = torch.sin(-2.0 * torch.pi * nd / D).to(float)
        return {'x': _w((lambda *s: torch.randn(*s, dtype=torch.bfloat16) * 0.05)(B, S, D)), 'dft_seq_re': _w(Ws_re), 'dft_seq_im': _w(Ws_im), 'dft_hid_re': _w(Wd_re), 'dft_hid_im': _w(Wd_im)}
    _A_in = _A_setup()

    def _B_setup():
        B, S, D, F, C = (1, 2048, 448, 1792, 1)
        return {'x': _w((lambda *s: torch.randn(*s, dtype=torch.bfloat16) * 0.05)(B, S, D)), 'w_r': _w((lambda *s: torch.randn(*s, dtype=torch.bfloat16) * 3.2)(D)), 'w_gate': _w((lambda *s: torch.randn(*s, dtype=torch.bfloat16) * 0.8)(D, F)), 'w_up': _w((lambda *s: torch.randn(*s, dtype=torch.bfloat16) * 0.8)(D, F)), 'w_down': _w((lambda *s: torch.randn(*s, dtype=torch.bfloat16) * 0.8)(F, D))}
    _B_in = _B_setup()
    return {'A_x': _A_in['x'], 'A_dft_seq_re': _A_in['dft_seq_re'], 'A_dft_seq_im': _A_in['dft_seq_im'], 'A_dft_hid_re': _A_in['dft_hid_re'], 'A_dft_hid_im': _A_in['dft_hid_im'], 'B_x': _B_in['x'], 'B_w_r': _B_in['w_r'], 'B_w_gate': _B_in['w_gate'], 'B_w_up': _B_in['w_up'], 'B_w_down': _B_in['w_down'], 'c': _w((lambda *s: torch.randn(*s, dtype=torch.bfloat16) * 0.1)(1, 448) * 8.0), 'w_mod': _w((lambda *s: torch.randn(*s, dtype=torch.bfloat16) * 0.1)(448, 6 * 448) * 448 ** (-0.5) * 8.0)}

def reference(A_x, A_dft_seq_re, A_dft_seq_im, A_dft_hid_re, A_dft_hid_im, B_x, B_w_r, B_w_gate, B_w_up, B_w_down, c, w_mod):

    def _A_ref(x, dft_seq_re, dft_seq_im, dft_hid_re, dft_hid_im):
        a = torch.einsum('bsd,ed->bse', x, dft_hid_re)
        b = torch.einsum('bsd,ed->bse', x, dft_hid_im)
        y = torch.einsum('ts,bse->bte', dft_seq_re, a) - torch.einsum('ts,bse->bte', dft_seq_im, b)
        return y

    def _B_ref(x, w_r, w_gate, w_up, w_down):
        B, S, D = x.shape
        C = 1
        r = x @ w_r
        idx = torch.argsort(-r, axis=-1)[:, :C]
        idx_e = (lambda x, n, axis: torch.repeat_interleave(x, n, dim=axis))(idx.reshape(B, C, 1), D, axis=2)
        x_sel = (lambda x, i, axis: torch.take_along_dim(x, i, dim=axis))(x, idx_e, axis=1)
        g = _silu(x_sel @ w_gate)
        u = x_sel @ w_up
        y = g * u @ w_down
        r_sel = _sigmoid((lambda x, i, axis: torch.take_along_dim(x, i, dim=axis))(r, idx, axis=1))
        y = y * r_sel.reshape(B, C, 1)
        b_off = (torch.arange(B) * S).reshape(B, 1)
        flat_idx = (idx + b_off).reshape(B * C)
        zero = (x * 0.0).reshape(B * S, D)
        upd = _scatter_add(zero, flat_idx, y.reshape(B * C, D), axis=0)
        return x + upd.reshape(B, S, D)
    x = A_x
    mod = (_silu(c) @ w_mod).reshape(c.shape[0], 6, 1, -1)
    sa, ca, ga, sb, cb, gb = (mod[:, 0].clone(), mod[:, 1].clone(), mod[:, 2].clone(), mod[:, 3].clone(), mod[:, 4].clone(), mod[:, 5].clone())
    h = _layernorm(x, axis=-1) * (1 + ca) + sa
    x = x + ga * _A_ref(h, A_dft_seq_re, A_dft_seq_im, A_dft_hid_re, A_dft_hid_im)
    h = _layernorm(x, axis=-1) * (1 + cb) + sb
    x = x + gb * _B_ref(h, B_w_r, B_w_gate, B_w_up, B_w_down)
    return x
```

```python
class K:
    def __init__(self, name):
        self.name = name; self.lines = []; self.nv = 0; self.ns = 0; self.vmax = 0; self.lab = 0
    def __call__(self, s):
        for l in s.strip('\n').split('\n'):
            self.lines.append('    ' + l.strip() if not l.strip().endswith(':') else l.strip())
    def c(self, s): self.lines.append('    ; ' + s)
    def valloc(self, n=1, align=1):
        if n > 1 and align == 1: align = 2
        self.nv = (self.nv + align - 1) // align * align
        r = self.nv; self.nv += n; self.vmax = max(self.vmax, self.nv); return r
    def salloc(self, n=1, align=1):
        if n == 2 and align == 1: align = 2
        if n >= 4 and align == 1: align = 4
        self.ns = (self.ns + align - 1) // align * align
        r = self.ns; self.ns += n; assert self.ns <= 100, 'sgpr overflow'; return r
    def label(self, p='L'):
        self.lab += 1; return f'{self.name}_{p}{self.lab}'
    def srd(self, s, ptr, nbytes, add=0):
        if add:
            self(f's_add_u32 s{s}, s{ptr}, {add:#x}\ns_addc_u32 s{s+1}, s{ptr+1}, 0')
        else:
            self(f's_mov_b32 s{s}, s{ptr}\ns_mov_b32 s{s+1}, s{ptr+1}')
        self(f's_mov_b32 s{s+2}, {nbytes:#x}\ns_mov_b32 s{s+3}, 0x00020000')
    def text(self):
        return (f'.globl {self.name}\n.p2align 8\n.type {self.name},@function\n{self.name}:\n' + '\n'.join(self.lines) + '\n')
    def desc(self, sgpr=None):
        nv = max(8, (self.vmax + 7) // 8 * 8)
        return f'''.amdhsa_kernel {self.name}
  .amdhsa_next_free_vgpr {nv}
  .amdhsa_next_free_sgpr {sgpr or max(self.ns, 16)}
  .amdhsa_accum_offset {(nv + 3) // 4 * 4}
  .amdhsa_group_segment_fixed_size 0
  .amdhsa_kernarg_size 120
  .amdhsa_user_sgpr_count 2
  .amdhsa_user_sgpr_kernarg_segment_ptr 1
  .amdhsa_system_sgpr_workgroup_id_x 1
  .amdhsa_float_denorm_mode_32 3
.end_amdhsa_kernel
'''
def v(a, n=1): return f'v{a}' if n == 1 else f'v[{a}:{a+n-1}]'
def s(a, n=1): return f's{a}' if n == 1 else f's[{a}:{a+n-1}]'
HEADER = open('adaLN_cond__spectral_fnet__moe_arch_mod__prompt.s.ref').read().split('; Override launch')[0]
def emit(kernels, launches):
    o = HEADER
    if len(launches) == 1 and launches[0][0] == 'adaLN_cond__spectral_fnet__moe_arch_mod__prompt_kernel':
        n, g, b, l = launches[0]
        o += f'; @launch grid=({g},1,1) block=({b},1,1) lds={l}\n'
    else:
        for n, g, b, l in launches:
            o += f'; @launch kernel={n} grid=({g},1,1) block=({b},1,1) lds={l}\n'
    o += '.amdgcn_target "amdgcn-amd-amdhsa--gfx950"\n.text\n'
    for k in kernels: o += k.text()
    o += '.section .rodata,"a"\n'
    for k in kernels: o += '.p2align 6\n' + k.desc()
    return o
```

```python
from asmlib import *
from gen_v1 import ZB, MODV, KEYS, STAT, CAND, PART, WSB, HUGE, rb1

def gen_k2():
    k = K('k2_kernel'); k.ns = 3; k.nv = 1
    Lend = k.label('end')
    UB = 57344; RED = UB + 32768
    k(f's_cmp_ge_u32 s2, 128\ns_cbranch_scc1 {Lend}')
    px = k.salloc(2); pws = k.salloc(2); pseq = k.salloc(4); phid = k.salloc(4); pwr = k.salloc(2); pout = k.salloc(2)
    k(f'''s_load_dwordx2 {s(pws,2)}, s[0:1], 112
    s_load_dwordx4 {s(pseq,4)}, s[0:1], 8
    s_load_dwordx4 {s(phid,4)}, s[0:1], 24
    s_load_dwordx2 {s(px,2)}, s[0:1], 0
    s_load_dwordx2 {s(pwr,2)}, s[0:1], 48
    s_load_dwordx2 {s(pout,2)}, s[0:1], 96''')
    sw = k.salloc(); sslot = k.salloc(); st0 = k.salloc(); st = k.salloc(); st2 = k.salloc(); smir = k.salloc(); sa_ = k.salloc(); sb_ = k.salloc()
    so = k.salloc(); sm64 = k.salloc(2)
    rz = k.salloc(4); rsr = k.salloc(4); rsi = k.salloc(4); rhr = k.salloc(4); rhi = k.salloc(4); rmod = k.salloc(4); rx = k.salloc(4); rwr = k.salloc(4); rout = k.salloc(4); rws = k.salloc(4)
    vl = k.valloc(); vg = k.valloc(); vn = k.valloc(); vt = k.valloc(); vt2 = k.valloc(); vo = k.valloc(); vcol = k.valloc(); vxo = k.valloc()
    k(f'''v_lshrrev_b32 {v(vt)}, 6, v0
    v_and_b32 {v(vl)}, 63, v0
    v_readfirstlane_b32 {s(sw)}, {v(vt)}
    v_lshrrev_b32 {v(vg)}, 4, {v(vl)}
    v_and_b32 {v(vn)}, 15, {v(vl)}
    s_lshr_b32 {s(st)}, s2, 5
    s_lshl_b32 {s(st)}, {s(st)}, 3
    s_and_b32 {s(sslot)}, s2, 7
    s_add_u32 {s(sslot)}, {s(sslot)}, {s(st)}
    s_bfe_u32 {s(smir)}, s2, 0x10004
    s_sub_u32 {s(st)}, 64, {s(sslot)}
    s_cmp_eq_u32 {s(sslot)}, 0
    s_cselect_b32 {s(st)}, 32, {s(st)}
    s_cmp_eq_u32 {s(smir)}, 1
    s_cselect_b32 {s(st0)}, {s(st)}, {s(sslot)}
    s_bfe_u32 {s(st)}, s2, 0x10003
    s_lshl_b32 {s(st)}, {s(st)}, 10
    s_add_u32 {s(st0)}, {s(st0)}, {s(st)}
    s_and_b32 {s(sa_)}, {s(sw)}, 3
    s_lshr_b32 {s(sb_)}, {s(sw)}, 2
    s_waitcnt lgkmcnt(0)''')
    k.srd(rz, pws, ZB); k.srd(rsr, pseq, 8388608); k.srd(rsi, pseq + 2, 8388608)
    k.srd(rhr, phid, 401408); k.srd(rhi, phid + 2, 401408); k.srd(rmod, pws, 6 * 1792, MODV)
    k.srd(rx, px, 1835008); k.srd(rwr, pwr, 896); k.srd(rout, pout, 1835008); k.srd(rws, pws, WSB)
    WR = k.valloc(4, 4); WI = k.valloc(4, 4)
    HR = k.valloc(8); HI = k.valloc(8)
    CA = k.valloc(16, 4); SA = k.valloc(16, 4)
    FR = k.valloc(4, 4); FI = k.valloc(4, 4)
    GA = k.valloc(16, 4); CB = k.valloc(16, 4); SB = k.valloc(16, 4); GB = k.valloc(16, 4); WRr = k.valloc(8); XR = k.valloc(8)
    Lskip = k.label('skipz'); Lw7 = k.label('w7'); Ljoin = k.label('join')
    k(f's_cmp_eq_u32 {s(sw)}, 7\ns_cbranch_scc1 {Lskip}')
    k(f'''s_lshl_b32 {s(st)}, {s(sw)}, 13
    s_mul_i32 {s(so)}, {s(sslot)}, 57344
    s_add_u32 {s(so)}, {s(so)}, {s(st)}
    s_mov_b32 m0, {s(st)}
    v_lshlrev_b32 {v(vo)}, 4, {v(vl)}''')
    for i in range(4): k(f'buffer_load_dwordx4 {v(vo)}, {s(rz,4)}, {s(so)} offen offset:{1024*i} lds')
    k(f's_add_u32 {s(st)}, {s(st)}, 4096\ns_add_u32 {s(so)}, {s(so)}, 4096\ns_mov_b32 m0, {s(st)}')
    for i in range(4): k(f'buffer_load_dwordx4 {v(vo)}, {s(rz,4)}, {s(so)} offen offset:{1024*i} lds')
    k(f'''v_lshlrev_b32 {v(vo)}, 18, {v(vn)}
    v_lshl_add_u32 {v(vo)}, {v(vg)}, 4, {v(vo)}
    s_lshl_b32 {s(so)}, {s(st0)}, 12
    buffer_load_dwordx4 {v(WR,4)}, {v(vo)}, {s(rsr,4)}, {s(so)} offen
    buffer_load_dwordx4 {v(WI,4)}, {v(vo)}, {s(rsi,4)}, {s(so)} offen
    v_mul_u32_u24 {v(vo)}, 896, {v(vn)}
    v_mul_u32_u24 {v(vt)}, 224, {v(vg)}
    v_add_u32 {v(vo)}, {v(vo)}, {v(vt)}
    s_lshl_b32 {s(so)}, {s(sw)}, 3''')
    for dd in range(4):
        k(f'buffer_load_dwordx2 {v(HR+2*dd,2)}, {v(vo)}, {s(rhr,4)}, {s(so)} offen offset:{56*dd}')
        k(f'buffer_load_dwordx2 {v(HI+2*dd,2)}, {v(vo)}, {s(rhi,4)}, {s(so)} offen offset:{56*dd}')
    k(f'''v_lshlrev_b32 {v(vo)}, 4, {v(vg)}
    s_lshl_b32 {s(so)}, {s(sw)}, 8
    s_cmp_eq_u32 {s(st0)}, 0
    s_cselect_b32 {s(st)}, 0, -1
    v_cmp_eq_u32 vcc, {s(st)}, {v(vn)}
    v_mov_b32 {v(vt)}, {HUGE}
    v_cndmask_b32 {v(vt)}, {v(vt)}, {v(vo)}, vcc''')
    for q in range(4): k(f'buffer_load_dwordx4 {v(CA+4*q,4)}, {v(vo)}, {s(rmod,4)}, {s(so)} offen offset:{1792+64*q}')
    for q in range(4): k(f'buffer_load_dwordx4 {v(SA+4*q,4)}, {v(vt)}, {s(rmod,4)}, {s(so)} offen offset:{64*q}')
    k(f'{Lskip}:')
    k(f'''v_mul_u32_u24 {v(vo)}, 14336, {v(vn)}
    v_lshl_add_u32 {v(vo)}, {v(vg)}, 4, {v(vo)}
    s_mul_i32 {s(so)}, {s(sb_)}, 229376
    buffer_load_dwordx4 {v(FR,4)}, {v(vo)}, {s(rhr,4)}, {s(so)} offen
    buffer_load_dwordx4 {v(FI,4)}, {v(vo)}, {s(rhi,4)}, {s(so)} offen''')
    k(f'''s_lshl_b32 {s(st)}, {s(sb_)}, 8
    s_lshl_b32 {s(st2)}, {s(sa_)}, 2
    s_add_u32 {s(st)}, {s(st)}, {s(st2)}
    v_lshlrev_b32 {v(vcol)}, 6, {v(vg)}
    v_add_u32 {v(vcol)}, {s(st)}, {v(vcol)}
    v_cmp_gt_u32 vcc, 448, {v(vcol)}
    s_mov_b64 {s(sm64,2)}, vcc
    v_mov_b32 {v(vt2)}, {HUGE}
    v_lshlrev_b32 {v(vo)}, 2, {v(vcol)}
    v_cndmask_b32 {v(vo)}, {v(vt2)}, {v(vo)}, {s(sm64,2)}''')
    k(f'''v_mul_u32_u24 {v(vxo)}, 57344, {v(vn)}
    v_lshl_add_u32 {v(vxo)}, {v(vcol)}, 1, {v(vxo)}
    s_mul_i32 {s(st)}, {s(st0)}, 896
    v_add_u32 {v(vxo)}, {s(st)}, {v(vxo)}
    v_cndmask_b32 {v(vxo)}, {v(vt2)}, {v(vxo)}, {s(sm64,2)}
    v_lshlrev_b32 {v(vt)}, 1, {v(vcol)}
    v_cndmask_b32 {v(vt)}, {v(vt2)}, {v(vt)}, {s(sm64,2)}''')
    for i in range(4): k(f'buffer_load_dwordx2 {v(XR+2*i,2)}, {v(vxo)}, {s(rx,4)}, 0 offen offset:{32*i}')
    for i in range(4): k(f'buffer_load_dwordx2 {v(WRr+2*i,2)}, {v(vt)}, {s(rwr,4)}, 0 offen offset:{32*i}')
    for (R, sec) in ((GA, 2), (CB, 4), (SB, 3), (GB, 5)):
        k(f's_mov_b32 {s(so)}, {sec*1792}')
        for i in range(4): k(f'buffer_load_dwordx4 {v(R+4*i,4)}, {v(vo)}, {s(rmod,4)}, {s(so)} offen offset:{64*i}')
    NLATE = 2 + 4 + 4 + 16
    aU = k.valloc(); aV = k.valloc()
    k(f'''s_lshr_b32 {s(st)}, {s(sw)}, 1
    v_and_b32 {v(vt)}, 7, {v(vn)}
    v_xor_b32 {v(vt)}, {s(st)}, {v(vt)}
    v_lshlrev_b32 {v(aU)}, 4, {v(vt)}
    v_lshl_add_u32 {v(aU)}, {v(vn)}, 7, {v(aU)}
    v_lshl_add_u32 {v(aU)}, {v(vg)}, 13, {v(aU)}
    s_and_b32 {s(st)}, {s(sw)}, 1
    s_lshl_b32 {s(st)}, {s(st)}, 3
    s_add_u32 {s(st)}, {s(st)}, {UB}
    v_add_u32 {v(aU)}, {s(st)}, {v(aU)}
    v_xor_b32 {v(aV)}, 64, {v(aU)}''')
    UP = CA
    k(f's_cmp_eq_u32 {s(sw)}, 7\ns_cbranch_scc1 {Lw7}')
    Fre0 = WR; Fre1 = k.valloc(4, 4); Fim0 = WI; Fim1 = k.valloc(4, 4)
    AD = k.valloc(24, 4)
    sx1 = k.salloc(); sx2 = k.salloc(); sm0 = k.salloc(); sm1 = k.salloc(); ssw = k.salloc(2)
    k(f'''s_cmp_eq_u32 {s(smir)}, 1
    s_cselect_b32 {s(sx1)}, 0, 0x80008000
    s_cselect_b32 {s(sx2)}, 0x80008000, 0
    s_mov_b32 {s(sm0)}, -1
    s_mov_b32 {s(sm1)}, -1
    s_mov_b64 {s(ssw,2)}, 0
    s_cmp_eq_u32 {s(sslot)}, 0''')
    Lns = k.label('ns')
    k(f'''s_cbranch_scc0 {Lns}
    s_cmp_eq_u32 {s(smir)}, 1
    s_cselect_b32 {s(sm0)}, 0, -1
    s_cselect_b32 {s(sm1)}, -1, 0
    s_cselect_b64 {s(ssw,2)}, -1, 0
    s_mov_b32 {s(sx1)}, 0
    s_mov_b32 {s(sx2)}, 0
    {Lns}:''')
    k(f's_waitcnt vmcnt({NLATE + 8 + 8})')
    for q in range(4):
        k(f'''v_cndmask_b32 {v(Fre1+q)}, {v(WI+q)}, {v(WR+q)}, {s(ssw,2)}
        v_cndmask_b32 {v(Fim1+q)}, {v(WR+q)}, {v(WI+q)}, {s(ssw,2)}
        v_and_b32 {v(Fre0+q)}, {s(sm0)}, {v(WR+q)}
        v_and_b32 {v(Fim0+q)}, {s(sm0)}, {v(WI+q)}
        v_xor_b32 {v(Fre1+q)}, {s(sx1)}, {v(Fre1+q)}
        v_xor_b32 {v(Fim1+q)}, {s(sx2)}, {v(Fim1+q)}
        v_and_b32 {v(Fre1+q)}, {s(sm1)}, {v(Fre1+q)}
        v_and_b32 {v(Fim1+q)}, {s(sm1)}, {v(Fim1+q)}''')
    AZ = k.valloc(32, 4); PR = k.valloc(16, 4); PI = k.valloc(16, 4)
    k(f'''v_lshrrev_b32 {v(vt)}, 5, {v(vl)}
    v_lshlrev_b32 {v(vt)}, 9, {v(vt)}
    v_bfe_u32 {v(vt2)}, {v(vl)}, 2, 3
    v_lshl_add_u32 {v(vt)}, {v(vt2)}, 5, {v(vt)}
    v_and_b32 {v(vt2)}, 3, {v(vl)}
    v_lshl_add_u32 {v(vt)}, {v(vt2)}, 3, {v(vt)}
    s_lshl_b32 {s(st)}, {s(sw)}, 13
    v_add_u32 {v(vt)}, {s(st)}, {v(vt)}''')
    for q in range(4):
        for ks in range(2):
            for hh in range(2):
                k(f'ds_read_b64_tr_b16 {v(AZ+8*q+4*ks+2*hh,2)}, {v(vt)} offset:{q*2048+ks*1024+hh*256}')
    slo = k.salloc(); shi = k.salloc(); sneg = k.salloc()
    k(f's_mov_b32 {s(slo)}, 0x05040100\ns_mov_b32 {s(shi)}, 0x07060302\ns_mov_b32 {s(sneg)}, 0x80008000')
    k(f's_waitcnt vmcnt({NLATE + 8})')
    for q in range(4):
        sel = slo if q % 2 == 0 else shi; o = q // 2
        A = AD + 6 * q
        k(f'''v_perm_b32 {v(A)}, {v(HR+2+o)}, {v(HR+o)}, {s(sel)}
        v_perm_b32 {v(A+1)}, {v(HR+6+o)}, {v(HR+4+o)}, {s(sel)}
        v_perm_b32 {v(A+2)}, {v(HI+2+o)}, {v(HI+o)}, {s(sel)}
        v_perm_b32 {v(A+3)}, {v(HI+6+o)}, {v(HI+4+o)}, {s(sel)}
        v_xor_b32 {v(A+4)}, {s(sneg)}, {v(A)}
        v_xor_b32 {v(A+5)}, {s(sneg)}, {v(A+1)}
        v_xor_b32 {v(A+2)}, {s(sneg)}, {v(A+2)}
        v_xor_b32 {v(A+3)}, {s(sneg)}, {v(A+3)}''')
    for q in range(4):
        k(f's_waitcnt lgkmcnt({12-4*q})')
        k(f'''v_mfma_f32_16x16x32_bf16 {v(PR+4*q,4)}, {v(AZ+8*q,4)}, {v(Fre0,4)}, 0
        v_mfma_f32_16x16x32_bf16 {v(PI+4*q,4)}, {v(AZ+8*q,4)}, {v(Fim0,4)}, 0
        v_mfma_f32_16x16x32_bf16 {v(PR+4*q,4)}, {v(AZ+8*q+4,4)}, {v(Fre1,4)}, {v(PR+4*q,4)}
        v_mfma_f32_16x16x32_bf16 {v(PI+4*q,4)}, {v(AZ+8*q+4,4)}, {v(Fim1,4)}, {v(PI+4*q,4)}''')
    k(f's_waitcnt vmcnt({NLATE})')
    UR = AZ; VV = AZ + 16
    for q in range(4):
        for i in range(4):
            k(f'v_fma_f32 {v(PR+4*q+i)}, {v(PR+4*q+i)}, {v(CA+4*q+i)}, {v(SA+4*q+i)}')
            k(f'v_mul_f32 {v(PI+4*q+i)}, {v(PI+4*q+i)}, {v(CA+4*q+i)}')
        B = SA + 4 * q
        k(f'''v_cvt_pk_bf16_f32 {v(B)}, {v(PR+4*q)}, {v(PR+4*q+1)}
        v_cvt_pk_bf16_f32 {v(B+1)}, {v(PR+4*q+2)}, {v(PR+4*q+3)}
        v_cvt_pk_bf16_f32 {v(B+2)}, {v(PI+4*q)}, {v(PI+4*q+1)}
        v_cvt_pk_bf16_f32 {v(B+3)}, {v(PI+4*q+2)}, {v(PI+4*q+3)}
        v_mfma_f32_16x16x32_bf16 {v(UR+4*q,4)}, {v(AD+6*q,4)}, {v(B,4)}, 0
        v_mfma_f32_16x16x32_bf16 {v(VV+4*q,4)}, {v(AD+6*q+2,4)}, {v(B,4)}, 0''')
    for i in range(4):
        k(f'''v_cvt_pk_bf16_f32 {v(UP+2*i)}, {v(UR+i)}, {v(UR+4+i)}
        v_cvt_pk_bf16_f32 {v(UP+2*i+1)}, {v(UR+8+i)}, {v(UR+12+i)}
        v_cvt_pk_bf16_f32 {v(UP+8+2*i)}, {v(VV+i)}, {v(VV+4+i)}
        v_cvt_pk_bf16_f32 {v(UP+8+2*i+1)}, {v(VV+8+i)}, {v(VV+12+i)}''')
    k(f's_branch {Ljoin}\n{Lw7}:')
    for i in range(16): k(f'v_mov_b32 {v(UP+i)}, 0')
    k(f'{Ljoin}:')
    for i in range(4):
        k(f'ds_write_b64 {v(aU)}, {v(UP+2*i,2)} offset:{2048*i}\nds_write_b64 {v(aV)}, {v(UP+8+2*i,2)} offset:{2048*i}')
    k(f'''v_and_b32 {v(vt)}, 7, {v(vn)}
    v_xor_b32 {v(vt)}, {v(vg)}, {v(vt)}
    v_lshlrev_b32 {v(aU)}, 4, {v(vt)}
    v_lshl_add_u32 {v(aU)}, {v(vn)}, 7, {v(aU)}
    s_lshl_b32 {s(st)}, {s(sa_)}, 13
    s_add_u32 {s(st)}, {s(st)}, {UB}
    v_add_u32 {v(aU)}, {s(st)}, {v(aU)}
    v_xor_b32 {v(aV)}, 64, {v(aU)}''')
    WC = PI; s4 = HR + 2
    k('s_waitcnt vmcnt(0)')
    for i in range(4):
        for jj in range(2):
            k(f'v_lshlrev_b32 {v(WC+4*i+2*jj)}, 16, {v(WRr+2*i+jj)}\nv_and_b32 {v(WC+4*i+2*jj+1)}, 0xffff0000, {v(WRr+2*i+jj)}')
    for e in range(16):
        k(f'v_mul_f32 {v(WC+e)}, {v(WC+e)}, {v(CB+e)}')
        k(f'v_mul_f32 {v(CB+e)}, {v(CB+e)}, {v(GB+e)}')
        k(f'v_mul_f32 {v(SB+e)}, {v(SB+e)}, {v(GB+e)}')
    k(f'v_add_f32 {v(s4)}, {v(WC)}, {v(WC+1)}')
    for e in range(2, 16): k(f'v_add_f32 {v(s4)}, {v(s4)}, {v(WC+e)}')
    k('s_waitcnt lgkmcnt(0)\ns_barrier')
    BD = AZ; Y = PR
    for j in range(4):
        k(f'ds_read_b128 {v(BD+8*j,4)}, {v(aU)} offset:{2048*j}\nds_read_b128 {v(BD+8*j+4,4)}, {v(aV)} offset:{2048*j}')
    X1 = GB
    for i in range(4):
        for jj in range(2):
            k(f'v_lshlrev_b32 {v(X1+4*i+2*jj)}, 16, {v(XR+2*i+jj)}\nv_and_b32 {v(X1+4*i+2*jj+1)}, 0xffff0000, {v(XR+2*i+jj)}')
    for j in range(4):
        k(f's_waitcnt lgkmcnt({6-2*j})')
        k(f'v_mfma_f32_16x16x32_bf16 {v(Y+4*j,4)}, {v(FR,4)}, {v(BD+8*j,4)}, 0')
        k(f'v_mfma_f32_16x16x32_bf16 {v(Y+4*j,4)}, {v(FI,4)}, {v(BD+8*j+4,4)}, {v(Y+4*j,4)}')
    s1 = HR; s2_ = s1 + 1; s3 = HR + 3
    first = True
    for j in range(4):
        for i in range(4):
            e = 4 * i + j
            k(f'v_fmac_f32 {v(X1+e)}, {v(GA+e)}, {v(Y+4*j+i)}')
            if first:
                k(f'v_mov_b32 {v(s1)}, {v(X1+e)}\nv_mul_f32 {v(s2_)}, {v(X1+e)}, {v(X1+e)}\nv_mul_f32 {v(s3)}, {v(X1+e)}, {v(WC+e)}'); first = False
            else:
                k(f'v_add_f32 {v(s1)}, {v(s1)}, {v(X1+e)}\nv_fmac_f32 {v(s2_)}, {v(X1+e)}, {v(X1+e)}\nv_fmac_f32 {v(s3)}, {v(X1+e)}, {v(WC+e)}')
    k(f'''v_permlane16_swap_b32 {v(s1)}, {v(s2_)}
    v_permlane16_swap_b32 {v(s3)}, {v(s4)}
    v_add_f32 {v(s1)}, {v(s1)}, {v(s2_)}
    v_add_f32 {v(s3)}, {v(s3)}, {v(s4)}
    v_permlane32_swap_b32 {v(s1)}, {v(s3)}
    v_add_f32 {v(s1)}, {v(s1)}, {v(s3)}
    v_lshlrev_b32 {v(vt)}, 5, {v(vl)}
    v_add_u32 {v(vt)}, {RED}, {v(vt)}
    s_lshl_b32 {s(st)}, {s(sw)}, 2
    v_add_u32 {v(vt2)}, {s(st)}, {v(vt)}
    ds_write_b32 {v(vt2)}, {v(s1)}
    s_waitcnt lgkmcnt(0)
    s_barrier
    ds_read_b128 {v(BD,4)}, {v(vt)}
    ds_read_b128 {v(BD+4,4)}, {v(vt)} offset:16
    s_waitcnt lgkmcnt(0)''')
    for i in range(1, 8): k(f'v_add_f32 {v(BD)}, {v(BD)}, {v(BD+i)}')
    k(f'''v_mov_b32 {v(s1)}, {v(BD)}
    v_mov_b32 {v(s2_)}, {v(BD)}
    v_permlane16_swap_b32 {v(s1)}, {v(s2_)}
    v_mov_b32 {v(s3)}, {v(s1)}
    v_mov_b32 {v(s4)}, {v(s2_)}
    v_permlane32_swap_b32 {v(s1)}, {v(s3)}
    v_permlane32_swap_b32 {v(s2_)}, {v(s4)}''')
    vm = s1; vr = s2_
    k(f'''v_mul_f32 {v(vm)}, {1/448:.10e}, {v(s1)}
    v_mul_f32 {v(s2_)}, {1/448:.10e}, {v(s2_)}
    v_fma_f32 {v(s2_)}, -{v(vm)}, {v(vm)}, {v(s2_)}
    v_max_f32 {v(s2_)}, 0, {v(s2_)}''')
    rb1(k, s2_, s2_); k(f'v_add_f32 {v(s2_)}, 0x3727c5ac, {v(s2_)}'); rb1(k, s2_, s2_)
    k(f'v_sqrt_f32 {v(s2_)}, {v(s2_)}'); rb1(k, s2_, s2_); k(f'v_rcp_f32 {v(vr)}, {v(s2_)}')
    rb1(k, vm, vm)
    k(f'''v_fma_f32 {v(s3)}, -{v(vm)}, {v(s4)}, {v(s3)}
    v_mul_f32 {v(s3)}, {v(s3)}, {v(vr)}
    v_mul_f32 {v(s4)}, {v(vm)}, {v(vr)}''')
    O = BD
    for e in range(16):
        k(f'''v_fma_f32 {v(GA+e)}, {v(vr)}, {v(CB+e)}, 1.0
        v_fma_f32 {v(SB+e)}, -{v(s4)}, {v(CB+e)}, {v(SB+e)}
        v_fma_f32 {v(GA+e)}, {v(X1+e)}, {v(GA+e)}, {v(SB+e)}''')
    for i in range(4):
        k(f'v_cvt_pk_bf16_f32 {v(O+2*i)}, {v(GA+4*i)}, {v(GA+4*i+1)}\nv_cvt_pk_bf16_f32 {v(O+2*i+1)}, {v(GA+4*i+2)}, {v(GA+4*i+3)}')
        k(f'buffer_store_dwordx2 {v(O+2*i,2)}, {v(vxo)}, {s(rout,4)}, 0 offen offset:{32*i}')
    k(f'''v_ashrrev_i32 {v(vt)}, 31, {v(s3)}
    v_or_b32 {v(vt)}, 0x80000000, {v(vt)}
    v_xor_b32 {v(vt)}, {v(vt)}, {v(s3)}
    v_and_b32 {v(vt)}, 0xfffff800, {v(vt)}
    v_lshlrev_b32 {v(vt2)}, 6, {v(vn)}
    v_add_u32 {v(vt2)}, {s(st0)}, {v(vt2)}
    v_sub_u32 {v(vt2)}, 2047, {v(vt2)}
    v_or_b32 {v(vt)}, {v(vt)}, {v(vt2)}
    v_mov_b32 {v(vt2)}, {v(vt)}''')
    for r in (8, 4, 2, 1):
        k(f'v_max_u32_dpp {v(vt2)}, {v(vt2)}, {v(vt2)} row_ror:{r} row_mask:0xf bank_mask:0xf')
    sx = k.salloc(2)
    k(f'''v_cmp_eq_u32 vcc, {v(vt)}, {v(vt2)}
    s_and_b64 vcc, vcc, {s(sm64,2)}
    s_lshl_b32 {s(so)}, s2, 11
    s_add_u32 {s(so)}, {s(so)}, {CAND}
    v_lshlrev_b32 {v(vo)}, 2, {v(vcol)}
    s_and_saveexec_b64 {s(sx,2)}, vcc
    s_cbranch_execz {Lend}''')
    for i in range(4): k(f'buffer_store_dwordx4 {v(X1+4*i,4)}, {v(vo)}, {s(rws,4)}, {s(so)} offen offset:{64*i}')
    k(f'''s_cmp_lg_u32 {s(sw)}, 0
    s_cbranch_scc1 {Lend}
    s_lshl_b32 {s(so)}, s2, 2
    v_mov_b32 {v(vo)}, {KEYS}
    buffer_store_dword {v(vt)}, {v(vo)}, {s(rws,4)}, {s(so)} offen
    s_lshl_b32 {s(so)}, s2, 3
    v_mov_b32 {v(vo)}, {STAT}
    buffer_store_dwordx2 {v(vm,2)}, {v(vo)}, {s(rws,4)}, {s(so)} offen''')
    assert vr == vm + 1 and vm % 2 == 0, (vm, vr)
    k(f'{Lend}:\ns_endpgm')
    return k

def gen_k3():
    k = K('k3_kernel'); k.ns = 3; k.nv = 1
    Lend = k.label('end')
    NW = 56
    k(f's_cmp_ge_u32 s2, {NW}\ns_cbranch_scc1 {Lend}')
    pws = k.salloc(2); pg = k.salloc(4); pd = k.salloc(2); pwr = k.salloc(2); pout = k.salloc(4)
    k(f'''s_load_dwordx2 {s(pws,2)}, s[0:1], 112
    s_load_dwordx4 {s(pg,4)}, s[0:1], 56
    s_load_dwordx2 {s(pd,2)}, s[0:1], 72
    s_load_dwordx2 {s(pwr,2)}, s[0:1], 48
    s_load_dwordx4 {s(pout,4)}, s[0:1], 96''')
    sw = k.salloc(); st = k.salloc(); so = k.salloc(); skey = k.salloc(); sslot = k.salloc(); sidx = k.salloc(); sx = k.salloc(2); sc = k.salloc()
    rws = k.salloc(4); rg = k.salloc(4); ru = k.salloc(4); rd = k.salloc(4); rwr = k.salloc(4); rout = k.salloc(4); rdbg = k.salloc(4)
    vl = k.valloc(); vt = k.valloc(); vt2 = k.valloc(); vo = k.valloc(); vo2 = k.valloc(); KY = k.valloc(2)
    k(f'''v_lshrrev_b32 {v(vt)}, 6, v0
    v_and_b32 {v(vl)}, 63, v0
    v_readfirstlane_b32 {s(sw)}, {v(vt)}
    v_lshlrev_b32 {v(vo2)}, 3, {v(vl)}
    v_lshrrev_b32 {v(vt)}, 2, v0
    v_mul_u32_u24 {v(vo)}, 3584, {v(vt)}
    v_and_b32 {v(vt2)}, 3, v0
    v_lshl_add_u32 {v(vo)}, {v(vt2)}, 4, {v(vo)}
    s_lshl_b32 {s(so)}, s2, 6
    s_waitcnt lgkmcnt(0)''')
    k.srd(rws, pws, WSB); k.srd(rg, pg, 448 * 3584); k.srd(ru, pg + 2, 448 * 3584); k.srd(rd, pd, 1792 * 896)
    k.srd(rwr, pwr, 896); k.srd(rout, pout, 1835008); k.srd(rdbg, pout + 2, 256)
    k(f's_mov_b32 {s(st)}, {KEYS}\nbuffer_load_dwordx2 {v(KY,2)}, {v(vo2)}, {s(rws,4)}, {s(st)} offen')
    G = k.valloc(16, 4); U = k.valloc(16, 4); D = k.valloc(16, 4)
    for i in range(4):
        k(f'buffer_load_dwordx4 {v(G+4*i,4)}, {v(vo)}, {s(rg,4)}, {s(so)} offen')
        k(f'buffer_load_dwordx4 {v(U+4*i,4)}, {v(vo)}, {s(ru,4)}, {s(so)} offen')
        if i < 3: k(f's_add_u32 {s(so)}, {s(so)}, {128*3584}')
    k(f'''s_lshl_b32 {s(so)}, s2, 5
    s_lshl_b32 {s(st)}, {s(sw)}, 2
    s_add_u32 {s(so)}, {s(so)}, {s(st)}
    s_mul_i32 {s(so)}, {s(so)}, 896
    v_lshlrev_b32 {v(vo2)}, 4, {v(vl)}
    v_mov_b32 {v(vt)}, {HUGE}
    v_cmp_gt_u32 vcc, 56, {v(vl)}
    v_cndmask_b32 {v(vo2)}, {v(vt)}, {v(vo2)}, vcc''')
    for i in range(4): k(f'buffer_load_dwordx4 {v(D+4*i,4)}, {v(vo2)}, {s(rd,4)}, {s(so)} offen offset:{896*i}')
    CBv = k.valloc(4); SBv = k.valloc(4); X1 = k.valloc(4); MR = k.valloc(2)
    k(f'v_lshrrev_b32 {v(vo)}, 2, v0\nv_lshlrev_b32 {v(vo)}, 2, {v(vo)}\ns_mov_b32 {s(so)}, {MODV+4*1792}\ns_mov_b32 {s(st)}, {MODV+3*1792}')
    for i in range(4):
        k(f'buffer_load_dword {v(CBv+i)}, {v(vo)}, {s(rws,4)}, {s(so)} offen offset:{512*i}')
        k(f'buffer_load_dword {v(SBv+i)}, {v(vo)}, {s(rws,4)}, {s(st)} offen offset:{512*i}')
    k(f's_waitcnt vmcnt(20)\nv_max_u32 {v(vt)}, {v(KY)}, {v(KY+1)}')
    for r in (8, 4, 2, 1):
        k(f'v_max_u32_dpp {v(vt)}, {v(vt)}, {v(vt)} row_ror:{r} row_mask:0xf bank_mask:0xf')
    k(f'''v_readlane_b32 {s(skey)}, {v(vt)}, 0
    v_readlane_b32 {s(st)}, {v(vt)}, 16
    s_max_u32 {s(skey)}, {s(skey)}, {s(st)}
    v_readlane_b32 {s(st)}, {v(vt)}, 32
    s_max_u32 {s(skey)}, {s(skey)}, {s(st)}
    v_readlane_b32 {s(st)}, {v(vt)}, 48
    s_max_u32 {s(skey)}, {s(skey)}, {s(st)}
    v_cmp_eq_u32 vcc, {s(skey)}, {v(KY)}
    v_cmp_eq_u32 {s(sx,2)}, {s(skey)}, {v(KY+1)}
    s_or_b64 {s(sx,2)}, {s(sx,2)}, vcc
    s_ff1_i32_b64 {s(sslot)}, {s(sx,2)}
    s_lshl_b32 {s(sslot)}, {s(sslot)}, 1
    s_cmp_eq_u64 vcc, 0
    s_addc_u32 {s(sslot)}, {s(sslot)}, 0
    s_and_b32 {s(sidx)}, {s(skey)}, 2047
    s_sub_u32 {s(sidx)}, 2047, {s(sidx)}
    s_lshl_b32 {s(sc)}, {s(sslot)}, 11
    s_add_u32 {s(sc)}, {s(sc)}, {CAND}
    s_lshl_b32 {s(st)}, {s(sslot)}, 3
    s_add_u32 {s(st)}, {s(st)}, {STAT}
    v_mov_b32 {v(vt)}, 0
    buffer_load_dwordx2 {v(MR,2)}, {v(vt)}, {s(rws,4)}, {s(st)} offen''')
    for i in range(4): k(f'buffer_load_dword {v(X1+i)}, {v(vo)}, {s(rws,4)}, {s(sc)} offen offset:{512*i}')
    k('s_waitcnt vmcnt(0)')
    for i in range(4):
        k(f'''v_sub_f32 {v(X1+i)}, {v(X1+i)}, {v(MR)}
        v_mul_f32 {v(X1+i)}, {v(X1+i)}, {v(MR+1)}
        v_fma_f32 {v(X1+i)}, {v(X1+i)}, {v(CBv+i)}, {v(SBv+i)}''')
        rb1(k, X1 + i, X1 + i)
    k(f'v_cmp_gt_u32 vcc, 256, v0\nv_cndmask_b32 {v(X1+3)}, 0, {v(X1+3)}, vcc')
    A = k.valloc(16); T = k.valloc(16)
    for i in range(4):
        for (R, o) in ((G, 0), (U, 8)):
            for q in range(4):
                k(f'v_lshlrev_b32 {v(T)}, 16, {v(R+4*i+q)}\nv_and_b32 {v(T+1)}, 0xffff0000, {v(R+4*i+q)}')
                if i == 0: k(f'v_mul_f32 {v(A+o+2*q)}, {v(T)}, {v(X1)}\nv_mul_f32 {v(A+o+2*q+1)}, {v(T+1)}, {v(X1)}')
                else: k(f'v_fmac_f32 {v(A+o+2*q)}, {v(T)}, {v(X1+i)}\nv_fmac_f32 {v(A+o+2*q+1)}, {v(T+1)}, {v(X1+i)}')
    for q in range(8): k(f'v_permlane32_swap_b32 {v(A+2*q)}, {v(A+2*q+1)}')
    for q in range(8): k(f'v_add_f32 {v(A+2*q)}, {v(A+2*q)}, {v(A+2*q+1)}')
    for p in range(4): k(f'v_permlane16_swap_b32 {v(A+4*p)}, {v(A+4*p+2)}')
    for p in range(4): k(f'v_add_f32 {v(A+4*p)}, {v(A+4*p)}, {v(A+4*p+2)}')
    for r in (8, 4):
        for p in range(4): k(f'v_add_f32_dpp {v(A+4*p)}, {v(A+4*p)}, {v(A+4*p)} row_ror:{r} row_mask:0xf bank_mask:0xf')
    k(f'''v_lshrrev_b32 {v(vt)}, 6, v0
    v_lshlrev_b32 {v(vt)}, 8, {v(vt)}
    v_and_b32 {v(vt2)}, 3, v0
    v_lshl_add_u32 {v(vt)}, {v(vt2)}, 5, {v(vt)}
    v_bfe_u32 {v(vt2)}, v0, 4, 1
    v_lshl_add_u32 {v(vt)}, {v(vt2)}, 3, {v(vt)}
    v_bfe_u32 {v(vt2)}, v0, 5, 1
    v_lshl_add_u32 {v(vt)}, {v(vt2)}, 2, {v(vt)}
    ds_write_b32 {v(vt)}, {v(A)}
    ds_write_b32 {v(vt)}, {v(A+4)} offset:16
    ds_write_b32 {v(vt)}, {v(A+8)} offset:128
    ds_write_b32 {v(vt)}, {v(A+12)} offset:144
    s_waitcnt lgkmcnt(0)
    s_barrier
    v_and_b32 {v(vt)}, 3, v0
    s_lshl_b32 {s(st)}, {s(sw)}, 2
    v_add_u32 {v(vt)}, {s(st)}, {v(vt)}
    v_lshlrev_b32 {v(vt)}, 2, {v(vt)}''')
    for i in range(8):
        k(f'ds_read_b32 {v(T+i)}, {v(vt)} offset:{256*i}\nds_read_b32 {v(T+8+i)}, {v(vt)} offset:{256*i+128}')
    k('s_waitcnt lgkmcnt(0)')
    for i in range(1, 8): k(f'v_add_f32 {v(T)}, {v(T)}, {v(T+i)}\nv_add_f32 {v(T+8)}, {v(T+8)}, {v(T+8+i)}')
    rb1(k, T, T); rb1(k, T + 8, T + 8)
    k(f'''v_mul_f32 {v(T+1)}, 0xbfb8aa3b, {v(T)}
    v_exp_f32 {v(T+1)}, {v(T+1)}
    v_add_f32 {v(T+1)}, 1.0, {v(T+1)}
    v_rcp_f32 {v(T+1)}, {v(T+1)}
    v_mul_f32 {v(T)}, {v(T)}, {v(T+1)}''')
    rb1(k, T, T); k(f'v_mul_f32 {v(T)}, {v(T)}, {v(T+8)}'); rb1(k, T, T)
    sact = k.salloc(4)
    for i in range(4): k(f'v_readlane_b32 {s(sact+i)}, {v(T)}, {i}')
    for i in range(4):
        for q in range(4):
            k(f'v_lshlrev_b32 {v(T+2)}, 16, {v(D+4*i+q)}\nv_and_b32 {v(T+3)}, 0xffff0000, {v(D+4*i+q)}')
            if i == 0: k(f'v_mul_f32 {v(A+2*q)}, {s(sact)}, {v(T+2)}\nv_mul_f32 {v(A+2*q+1)}, {s(sact)}, {v(T+3)}')
            else: k(f'v_fmac_f32 {v(A+2*q)}, {s(sact+i)}, {v(T+2)}\nv_fmac_f32 {v(A+2*q+1)}, {s(sact+i)}, {v(T+3)}')
    assert A % 2 == 0
    k(f'''v_lshlrev_b32 {v(vt)}, 5, v0
    ds_write_b128 {v(vt)}, {v(A,4)} offset:2048
    ds_write_b128 {v(vt)}, {v(A+4,4)} offset:2064
    s_waitcnt lgkmcnt(0)
    s_barrier
    v_lshlrev_b32 {v(vt)}, 2, v0''')
    for i in range(8): k(f'ds_read_b32 {v(T+i)}, {v(vt)} offset:{2048+2048*i}')
    k('s_waitcnt lgkmcnt(0)')
    for i in range(1, 8): k(f'v_add_f32 {v(T)}, {v(T)}, {v(T+i)}')
    k(f'''v_mov_b32 {v(vt2)}, {HUGE}
    v_cmp_gt_u32 vcc, 448, v0
    v_cndmask_b32 {v(vo)}, {v(vt2)}, {v(vt)}, vcc
    s_mul_i32 {s(so)}, s2, 1792
    s_add_u32 {s(so)}, {s(so)}, {PART}
    buffer_store_dword {v(T)}, {v(vo)}, {s(rws,4)}, {s(so)} offen sc0 sc1
    s_waitcnt vmcnt(0)
    s_barrier''')
    Lnot0 = k.label('n0')
    k(f'''s_cmp_lg_u32 {s(sw)}, 0
    s_cbranch_scc1 {Lnot0}
    v_mov_b32 {v(vt)}, 1
    v_mov_b32 {v(vt2)}, 0
    s_mov_b64 {s(sx,2)}, exec
    s_mov_b64 exec, 1
    buffer_atomic_add {v(vt)}, {v(vt2)}, {s(rdbg,4)}, 0 offen sc0
    s_waitcnt vmcnt(0)
    ds_write_b32 {v(vt2)}, {v(vt)}
    s_waitcnt lgkmcnt(0)
    s_mov_b64 exec, {s(sx,2)}
    {Lnot0}:
    s_barrier
    v_mov_b32 {v(vt2)}, 0
    ds_read_b32 {v(vt)}, {v(vt2)}
    s_waitcnt lgkmcnt(0)
    v_readfirstlane_b32 {s(st)}, {v(vt)}
    s_cmp_lg_u32 {s(st)}, {NW-1}
    s_cbranch_scc1 {Lend}''')
    P = k.valloc(NW)
    k(f's_mov_b32 {s(so)}, {PART}')
    for i in range(NW):
        k(f'buffer_load_dword {v(P+i)}, {v(vo)}, {s(rws,4)}, {s(so)} offen offset:{1792*(i&1)} sc0 sc1')
        if i & 1: k(f's_add_u32 {s(so)}, {s(so)}, 3584')
    k(f'''buffer_load_dword {v(X1)}, {v(vo)}, {s(rws,4)}, {s(sc)} offen
    s_mov_b32 {s(so)}, {MODV+3*1792}
    buffer_load_dword {v(SBv)}, {v(vo)}, {s(rws,4)}, {s(so)} offen
    buffer_load_dword {v(CBv)}, {v(vo)}, {s(rws,4)}, {s(so)} offen offset:1792
    buffer_load_dword {v(CBv+1)}, {v(vo)}, {s(rws,4)}, {s(so)} offen offset:3584
    v_lshrrev_b32 {v(vo2)}, 1, {v(vo)}
    buffer_load_ushort {v(SBv+1)}, {v(vo2)}, {s(rwr,4)}, 0 offen
    s_waitcnt vmcnt(0)
    v_sub_f32 {v(T)}, {v(X1)}, {v(MR)}
    v_mul_f32 {v(T)}, {v(T)}, {v(MR+1)}
    v_fma_f32 {v(T)}, {v(T)}, {v(CBv)}, {v(SBv)}''')
    rb1(k, T, T)
    k(f'v_lshlrev_b32 {v(SBv+1)}, 16, {v(SBv+1)}\nv_mul_f32 {v(T+1)}, {v(T)}, {v(SBv+1)}')
    for r in (8, 4, 2, 1): k(f'v_add_f32_dpp {v(T+1)}, {v(T+1)}, {v(T+1)} row_ror:{r} row_mask:0xf bank_mask:0xf')
    k(f'''v_lshrrev_b32 {v(vt)}, 4, v0
    v_lshlrev_b32 {v(vt)}, 2, {v(vt)}
    ds_write_b32 {v(vt)}, {v(T+1)} offset:64
    s_waitcnt lgkmcnt(0)
    s_barrier
    v_and_b32 {v(vt)}, 31, v0
    v_lshlrev_b32 {v(vt)}, 2, {v(vt)}
    ds_read_b32 {v(T+1)}, {v(vt)} offset:64''')
    for i in range(1, NW): k(f'v_add_f32 {v(P)}, {v(P)}, {v(P+i)}')
    k('s_waitcnt lgkmcnt(0)')
    for r in (8, 4, 2, 1): k(f'v_add_f32_dpp {v(T+1)}, {v(T+1)}, {v(T+1)} row_ror:{r} row_mask:0xf bank_mask:0xf')
    k(f'v_mov_b32 {v(T+2)}, {v(T+1)}\nv_permlane16_swap_b32 {v(T+1)}, {v(T+2)}\nv_add_f32 {v(T+1)}, {v(T+1)}, {v(T+2)}')
    rb1(k, T + 1, T + 1)
    k(f'''v_mul_f32 {v(T+1)}, 0xbfb8aa3b, {v(T+1)}
    v_exp_f32 {v(T+1)}, {v(T+1)}
    v_add_f32 {v(T+1)}, 1.0, {v(T+1)}
    v_rcp_f32 {v(T+1)}, {v(T+1)}''')
    rb1(k, T + 1, T + 1); rb1(k, P, P)
    k(f'v_mul_f32 {v(P)}, {v(P)}, {v(T+1)}'); rb1(k, P, P)
    k(f'v_add_f32 {v(P)}, {v(P)}, {v(T)}'); rb1(k, P, P)
    k(f'v_mul_f32 {v(P)}, {v(P)}, {v(CBv+1)}'); rb1(k, P, P)
    k(f'''v_add_f32 {v(P)}, {v(P)}, {v(X1)}
    v_cvt_pk_bf16_f32 {v(P)}, {v(P)}, {v(P)}
    s_mul_i32 {s(so)}, {s(sidx)}, 896
    buffer_store_short {v(P)}, {v(vo2)}, {s(rout,4)}, {s(so)} offen''')
    k(f'{Lend}:\ns_endpgm')
    return k
```

```python
import re
TRANS = ('v_exp_f32','v_log_f32','v_rcp_f32','v_rsq_f32','v_sqrt_f32','v_sin_f32','v_cos_f32','v_rcp_iflag_f32')
def regs(tok):
    tok = tok.strip()
    m = re.fullmatch(r'-?\|?(?:abs\()?([vsa])(\d+)\)?\|?', tok)
    if m: return [(m.group(1), int(m.group(2)))]
    m = re.fullmatch(r'-?([vsa])\[(\d+):(\d+)\]', tok)
    if m: return [(m.group(1), i) for i in range(int(m.group(2)), int(m.group(3)) + 1)]
    if tok == 'vcc': return [('s', 106), ('s', 107)]
    if tok == 'vcc_lo': return [('s', 106)]
    if tok == 'vcc_hi': return [('s', 107)]
    if tok == 'exec': return [('s', 126), ('s', 127)]
    if tok == 'm0': return [('s', 124)]
    return []
class I:
    def __init__(self, line):
        self.line = line
        t = line.split(';')[0].strip()
        self.op = t.split()[0] if t else ''
        rest = t[len(self.op):].strip()
        ops = []; cur = ''; depth = 0
        for ch in rest:
            if ch == '[': depth += 1
            if ch == ']': depth -= 1
            if ch == ',' and depth == 0: ops.append(cur.strip()); cur = ''
            else: cur += ch
        if cur.strip(): ops.append(cur.strip())
        self.mods = ''
        if ops:
            parts = ops[-1].split()
            ops[-1] = parts[0]; self.mods = ' '.join(parts[1:])
        self.ops = ops
        op = self.op
        self.mfma = op.startswith('v_mfma')
        self.valu = op.startswith('v_') and not self.mfma
        self.salu = op.startswith('s_')
        self.vmem = op.startswith(('buffer_', 'global_', 'flat_'))
        self.ds = op.startswith('ds_')
        self.trans = any(op.startswith(x) for x in TRANS)
        self.dot = op.startswith('v_dot')
        self.dpp = '_dpp' in op or 'row_' in self.mods or 'quad_perm' in self.mods
        self.permlane = op.startswith('v_permlane')
        self.rdlane = op.startswith(('v_readlane', 'v_readfirstlane'))
        self.w = []; self.r = []
        R = [regs(o) for o in ops]
        if self.mfma:
            self.w = R[0]; self.a = R[1]; self.b = R[2]; self.cc = R[3]; self.r = R[1] + R[2] + R[3]
            self.passes = 8 if '32x32x16' in op else 4 if '16x16x32' in op else 16
        elif self.valu:
            if op.startswith('v_cmp'):
                self.w = R[0]; self.r = sum(R[1:], [])
            elif self.permlane and 'swap' in op:
                self.w = R[0] + R[1]; self.r = R[0] + R[1]
            elif op.startswith(('v_add_co', 'v_sub_co', 'v_addc_co', 'v_subb_co', 'v_mad_u64')):
                self.w = R[0] + R[1]; self.r = sum(R[2:], [])
            else:
                self.w = R[0]; self.r = sum(R[1:], [])
                if op.startswith(('v_fmac', 'v_dot2c', 'v_writelane', 'v_mac')) or self.dpp or 'sdwa' in op: self.r = self.r + R[0]
                if op.startswith('v_cndmask') and len(ops) == 3: self.r += regs('vcc')
        elif self.vmem:
            if 'lds' in self.mods.split() or '_lds' in op:
                self.r = sum(R, []) + regs('m0'); self.ldsdma = True
            elif '_load' in op:
                self.w = R[0]; self.r = sum(R[1:], [])
            elif 'atomic' in op and 'sc0' in self.mods.split():
                self.w = R[0]; self.r = sum(R, [])
            else:
                self.r = sum(R, [])
        elif self.ds:
            if op.startswith(('ds_read', 'ds_bpermute', 'ds_permute', 'ds_swizzle')) or '_rtn' in op:
                self.w = R[0]; self.r = sum(R[1:], [])
            else: self.r = sum(R, [])
        elif self.salu:
            if op.startswith(('s_cmp', 's_cbranch', 's_branch', 's_waitcnt', 's_nop', 's_barrier', 's_endpgm', 's_sleep', 's_setprio')):
                self.r = sum(R, [])
            else:
                self.w = R[0] if R else []; self.r = sum(R[1:], [])
                if 'saveexec' in op: self.w = self.w + regs('exec')
        self.widestore = self.vmem and '_store' in op and ('x3' in op or 'x4' in op)
        self.ldsdma = getattr(self, 'ldsdma', False)
    def states(self):
        if self.op == 's_nop': return int(self.ops[0], 0) + 1
        return 1
def need(p, c):
    n = 0
    pw = set(p.w); cr = set(c.r); cw = set(c.w)
    vw = {x for x in pw if x[0] in 'va'}; sw = {x for x in pw if x[0] == 's'}
    if p.valu:
        if c.mfma and vw & cr: n = max(n, 2)
        if c.valu and c.dpp and vw & cr: n = max(n, 2)
        if c.permlane and vw & cr: n = max(n, 2)
        if c.rdlane and vw & cr: n = max(n, 1)
        if p.trans and c.valu and not c.trans and vw & cr: n = max(n, 1)
        if p.trans and (c.vmem or c.ds) and vw & cr: n = max(n, 1)
        if sw:
            if c.valu and sw & cr: n = max(n, 4 if c.op.startswith(('v_readlane', 'v_writelane')) else 2)
            if c.vmem and sw & cr: n = max(n, 5)
            if c.salu and sw & cr: n = max(n, 1)
            if set(regs('exec')) & sw and (c.valu or c.mfma): n = max(n, 5)
        if p.dot and (vw & (cr | cw)):
            if not (c.op == p.op and c.valu and not (vw & set(sum([regs(o) for o in c.ops[1:3]], [])))): n = max(n, 3)
        if ('sdwa' in p.op and 'dst_sel:DWORD' not in p.mods) and c.valu and vw & cr: n = max(n, 1)
    if p.mfma:
        big = {2: 5, 4: 8, 8: 12, 16: 20}[p.passes]
        if c.mfma:
            if vw & (set(c.a) | set(c.b)): n = max(n, big)
            if vw & set(c.cc):
                if not (c.cc == p.w and c.passes == p.passes): n = max(n, big - 2)
            elif vw & cw: n = max(n, big - 2)
        elif (c.valu or c.vmem or c.ds) and vw & (cr | cw): n = max(n, big)
        if c.valu and set(p.cc) & cw: n = max(n, {2: 1, 4: 3, 8: 7, 16: 15}[p.passes])
    if p.salu and ('s', 124) in pw and c.ldsdma: n = max(n, 1)
    if p.widestore and (c.valu or c.mfma) and set(regs(p.ops[0] if p.op.startswith('buffer') else p.ops[1])) & cw: n = max(n, 2)
    return n
def fix(lines):
    out = []; hist = []
    nins = 0
    for line in lines:
        t = line.split(';')[0].strip()
        if not t or t.endswith(':') or t.startswith('.'):
            out.append(line); continue
        c = I(line)
        dist = 0; req = 0
        for p in reversed(hist):
            r = need(p, c)
            if r > dist: req = max(req, r - dist)
            dist += p.states()
            if dist >= 20: break
        while req > 0:
            k = min(req, 16)
            nop = I(f'    s_nop {k-1}'); out.append(f'    s_nop {k-1}  ; hz'); hist.append(nop); req -= k; nins += 1
        out.append(line); hist.append(c)
        if len(hist) > 40: hist = hist[-40:]
    return out, nins
```

```python
import sys
from asmlib import *
import hazard
ZB = 1835008
MODV = 0x1C0000
KEYS = 0x1C4000
STAT = 0x1C4400
CAND = 0x1C8000
PART = 0x210000
WSB = 0x240000
HUGE = 0x7ff00000

def rb1(k, dst, src, tmp=None):
    k(f'v_cvt_pk_bf16_f32 {v(dst)}, {v(src)}, {v(src)}\nv_and_b32 {v(dst)}, 0xffff0000, {v(dst)}')

def gen_k1():
    k = K('k1_kernel'); k.ns = 3; k.nv = 1
    Lmod = k.label('mod'); Lend = k.label('end')
    k(f's_cmp_ge_u32 s2, 266\ns_cbranch_scc1 {Lend}')
    px = k.salloc(2); pws = k.salloc(2); pseq = k.salloc(4); pc = k.salloc(4)
    k(f's_load_dwordx2 {s(pws,2)}, s[0:1], 112')
    k(f's_cmp_ge_u32 s2, 224\ns_cbranch_scc1 {Lmod}')
    k(f's_load_dwordx2 {s(px,2)}, s[0:1], 0\ns_load_dwordx4 {s(pseq,4)}, s[0:1], 8')
    sw = k.salloc(); sj = k.salloc(); ss2 = k.salloc(); st = k.salloc(); so1 = k.salloc(); so2 = k.salloc(); sones = k.salloc()
    rx = k.salloc(4); rf = k.salloc(4); rz = k.salloc(4)
    vl = k.valloc(); vo1 = k.valloc(); vo2 = k.valloc(); vt = k.valloc(); vt2 = k.valloc(); vg = k.valloc(); vn = k.valloc()
    k(f'''v_lshrrev_b32 {v(vt)}, 6, v0
    v_and_b32 {v(vl)}, 63, v0
    v_readfirstlane_b32 {s(sw)}, {v(vt)}
    s_lshr_b32 {s(st)}, s2, 3
    s_mul_i32 {s(ss2)}, {s(st)}, 37
    s_lshr_b32 {s(ss2)}, {s(ss2)}, 8
    s_mul_i32 {s(sj)}, {s(ss2)}, 7
    s_sub_u32 {s(sj)}, {s(st)}, {s(sj)}
    s_and_b32 {s(st)}, s2, 7
    s_lshl_b32 {s(st)}, {s(st)}, 2
    s_add_u32 {s(ss2)}, {s(ss2)}, {s(st)}
    s_mul_i32 {s(so1)}, {s(ss2)}, 896
    s_lshl_b32 {s(st)}, {s(sj)}, 3
    s_add_u32 {s(so2)}, {s(so1)}, {s(st)}
    s_mov_b32 {s(sones)}, 0x3f803f80
    v_lshrrev_b32 {v(vt)}, 3, v0
    v_mul_u32_u24 {v(vt)}, 28672, {v(vt)}
    v_and_b32 {v(vt2)}, 7, v0
    v_lshl_add_u32 {v(vo1)}, {v(vt2)}, 4, {v(vt)}
    v_mul_u32_u24 {v(vo2)}, 112, {v(vt2)}
    v_add_u32 {v(vo2)}, {v(vo2)}, {v(vt)}
    v_lshrrev_b32 {v(vg)}, 4, {v(vl)}
    v_and_b32 {v(vn)}, 15, {v(vl)}
    s_waitcnt lgkmcnt(0)''')
    k.srd(rx, px, 1835008)
    X = k.valloc(28, 4); XS = k.valloc(4, 2); BF = k.valloc(8, 4)
    for i in range(7):
        k(f'buffer_load_dwordx4 {v(X+4*i,4)}, {v(vo1)}, {s(rx,4)}, {s(so1)} offen offset:{128*i}')
    k(f'buffer_load_dwordx2 {v(XS,2)}, {v(vo2)}, {s(rx,4)}, {s(so2)} offen')
    k(f'buffer_load_dwordx2 {v(XS+2,2)}, {v(vo2)}, {s(rx,4)}, {s(so2)} offen offset:56')
    k(f'''s_bitcmp1_b32 {s(sw)}, 1
    s_cselect_b32 {s(rf)}, {s(pseq+2)}, {s(pseq)}
    s_cselect_b32 {s(rf+1)}, {s(pseq+3)}, {s(pseq+1)}
    s_mov_b32 {s(rf+2)}, 8388608
    s_mov_b32 {s(rf+3)}, 0x00020000
    s_and_b32 {s(st)}, {s(sw)}, 1
    s_lshl_b32 {s(st)}, {s(st)}, 4
    v_add_u32 {v(vn)}, {s(st)}, {v(vn)}
    v_lshlrev_b32 {v(vt)}, 17, {v(vn)}
    v_lshl_add_u32 {v(vt)}, {v(vg)}, 3, {v(vt)}''')
    for q in range(4):
        k(f'buffer_load_dwordx2 {v(BF+2*q,2)}, {v(vt)}, {s(rf,4)}, 0 offen offset:{32*q}')
    k.srd(rz, pws, ZB)
    a1 = k.valloc(2); a2 = k.valloc(2)
    k(f'v_mov_b32 {v(a1)}, 0\nv_mov_b32 {v(a1+1)}, 0\nv_mov_b32 {v(a2)}, 0\nv_mov_b32 {v(a2+1)}, 0')
    for i in range(7):
        k(f's_waitcnt vmcnt({6+6-i})')
        for q in range(4):
            k(f'v_dot2c_f32_bf16 {v(a1+(q&1))}, {s(sones)}, {v(X+4*i+q)}')
            k(f'v_dot2c_f32_bf16 {v(a2+(q&1))}, {v(X+4*i+q)}, {v(X+4*i+q)}')
    k(f'v_add_f32 {v(a1)}, {v(a1)}, {v(a1+1)}\nv_add_f32 {v(a2)}, {v(a2)}, {v(a2+1)}')
    for dp in ('quad_perm:[1,0,3,2]', 'quad_perm:[2,3,0,1]', 'row_half_mirror'):
        k(f'v_add_f32_dpp {v(a1)}, {v(a1)}, {v(a1)} {dp} row_mask:0xf bank_mask:0xf')
        k(f'v_add_f32_dpp {v(a2)}, {v(a2)}, {v(a2)} {dp} row_mask:0xf bank_mask:0xf')
    vm = a1; vr = a2
    k(f'''v_mul_f32 {v(vm)}, {1/448:.10e}, {v(a1)}
    v_mul_f32 {v(a2)}, {1/448:.10e}, {v(a2)}
    v_fma_f32 {v(a2)}, -{v(vm)}, {v(vm)}, {v(a2)}
    v_max_f32 {v(a2)}, 0, {v(a2)}''')
    rb1(k, a2, a2); k(f'v_add_f32 {v(a2)}, 0x3727c5ac, {v(a2)}'); rb1(k, a2, a2)
    k(f'v_sqrt_f32 {v(a2)}, {v(a2)}'); rb1(k, a2, a2); k(f'v_rcp_f32 {v(vr)}, {v(a2)}')
    rb1(k, vm, vm)
    k(f'v_mul_f32 {v(vm)}, {v(vm)}, {v(vr)}')
    T = k.valloc(8)
    k('s_waitcnt vmcnt(4)')
    for q in range(4):
        k(f'v_lshlrev_b32 {v(T+2*q)}, 16, {v(XS+q)}\nv_and_b32 {v(T+2*q+1)}, 0xffff0000, {v(XS+q)}')
    for q in range(8):
        k(f'v_fma_f32 {v(T+q)}, {v(T+q)}, {v(vr)}, -{v(vm)}')
    for q in range(4):
        k(f'v_cvt_pk_bf16_f32 {v(XS+q)}, {v(T+2*q)}, {v(T+2*q+1)}')
    k(f'''v_lshrrev_b32 {v(vt)}, 3, v0
    v_mul_u32_u24 {v(vt)}, 160, {v(vt)}
    v_and_b32 {v(vt2)}, 1, v0
    v_lshl_add_u32 {v(vt)}, {v(vt2)}, 6, {v(vt)}
    v_bfe_u32 {v(vt2)}, v0, 1, 2
    v_lshl_add_u32 {v(vt)}, {v(vt2)}, 3, {v(vt)}
    ds_write_b64 {v(vt)}, {v(XS,2)}
    ds_write_b64 {v(vt)}, {v(XS+2,2)} offset:32
    s_waitcnt lgkmcnt(0)
    s_barrier
    s_cmp_ge_u32 {s(sw)}, 4
    s_cbranch_scc1 {Lend}''')
    k(f'''v_lshrrev_b32 {v(vt)}, 2, {v(vl)}
    v_mul_u32_u24 {v(vt)}, 160, {v(vt)}
    v_and_b32 {v(vt2)}, 3, {v(vl)}
    v_lshl_add_u32 {v(vt)}, {v(vt2)}, 3, {v(vt)}''')
    AF = X
    AF = k.valloc(32, 4); ACC = k.valloc(16, 4)
    for T_ in range(4):
        for ks in range(2):
            for hh in range(2):
                k(f'ds_read_b64_tr_b16 {v(AF+8*T_+4*ks+2*hh,2)}, {v(vt)} offset:{(32*ks+16*hh)*160+32*T_}')
    k(f'''s_cmp_eq_u32 {s(sw)}, 2
    s_cselect_b32 {s(st)}, 0, -1
    v_cmp_eq_u32 vcc, {s(st)}, {v(vn)}
    v_mov_b32 {v(vt2)}, 0xbf803f80
    s_waitcnt vmcnt(0)''')
    for q in range(8):
        k(f'v_cndmask_b32 {v(BF+q)}, {v(BF+q)}, {v(vt2)}, vcc')
    for T_ in range(4):
        k(f's_waitcnt lgkmcnt({12-4*T_})')
        k(f'v_mfma_f32_16x16x32_bf16 {v(ACC+4*T_,4)}, {v(AF+8*T_,4)}, {v(BF,4)}, 0')
        k(f'v_mfma_f32_16x16x32_bf16 {v(ACC+4*T_,4)}, {v(AF+8*T_+4,4)}, {v(BF+4,4)}, {v(ACC+4*T_,4)}')
    k(f'''v_mul_u32_u24 {v(vt)}, 57344, {v(vn)}
    v_lshl_add_u32 {v(vt)}, {v(vg)}, 3, {v(vt)}
    s_and_b32 {s(so1)}, {s(ss2)}, 0x13
    s_bfe_u32 {s(st)}, {s(ss2)}, 0x10002
    s_lshl_b32 {s(st)}, {s(st)}, 3
    s_or_b32 {s(so1)}, {s(so1)}, {s(st)}
    s_bfe_u32 {s(st)}, {s(ss2)}, 0x10003
    s_lshl_b32 {s(st)}, {s(st)}, 2
    s_or_b32 {s(so1)}, {s(so1)}, {s(st)}
    s_lshl_b32 {s(so1)}, {s(so1)}, 5
    s_lshr_b32 {s(st)}, {s(sw)}, 1
    s_lshl_b32 {s(st)}, {s(st)}, 10
    s_add_u32 {s(so1)}, {s(so1)}, {s(st)}
    s_lshl_b32 {s(st)}, {s(sj)}, 13
    s_add_u32 {s(so1)}, {s(so1)}, {s(st)}
    s_add_u32 {s(so2)}, {s(so1)}, 4096''')
    O = AF
    for i in range(4):
        k(f'v_cvt_pk_bf16_f32 {v(O+2*i)}, {v(ACC+i)}, {v(ACC+4+i)}\nv_cvt_pk_bf16_f32 {v(O+2*i+1)}, {v(ACC+8+i)}, {v(ACC+12+i)}')
    for i in range(4):
        k(f'buffer_store_dwordx2 {v(O+2*i,2)}, {v(vt)}, {s(rz,4)}, {s(so1 if i < 2 else so2)} offen offset:{2048*(i&1)}')
    k(f's_endpgm')
    k(f'{Lmod}:')
    k(f's_load_dwordx4 {s(pc,4)}, s[0:1], 80')
    sm = ss2
    k(f'''s_sub_u32 {s(sm)}, s2, 224
    s_lshl_b32 {s(so1)}, {s(sm)}, 7
    v_lshrrev_b32 {v(vt)}, 3, v0
    v_mul_u32_u24 {v(vo1)}, 5376, {v(vt)}
    v_and_b32 {v(vt2)}, 7, v0
    v_lshl_add_u32 {v(vo1)}, {v(vt2)}, 4, {v(vo1)}
    v_lshlrev_b32 {v(vo2)}, 1, {v(vt)}
    s_waitcnt lgkmcnt(0)''')
    k.srd(rx, pc, 896); k.srd(rf, pc + 2, 448 * 5376); k.srd(rz, pws, 6 * 1792, MODV)
    C = BF
    for i in range(7):
        k(f'buffer_load_ushort {v(C+i)}, {v(vo2)}, {s(rx,4)}, 0 offen offset:{128*i}')
    for i in range(7):
        k(f'buffer_load_dwordx4 {v(X+4*i,4)}, {v(vo1)}, {s(rf,4)}, {s(so1)} offen')
        if i < 6: k(f's_add_u32 {s(so1)}, {s(so1)}, {64*5376}')
    k('s_waitcnt vmcnt(7)')
    for i in range(7):
        k(f'''v_lshlrev_b32 {v(C+i)}, 16, {v(C+i)}
        v_mul_f32 {v(T+i)}, 0xbfb8aa3b, {v(C+i)}
        v_exp_f32 {v(T+i)}, {v(T+i)}''')
    for i in range(7):
        k(f'v_add_f32 {v(T+i)}, 1.0, {v(T+i)}\nv_rcp_f32 {v(T+i)}, {v(T+i)}')
    for i in range(7):
        k(f'v_mul_f32 {v(C+i)}, {v(C+i)}, {v(T+i)}'); rb1(k, C + i, C + i)
    A = ACC
    for i in range(7):
        k(f's_waitcnt vmcnt({6-i})')
        for q in range(4):
            k(f'v_lshlrev_b32 {v(T)}, 16, {v(X+4*i+q)}\nv_and_b32 {v(T+1)}, 0xffff0000, {v(X+4*i+q)}')
            if i == 0: k(f'v_mul_f32 {v(A+2*q)}, {v(T)}, {v(C)}\nv_mul_f32 {v(A+2*q+1)}, {v(T+1)}, {v(C)}')
            else: k(f'v_fmac_f32 {v(A+2*q)}, {v(T)}, {v(C+i)}\nv_fmac_f32 {v(A+2*q+1)}, {v(T+1)}, {v(C+i)}')
    for q in range(4): k(f'v_permlane32_swap_b32 {v(A+2*q)}, {v(A+2*q+1)}')
    for q in range(4): k(f'v_add_f32 {v(A+2*q)}, {v(A+2*q)}, {v(A+2*q+1)}')
    for p in range(2): k(f'v_permlane16_swap_b32 {v(A+4*p)}, {v(A+4*p+2)}')
    for p in range(2): k(f'v_add_f32 {v(A+4*p)}, {v(A+4*p)}, {v(A+4*p+2)}')
    for p in range(2): k(f'v_add_f32_dpp {v(A+4*p)}, {v(A+4*p)}, {v(A+4*p)} row_ror:8 row_mask:0xf bank_mask:0xf')
    k(f'''v_lshrrev_b32 {v(vt)}, 6, v0
    v_lshlrev_b32 {v(vt)}, 8, {v(vt)}
    v_and_b32 {v(vt2)}, 7, v0
    v_lshl_add_u32 {v(vt)}, {v(vt2)}, 5, {v(vt)}
    v_bfe_u32 {v(vt2)}, v0, 4, 1
    v_lshl_add_u32 {v(vt)}, {v(vt2)}, 3, {v(vt)}
    v_bfe_u32 {v(vt2)}, v0, 5, 1
    v_lshl_add_u32 {v(vt)}, {v(vt2)}, 2, {v(vt)}
    ds_write_b32 {v(vt)}, {v(A)}
    ds_write_b32 {v(vt)}, {v(A+4)} offset:16
    s_waitcnt lgkmcnt(0)
    s_barrier
    v_readfirstlane_b32 {s(sw)}, v0
    s_cmp_ge_u32 {s(sw)}, 64
    s_cbranch_scc1 {Lend}
    v_lshlrev_b32 {v(vt)}, 2, v0''')
    for i in range(8): k(f'ds_read_b32 {v(T+i)}, {v(vt)} offset:{256*i}')
    k(f'''s_mul_i32 {s(st)}, {s(sm)}, 37
    s_lshr_b32 {s(st)}, {s(st)}, 8
    s_mul_i32 {s(sj)}, {s(st)}, 7
    s_sub_u32 {s(sj)}, {s(sm)}, {s(sj)}
    s_lshl_b32 {s(sj)}, {s(sj)}, 6
    v_add_u32 {v(vo1)}, {s(sj)}, v0
    v_mul_u32_u24 {v(vt)}, 2341, {v(vo1)}
    v_lshrrev_b32 {v(vt)}, 16, {v(vt)}
    v_mul_u32_u24 {v(vt2)}, 28, {v(vt)}
    v_sub_u32 {v(vt2)}, {v(vo1)}, {v(vt2)}
    v_lshl_add_u32 {v(vt)}, {v(vt2)}, 4, {v(vt)}
    s_cmp_lt_u32 {s(st)}, 2
    s_cselect_b64 vcc, -1, 0
    v_cndmask_b32 {v(vo1)}, {v(vo1)}, {v(vt)}, vcc
    v_lshlrev_b32 {v(vo1)}, 2, {v(vo1)}
    s_mul_i32 {s(so1)}, {s(st)}, 1792
    s_waitcnt lgkmcnt(0)''')
    for i in range(1, 8): k(f'v_add_f32 {v(T)}, {v(T)}, {v(T+i)}')
    rb1(k, T, T)
    k(f'v_add_f32 {v(T+1)}, 1.0, {v(T)}'); rb1(k, T + 1, T + 1)
    k(f'''v_mul_f32 {v(T+2)}, 0x45000000, {v(T)}
    s_cmp_eq_u32 {s(st)}, 0
    s_cselect_b64 vcc, -1, 0
    v_cndmask_b32 {v(T)}, {v(T)}, {v(T+2)}, vcc
    s_cmp_eq_u32 {s(st)}, 1
    s_cselect_b64 vcc, -1, 0
    v_cndmask_b32 {v(T)}, {v(T)}, {v(T+1)}, vcc
    s_cmp_eq_u32 {s(st)}, 4
    s_cselect_b64 vcc, -1, 0
    v_cndmask_b32 {v(T)}, {v(T)}, {v(T+1)}, vcc
    buffer_store_dword {v(T)}, {v(vo1)}, {s(rz,4)}, {s(so1)} offen''')
    k(f'{Lend}:\ns_endpgm')
    return k

if __name__ == '__main__':
    ks = [gen_k1()]
    launches = [('k1_kernel', 266, 512, 10240)]
    try:
        from gen_v1b import gen_k2, gen_k3
        ks += [gen_k2(), gen_k3()]
        launches += [('k2_kernel', 128, 512, 94208), ('k3_kernel', 56, 512, 20480)]
    except ImportError: pass
    for k in ks:
        k.lines, n = hazard.fix(k.lines); print(k.name, 'vgpr', k.vmax, 'sgpr', k.ns, 'nops inserted', n, 'lines', len(k.lines))
    open(sys.argv[1] if len(sys.argv) > 1 else 'v1.s', 'w').write(emit(ks, launches))
```

```python
class K:
    def __init__(self, name):
        self.name = name; self.lines = []; self.nv = 0; self.ns = 0; self.vmax = 0; self.lab = 0
    def __call__(self, s):
        for l in s.strip('\n').split('\n'):
            if not l.strip(): continue
            self.lines.append('    ' + l.strip() if not l.strip().endswith(':') else l.strip())
    def c(self, s): self.lines.append('    ; ' + s)
    def valloc(self, n=1, align=1):
        if n > 1 and align == 1: align = 2
        self.nv = (self.nv + align - 1) // align * align
        r = self.nv; self.nv += n; self.vmax = max(self.vmax, self.nv); return r
    def salloc(self, n=1, align=1):
        if n == 2 and align == 1: align = 2
        if n >= 4 and align == 1: align = 4
        self.ns = (self.ns + align - 1) // align * align
        r = self.ns; self.ns += n; assert self.ns <= 100, 'sgpr overflow'; return r
    def label(self, p='L'):
        self.lab += 1; return f'{self.name}_{p}{self.lab}'
    def srd(self, s, ptr, nbytes, add=0):
        if add:
            self(f's_add_u32 s{s}, s{ptr}, {add:#x}\ns_addc_u32 s{s+1}, s{ptr+1}, 0')
        else:
            self(f's_mov_b32 s{s}, s{ptr}\ns_mov_b32 s{s+1}, s{ptr+1}')
        self(f's_mov_b32 s{s+2}, {nbytes:#x}\ns_mov_b32 s{s+3}, 0x00020000')
    diag = False; DIAG = 0x300000; kid = 0
    def stamp(self, i, real=False):
        if not K.diag: return
        assert i < 9
        self(f's_{"memrealtime" if real else "memtime"} s[{84+2*i}:{85+2*i}]')
    def dump(self):
        if not K.diag: return
        self(f"""s_memtime s[100:101]
        s_load_dwordx2 s[4:5], s[0:1], 112
        s_mov_b64 exec, -1
        v_lshrrev_b32 v1, 6, v0
        s_waitcnt lgkmcnt(0)
        s_add_u32 s4, s4, {K.DIAG + self.kid * 0x40000}
        s_addc_u32 s5, s5, 0
        s_mov_b32 s6, 0x40000
        s_mov_b32 s7, 0x00020000
        s_lshl_b32 s8, s2, 9
        v_lshlrev_b32 v1, 6, v1
        v_add_u32 v1, s8, v1
        s_getreg_b32 s9, hwreg(HW_REG_XCC_ID)
        s_getreg_b32 s10, hwreg(HW_REG_HW_ID)
        s_mov_b64 exec, 1""")
        for i in range(9):
            self(f'v_mov_b32 v2, s{84+2*i}\nbuffer_store_dword v2, v1, s[4:7], 0 offen offset:{4*i}')
        self('v_mov_b32 v2, s9\nbuffer_store_dword v2, v1, s[4:7], 0 offen offset:36\nv_mov_b32 v2, s10\nbuffer_store_dword v2, v1, s[4:7], 0 offen offset:40')
    def text(self):
        return (f'.globl {self.name}\n.p2align 8\n.type {self.name},@function\n{self.name}:\n' + '\n'.join(self.lines) + '\n')
    def desc(self, sgpr=None):
        nv = max(8, (self.vmax + 7) // 8 * 8)
        return f'''.amdhsa_kernel {self.name}
  .amdhsa_next_free_vgpr {nv}
  .amdhsa_next_free_sgpr {102 if K.diag else (sgpr or max(self.ns, 16))}
  .amdhsa_accum_offset {(nv + 3) // 4 * 4}
  .amdhsa_group_segment_fixed_size 0
  .amdhsa_kernarg_size 120
  .amdhsa_user_sgpr_count 2
  .amdhsa_user_sgpr_kernarg_segment_ptr 1
  .amdhsa_system_sgpr_workgroup_id_x 1
  .amdhsa_float_denorm_mode_32 3
.end_amdhsa_kernel
'''
def v(a, n=1): return f'v{a}' if n == 1 else f'v[{a}:{a+n-1}]'
def s(a, n=1): return f's{a}' if n == 1 else f's[{a}:{a+n-1}]'
HEADER = open('adaLN_cond__spectral_fnet__moe_arch_mod__prompt.s.ref').read().split('; Override launch')[0]
def emit(kernels, launches):
    o = HEADER
    if len(launches) == 1 and launches[0][0] == 'adaLN_cond__spectral_fnet__moe_arch_mod__prompt_kernel':
        n, g, b, l = launches[0]
        o += f'; @launch grid=({g},1,1) block=({b},1,1) lds={l}\n'
    else:
        for n, g, b, l in launches:
            o += f'; @launch kernel={n} grid=({g},1,1) block=({b},1,1) lds={l}\n'
    o += '.amdgcn_target "amdgcn-amd-amdhsa--gfx950"\n.text\n'
    for k in kernels: o += k.text()
    o += '.section .rodata,"a"\n'
    for k in kernels: o += '.p2align 6\n' + k.desc()
    return o
```

```python
import sys, struct
from asmlib import *
import hazard
NAME = 'adaLN_cond__spectral_fnet__moe_arch_mod__prompt_kernel'
ZB = 1835008
MODV = 0x1C0000; NONCE = 0x1C8000; FLAG1 = 0x1D0000; F1S = 1152; KEYS = 0x1E0000; ACT = 0x1F0000; SLOT = 0x200000; SLS = 8192
WSB = 0x300000
HUGE = 0x3ff00000
R1 = 8; RK = 8
SLEEP = 1
ZS = 928
UB = 64 * ZS; CB_ = UB + 32768; CAB = CB_ + 5 * 2048; MISC = CAB + 3584
LDS = MISC + 64
YS = 2064
def fl(x): return '0x%08x' % struct.unpack('<I', struct.pack('<f', x))[0]
def rb1(k, dst, src): k(f'v_cvt_pk_bf16_f32 {v(dst)}, {v(src)}, {v(src)}\nv_and_b32 {v(dst)}, 0xffff0000, {v(dst)}')
def ln_scalars(k, vm, vr):
    k(f'''v_mul_f32 {v(vm)}, {fl(1/448)}, {v(vm)}
    v_mul_f32 {v(vr)}, {fl(1/448)}, {v(vr)}
    v_fma_f32 {v(vr)}, -{v(vm)}, {v(vm)}, {v(vr)}
    v_max_f32 {v(vr)}, 0, {v(vr)}''')
    rb1(k, vr, vr); k(f'v_add_f32 {v(vr)}, 0x3727c5ac, {v(vr)}'); rb1(k, vr, vr)
    k(f'v_sqrt_f32 {v(vr)}, {v(vr)}'); rb1(k, vm, vm); rb1(k, vr, vr); k(f'v_rcp_f32 {v(vr)}, {v(vr)}')
    k(f'v_mul_f32 {v(vm)}, {v(vm)}, {v(vr)}')

def gen():
    k = K(NAME); k.ns = 3; k.nv = 1
    Lend = k.label('end'); Lmod = k.label('mod'); Lrole = k.label('role'); LG = k.label('G'); LD = k.label('D')
    k.stamp(0, True); k.stamp(1)
    k(f's_cmp_ge_u32 s2, 256\ns_cbranch_scc1 {Lend}')
    px = k.salloc(2); pws = k.salloc(2); pw = k.salloc(8); pc = k.salloc(4); pout = k.salloc(2)
    stag = k.salloc(); sw = k.salloc(); sa = k.salloc(); sb = k.salloc(); st = k.salloc(); st2 = k.salloc(); so = k.salloc(); scnt = k.salloc()
    sj = k.salloc(); ss2 = k.salloc(); sones = k.salloc(); sflag = k.salloc()
    rx = k.salloc(4); rws = k.salloc(4); r3 = k.salloc(4); r4 = k.salloc(4)
    vl = k.valloc(); vg = k.valloc(); vn = k.valloc(); vt = k.valloc(); vt2 = k.valloc(); vo = k.valloc(); vtag = k.valloc(); vt3 = k.valloc()
    VBASE = k.nv
    k(f'''s_load_dwordx2 {s(pws,2)}, s[0:1], 112
    s_load_dwordx2 {s(px,2)}, s[0:1], 0
    s_load_dwordx4 {s(pc,4)}, s[0:1], 80
    s_load_dwordx8 {s(pw,8)}, s[0:1], 48
    s_load_dwordx2 {s(pout,2)}, s[0:1], 96
    v_lshrrev_b32 {v(vt)}, 6, v0
    v_and_b32 {v(vl)}, 63, v0
    v_readfirstlane_b32 {s(sw)}, {v(vt)}
    v_lshrrev_b32 {v(vg)}, 4, {v(vl)}
    v_and_b32 {v(vn)}, 15, {v(vl)}
    s_lshr_b32 {s(sa)}, s2, 3
    s_and_b32 {s(sb)}, s2, 7
    s_cmp_ge_u32 {s(sa)}, 28
    s_cbranch_scc1 {Lmod}''')
    def poll(load, check_regs, nlanes=64, pre='', name='poll'):
        Lp = k.label(name); Ld = k.label(name + 'd')
        k(f's_mov_b32 {s(scnt)}, 0')
        if nlanes < 64: k(f's_bfm_b64 exec, {nlanes}, 0')
        k(f'{Lp}:'); k(load); k(f's_add_u32 {s(scnt)}, {s(scnt)}, 1\ns_waitcnt vmcnt(0)')
        r0 = check_regs[0]
        if len(check_regs) == 1: k(f'v_cmp_ne_u32 vcc, {s(stag)}, {v(r0)}')
        else:
            k(f'v_xor_b32 {v(vt3)}, {s(stag)}, {v(r0)}')
            for r in check_regs[1:]: k(f'v_xor_b32 {v(vt2)}, {s(stag)}, {v(r)}\nv_or_b32 {v(vt3)}, {v(vt3)}, {v(vt2)}')
            k(f'v_cmp_ne_u32 vcc, 0, {v(vt3)}')
        k(f's_cbranch_vccz {Ld}\ns_sleep {SLEEP}\ns_cmp_lt_u32 {s(scnt)}, 0x100000\ns_cbranch_scc1 {Lp}\n{Ld}:')
        if nlanes < 64: k('s_mov_b64 exec, -1')
    def nonce():
        k(f's_add_u32 {s(st)}, {s(pws)}, {NONCE}\ns_addc_u32 {s(st2)}, {s(pws+1)}, 0')
    assert st2 == st + 1 and st % 2 == 0
    def tagcalc():
        k(f's_mul_i32 {s(stag)}, {s(stag)}, 0x9E3779B1\ns_add_u32 {s(stag)}, {s(stag)}, 0x7F4A7C15\nv_mov_b32 {v(vtag)}, {s(stag)}')
    def sendflag():
        k(f'''v_mul_u32_u24 {v(vt)}, {F1S}, {v(vl)}
        s_lshl_b32 {s(st)}, {s(sflag)}, 2
        s_add_u32 {s(st)}, {s(st)}, {FLAG1}
        s_bfm_b64 exec, {R1}, 0
        buffer_store_dword {v(vtag)}, {v(vt)}, {s(rws,4)}, {s(st)} offen sc1
        s_mov_b64 exec, -1''')
    soff = k.salloc(7)
    X = k.valloc(28, 4); BF = k.valloc(8, 4); T = k.valloc(16, 4); a1 = k.valloc(2); a2 = k.valloc(2)
    k(f'''s_mul_i32 {s(ss2)}, {s(sa)}, 37
    s_lshr_b32 {s(ss2)}, {s(ss2)}, 8
    s_mul_i32 {s(sj)}, {s(ss2)}, 7
    s_sub_u32 {s(sj)}, {s(sa)}, {s(sj)}
    s_lshl_b32 {s(st)}, {s(sb)}, 2
    s_add_u32 {s(ss2)}, {s(ss2)}, {s(st)}
    s_mul_i32 {s(so)}, {s(ss2)}, 896
    s_lshl_b32 {s(st)}, {s(sj)}, 7
    s_add_u32 {s(soff)}, {s(so)}, {s(st)}
    s_add_u32 {s(st2)}, {s(so)}, 896''')
    for i in range(1, 7):
        k(f's_add_u32 {s(soff+i)}, {s(soff+i-1)}, 128\ns_cmp_ge_u32 {s(soff+i)}, {s(st2)}\ns_cselect_b32 {s(soff+i)}, {s(so)}, {s(soff+i)}')
    k(f'''v_lshrrev_b32 {v(vt)}, 3, v0
    v_mul_u32_u24 {v(vt)}, 28672, {v(vt)}
    v_and_b32 {v(vt2)}, 7, v0
    v_lshl_add_u32 {v(vo)}, {v(vt2)}, 4, {v(vt)}
    s_mul_i32 {s(sflag)}, {s(ss2)}, 7
    s_add_u32 {s(sflag)}, {s(sflag)}, {s(sj)}
    s_mov_b32 {s(sones)}, 0x3f803f80
    s_waitcnt lgkmcnt(0)''')
    k.srd(rx, px, 1835008)
    for i in range(7): k(f'buffer_load_dwordx4 {v(X+4*i,4)}, {v(vo)}, {s(rx,4)}, {s(soff+i)} offen')
    nonce(); k(f's_load_dword {s(stag)}, {s(st,2)}, 0'); k.srd(rws, pws, WSB)
    k.stamp(2)
    vslot = k.valloc(); vstep = k.valloc(); vbase = k.valloc()
    k(f'''s_and_b32 {s(st)}, {s(sw)}, 1
    s_lshl_b32 {s(st)}, {s(st)}, 4
    v_add_u32 {v(vslot)}, {s(st)}, {v(vn)}
    v_cvt_f32_u32 {v(vstep)}, {v(vslot)}
    s_bitcmp1_b32 {s(sw)}, 1
    s_cselect_b32 {s(st)}, {fl(0.25)}, 0
    s_cselect_b32 {s(st2)}, {fl(32.0)}, 0
    v_mov_b32 {v(vbase)}, {s(st)}
    v_mov_b32 {v(vt)}, {s(st2)}
    v_cmp_eq_u32 vcc, 0, {v(vslot)}
    v_cndmask_b32 {v(vstep)}, {v(vstep)}, {v(vt)}, vcc
    v_cndmask_b32 {v(vbase)}, {v(vbase)}, 0, vcc
    v_mul_f32 {v(vstep)}, {fl(1/64)}, {v(vstep)}
    v_lshlrev_b32 {v(vt)}, 2, {v(vg)}
    v_cvt_f32_u32 {v(vt)}, {v(vt)}
    v_fmac_f32 {v(vbase)}, {v(vstep)}, {v(vt)}''')
    for e in range(16):
        o = 32 * (e >> 3) + 16 * ((e >> 2) & 1) + (e & 3)
        k(f'v_fmamk_f32 {v(T+e)}, {v(vstep)}, {fl(o)}, {v(vbase)}')
    for e in range(16): k(f'v_cos_f32 {v(T+e)}, {v(T+e)}')
    for e in range(8): k(f'v_cvt_pk_bf16_f32 {v(BF+e)}, {v(T+2*e)}, {v(T+2*e+1)}')
    k(f'v_mov_b32 {v(a1)}, 0\nv_mov_b32 {v(a1+1)}, 0\nv_mov_b32 {v(a2)}, 0\nv_mov_b32 {v(a2+1)}, 0')
    aW = k.valloc(); aR = k.valloc(); aZ = k.valloc()
    k(f'''v_lshrrev_b32 {v(vt)}, 3, v0
    v_mul_u32_u24 {v(aW)}, 144, {v(vt)}
    v_and_b32 {v(vt2)}, 7, v0
    v_lshl_add_u32 {v(aW)}, {v(vt2)}, 4, {v(aW)}
    v_lshrrev_b32 {v(vt)}, 2, {v(vl)}
    v_mul_u32_u24 {v(aR)}, 144, {v(vt)}
    v_and_b32 {v(vt2)}, 3, {v(vl)}
    v_lshl_add_u32 {v(aR)}, {v(vt2)}, 4, {v(aR)}
    s_lshr_b32 {s(st)}, {s(sw)}, 2
    s_lshl_b32 {s(st)}, {s(st)}, 6
    v_add_u32 {v(aR)}, {s(st)}, {v(aR)}
    v_mul_u32_u24 {v(aZ)}, 57344, {v(vslot)}
    v_lshl_add_u32 {v(aZ)}, {v(vg)}, 4, {v(aZ)}
    s_bfe_u32 {s(st2)}, {s(sw)}, 0x10001
    s_mul_i32 {s(st2)}, {s(st2)}, 28672
    s_add_u32 {s(so)}, {s(soff)}, {s(st2)}
    s_add_u32 {s(so)}, {s(so)}, {s(st)}''')
    for i in range(7):
        k(f's_waitcnt vmcnt({6-i})')
        if i == 0:
            for q in range(4): k(f'v_lshlrev_b32 {v(T+2*q)}, 16, {v(X+q)}\nv_and_b32 {v(T+2*q+1)}, 0xffff0000, {v(X+q)}')
        for q in range(4):
            k(f'v_dot2c_f32_bf16 {v(a1+(q&1))}, {s(sones)}, {v(X+4*i+q)}')
            k(f'v_dot2c_f32_bf16 {v(a2+(q&1))}, {v(X+4*i+q)}, {v(X+4*i+q)}')
    k.stamp(3)
    k(f'v_add_f32 {v(a1)}, {v(a1)}, {v(a1+1)}\nv_add_f32 {v(a2)}, {v(a2)}, {v(a2+1)}')
    for dp in ('quad_perm:[1,0,3,2]', 'quad_perm:[2,3,0,1]', 'row_half_mirror'):
        k(f'v_add_f32_dpp {v(a1)}, {v(a1)}, {v(a1)} {dp} row_mask:0xf bank_mask:0xf')
        k(f'v_add_f32_dpp {v(a2)}, {v(a2)}, {v(a2)} {dp} row_mask:0xf bank_mask:0xf')
    ln_scalars(k, a1, a2)
    for q in range(8): k(f'v_fma_f32 {v(T+q)}, {v(T+q)}, {v(a2)}, -{v(a1)}')
    for q in range(4): k(f'v_cvt_pk_bf16_f32 {v(X+q)}, {v(T+2*q)}, {v(T+2*q+1)}')
    k(f'ds_write_b128 {v(aW)}, {v(X,4)}\ns_waitcnt lgkmcnt(0)\ns_barrier')
    AF = X + 4
    for ab in range(2):
        for ks in range(2):
            for hh in range(2):
                k(f'ds_read_b64_tr_b16 {v(AF+8*ab+4*ks+2*hh,2)}, {v(aR)} offset:{(32*ks+16*hh)*144+8*ab}')
    tagcalc()
    for ab in range(2):
        k(f's_waitcnt lgkmcnt({4-4*ab})')
        k(f'v_mfma_f32_16x16x32_bf16 {v(T+4*ab,4)}, {v(AF+8*ab,4)}, {v(BF,4)}, 0')
        k(f'v_mfma_f32_16x16x32_bf16 {v(T+4*ab,4)}, {v(AF+8*ab+4,4)}, {v(BF+4,4)}, {v(T+4*ab,4)}')
    for q in range(4): k(f'v_cvt_pk_bf16_f32 {v(X+q)}, {v(T+2*q)}, {v(T+2*q+1)}')
    k(f'buffer_store_dwordx4 {v(X,4)}, {v(aZ)}, {s(rws,4)}, {s(so)} offen sc1')
    k.stamp(4)
    k(f's_waitcnt vmcnt(0)\ns_barrier')
    Lnf = k.label('nf')
    k(f's_cmp_lg_u32 {s(sw)}, 0\ns_cbranch_scc1 {Lnf}'); sendflag(); k(f'{Lnf}:')
    k(f's_cmp_ge_u32 {s(sa)}, 27\ns_cbranch_scc1 {Lend}\ns_cmp_ge_u32 {s(sa)}, 23\ns_cbranch_scc1 {LD}\ns_cmp_ge_u32 {s(sa)}, 16\ns_cbranch_scc1 {LG}')
    k.nv = VBASE
    sslot = sj; st0 = ss2; smir = k.salloc(); sa4 = k.salloc(); sb2 = k.salloc()
    XR = k.valloc(8, 4); XF = k.valloc(16, 4); F0 = k.valloc(16, 4); AD = k.valloc(24, 4); FR = k.valloc(8, 4)
    AZ = k.valloc(32, 4); PR = k.valloc(16, 4); PI = k.valloc(16, 4); CA = k.valloc(16, 4); CK = k.valloc(40, 4)
    vstep = k.valloc(); vbase = k.valloc(); aU = k.valloc(); aV = k.valloc(); aT = k.valloc(); vxo = k.valloc(); aC = k.valloc(); aY = k.valloc()
    Fre0 = F0; Fim0 = F0 + 4; Fre1 = F0 + 8; Fim1 = F0 + 12; FI = FR + 4
    T = AZ
    k(f'''s_lshr_b32 {s(st)}, {s(sa)}, 2
    s_lshl_b32 {s(st)}, {s(st)}, 3
    s_add_u32 {s(sslot)}, {s(sb)}, {s(st)}
    s_bfe_u32 {s(smir)}, {s(sa)}, 0x10001
    s_sub_u32 {s(st)}, 64, {s(sslot)}
    s_cmp_eq_u32 {s(sslot)}, 0
    s_cselect_b32 {s(st)}, 32, {s(st)}
    s_cmp_eq_u32 {s(smir)}, 1
    s_cselect_b32 {s(st0)}, {s(st)}, {s(sslot)}
    s_and_b32 {s(st)}, {s(sa)}, 1
    s_lshl_b32 {s(st)}, {s(st)}, 10
    s_add_u32 {s(st0)}, {s(st0)}, {s(st)}
    s_and_b32 {s(sa4)}, {s(sw)}, 3
    s_lshr_b32 {s(sb2)}, {s(sw)}, 2
    s_lshl_b32 {s(st)}, {s(sw)}, 7
    s_add_u32 {s(st)}, {s(st)}, {s(st0)}
    s_mul_i32 {s(so)}, {s(st)}, 896
    v_lshlrev_b32 {v(vxo)}, 4, {v(vl)}
    v_mov_b32 {v(vt)}, {HUGE}
    v_cmp_gt_u32 vcc, 56, {v(vl)}
    v_cndmask_b32 {v(vxo)}, {v(vt)}, {v(vxo)}, vcc
    v_add_u32 {v(vo)}, {s(so)}, {v(vxo)}
    s_mov_b32 {s(st)}, 57344
    buffer_load_dwordx4 {v(XR,4)}, {v(vo)}, {s(rx,4)}, 0 offen
    buffer_load_dwordx4 {v(XR+4,4)}, {v(vo)}, {s(rx,4)}, {s(st)} offen''')
    vout = k.valloc(); k(f'v_mov_b32 {v(vout)}, {v(vo)}')
    k.srd(r3, pout, 1835008)
    k(f'''s_lshl_b32 {s(st)}, {s(sb2)}, 4
    v_add_u32 {v(vt)}, {s(st)}, {v(vn)}
    v_cvt_f32_u32 {v(vstep)}, {v(vt)}
    v_mul_f32 {v(vstep)}, {fl(1/28)}, {v(vstep)}
    v_cmp_gt_u32 vcc, 28, {v(vt)}
    v_lshlrev_b32 {v(vt)}, 3, {v(vg)}
    v_cvt_f32_u32 {v(vbase)}, {v(vt)}
    v_mul_f32 {v(vbase)}, {v(vbase)}, {v(vstep)}''')
    for e in range(8): k(f'v_fmamk_f32 {v(T+e)}, {v(vstep)}, {fl(e)}, {v(vbase)}')
    for e in range(8): k(f'v_sin_f32 {v(T+8+e)}, {v(T+e)}\nv_cos_f32 {v(T+e)}, {v(T+e)}')
    for e in range(4): k(f'v_cvt_pk_bf16_f32 {v(FR+e)}, {v(T+2*e)}, {v(T+2*e+1)}\nv_cvt_pk_bf16_f32 {v(FI+e)}, -{v(T+8+2*e)}, -{v(T+9+2*e)}')
    for e in range(8): k(f'v_cndmask_b32 {v(FR+e)}, 0, {v(FR+e)}, vcc')
    k(f'''s_lshr_b32 {s(st)}, {s(sw)}, 1
    v_and_b32 {v(vt)}, 7, {v(vn)}
    v_xor_b32 {v(vt2)}, {s(st)}, {v(vt)}
    v_lshlrev_b32 {v(aU)}, 4, {v(vt2)}
    v_lshl_add_u32 {v(aU)}, {v(vn)}, 7, {v(aU)}
    v_lshl_add_u32 {v(aU)}, {v(vg)}, 13, {v(aU)}
    s_and_b32 {s(st)}, {s(sw)}, 1
    s_lshl_b32 {s(st)}, {s(st)}, 3
    s_add_u32 {s(st)}, {s(st)}, {UB}
    v_add_u32 {v(aU)}, {s(st)}, {v(aU)}
    v_xor_b32 {v(aV)}, {v(vg)}, {v(vt)}
    v_lshlrev_b32 {v(aV)}, 4, {v(aV)}
    v_lshl_add_u32 {v(aV)}, {v(vn)}, 7, {v(aV)}
    s_lshl_b32 {s(st)}, {s(sa4)}, 13
    s_add_u32 {s(st)}, {s(st)}, {UB}
    v_add_u32 {v(aV)}, {s(st)}, {v(aV)}
    v_lshrrev_b32 {v(vt)}, 2, {v(vl)}
    v_mul_u32_u24 {v(aT)}, {ZS}, {v(vt)}
    v_and_b32 {v(vt)}, 3, {v(vl)}
    v_mul_u32_u24 {v(vt)}, 56, {v(vt)}
    s_lshl_b32 {s(st)}, {s(sw)}, 3
    v_add3_u32 {v(aT)}, {v(aT)}, {v(vt)}, {s(st)}
    v_mul_u32_u24 {v(aC)}, 112, {v(vg)}
    s_lshl_b32 {s(st)}, {s(sw)}, 4
    s_add_u32 {s(st)}, {s(st)}, {CAB}
    v_add_u32 {v(aC)}, {s(st)}, {v(aC)}
    v_mul_u32_u24 {v(aY)}, {YS}, {v(vn)}
    v_lshl_add_u32 {v(aY)}, {v(vg)}, 8, {v(aY)}
    s_lshl_b32 {s(st)}, {s(sb2)}, 10
    s_lshl_b32 {s(st2)}, {s(sa4)}, 4
    s_add_u32 {s(st)}, {s(st)}, {s(st2)}
    v_add_u32 {v(aY)}, {s(st)}, {v(aY)}''')
    Lp7 = k.label('p7'); LA0 = k.label('A0')
    k(f's_cmp_eq_u32 {s(sw)}, 7\ns_cbranch_scc1 {Lp7}')
    k(f'''v_lshlrev_b32 {v(vt)}, 6, {v(vn)}
    v_add_u32 {v(vt)}, {s(st0)}, {v(vt)}
    v_cvt_f32_u32 {v(vstep)}, {v(vt)}
    v_mul_f32 {v(vstep)}, {fl(1/2048)}, {v(vstep)}
    v_lshlrev_b32 {v(vt)}, 2, {v(vg)}
    v_cvt_f32_u32 {v(vbase)}, {v(vt)}
    v_mul_f32 {v(vbase)}, {v(vbase)}, {v(vstep)}''')
    for e in range(8): k(f'v_fmamk_f32 {v(T+e)}, {v(vstep)}, {fl(16*(e>>2)+(e&3))}, {v(vbase)}')
    for e in range(8): k(f'v_sin_f32 {v(T+8+e)}, {v(T+e)}\nv_cos_f32 {v(T+e)}, {v(T+e)}')
    for e in range(4): k(f'v_cvt_pk_bf16_f32 {v(Fre0+e)}, {v(T+2*e)}, {v(T+2*e+1)}\nv_cvt_pk_bf16_f32 {v(Fim0+e)}, -{v(T+8+2*e)}, -{v(T+9+2*e)}')
    sx1 = k.salloc(); sx2 = k.salloc(); sm0 = k.salloc(); sm1 = k.salloc(); ssw = k.salloc(2)
    Lns = k.label('ns')
    k(f'''s_cmp_eq_u32 {s(smir)}, 1
    s_cselect_b32 {s(sx1)}, 0, 0x80008000
    s_cselect_b32 {s(sx2)}, 0x80008000, 0
    s_mov_b32 {s(sm0)}, -1
    s_mov_b32 {s(sm1)}, -1
    s_mov_b64 {s(ssw,2)}, 0
    s_cmp_eq_u32 {s(sslot)}, 0
    s_cbranch_scc0 {Lns}
    s_cmp_eq_u32 {s(smir)}, 1
    s_cselect_b32 {s(sm0)}, 0, -1
    s_cselect_b32 {s(sm1)}, -1, 0
    s_cselect_b64 {s(ssw,2)}, -1, 0
    s_mov_b32 {s(sx1)}, 0
    s_mov_b32 {s(sx2)}, 0
    {Lns}:''')
    for q in range(4):
        k(f'''v_cndmask_b32 {v(Fre1+q)}, {v(Fim0+q)}, {v(Fre0+q)}, {s(ssw,2)}
        v_cndmask_b32 {v(Fim1+q)}, {v(Fre0+q)}, {v(Fim0+q)}, {s(ssw,2)}
        v_and_b32 {v(Fre0+q)}, {s(sm0)}, {v(Fre0+q)}
        v_and_b32 {v(Fim0+q)}, {s(sm0)}, {v(Fim0+q)}
        v_xor_b32 {v(Fre1+q)}, {s(sx1)}, {v(Fre1+q)}
        v_xor_b32 {v(Fim1+q)}, {s(sx2)}, {v(Fim1+q)}
        v_and_b32 {v(Fre1+q)}, {s(sm1)}, {v(Fre1+q)}
        v_and_b32 {v(Fim1+q)}, {s(sm1)}, {v(Fim1+q)}''')
    k(f'''v_cvt_f32_u32 {v(vstep)}, {v(vn)}
    v_mul_f32 {v(vstep)}, {fl(1/448)}, {v(vstep)}
    v_mul_u32_u24 {v(vt)}, 28, {v(vg)}
    s_lshl_b32 {s(st)}, {s(sw)}, 2
    v_add_u32 {v(vt)}, {s(st)}, {v(vt)}
    v_cvt_f32_u32 {v(vbase)}, {v(vt)}
    v_mul_f32 {v(vbase)}, {v(vbase)}, {v(vstep)}''')
    for q in range(4):
        for T_ in range(4): k(f'v_fmamk_f32 {v(T+4*q+T_)}, {v(vstep)}, {fl(112*T_+q)}, {v(vbase)}')
    for e in range(16): k(f'v_sin_f32 {v(T+16+e)}, {v(T+e)}\nv_cos_f32 {v(T+e)}, {v(T+e)}')
    for q in range(4):
        A = AD + 6 * q
        k(f'''v_cvt_pk_bf16_f32 {v(A)}, {v(T+4*q)}, {v(T+4*q+1)}
        v_cvt_pk_bf16_f32 {v(A+1)}, {v(T+4*q+2)}, {v(T+4*q+3)}
        v_cvt_pk_bf16_f32 {v(A+2)}, {v(T+16+4*q)}, {v(T+16+4*q+1)}
        v_cvt_pk_bf16_f32 {v(A+3)}, {v(T+16+4*q+2)}, {v(T+16+4*q+3)}
        v_xor_b32 {v(A+4)}, 0x80008000, {v(A)}
        v_xor_b32 {v(A+5)}, 0x80008000, {v(A+1)}''')
    k(f's_branch {LA0}\n{Lp7}:')
    k.srd(r4, pw, 896)
    k(f'''buffer_load_dwordx4 {v(PI,4)}, {v(vxo)}, {s(r4,4)}, 0 offen
    v_mov_b32 {v(vt)}, {MISC}
    v_mov_b32 {v(vt2)}, 0
    ds_write_b32 {v(vt)}, {v(vt2)}
    s_and_b32 {s(st)}, {s(sa)}, {R1-1}
    s_mul_i32 {s(sflag)}, {s(st)}, {F1S}
    s_add_u32 {s(sflag)}, {s(sflag)}, {FLAG1}
    v_lshlrev_b32 {v(vt)}, 4, {v(vl)}''')
    poll(f'buffer_load_dwordx4 {v(T,4)}, {v(vt)}, {s(rws,4)}, {s(sflag)} offen sc1', [T, T+1, T+2, T+3], 60, name='pz')
    k(f'{LA0}:')
    k('s_waitcnt vmcnt(0)')
    for q in range(8): k(f'v_lshlrev_b32 {v(XF+2*q)}, 16, {v(XR+q)}\nv_and_b32 {v(XF+2*q+1)}, 0xffff0000, {v(XR+q)}')
    k(f'''s_mul_i32 {s(so)}, {s(sslot)}, 57344
    s_mul_i32 {s(st)}, {s(sw)}, {8*896}
    s_add_u32 {s(so)}, {s(so)}, {s(st)}
    s_mul_i32 {s(st)}, {s(sw)}, {8*ZS}
    v_lshlrev_b32 {v(vt)}, 4, {v(vl)}
    s_barrier''')
    k.stamp(5)
    k('s_bfm_b64 exec, 56, 0')
    for i in range(8):
        k(f's_mov_b32 m0, {s(st)}\ns_add_u32 {s(st)}, {s(st)}, {ZS}')
        k(f'buffer_load_dwordx4 {v(vt)}, {s(rws,4)}, {s(so)} offen sc1 lds\ns_add_u32 {s(so)}, {s(so)}, 896')
    Lnc = k.label('nc')
    k(f'''s_cmp_ge_u32 {s(sw)}, 4
    s_cbranch_scc1 {Lnc}
    s_mul_i32 {s(st)}, {s(sw)}, 896
    s_add_u32 {s(so)}, {s(st)}, {MODV}
    s_add_u32 {s(st)}, {s(st)}, {CAB}
    s_mov_b32 m0, {s(st)}
    s_nop 0
    buffer_load_dwordx4 {v(vt)}, {s(rws,4)}, {s(so)} offen sc1 lds
    {Lnc}:
    s_mov_b64 exec, -1
    s_waitcnt vmcnt(0)
    s_barrier''')
    k.stamp(6)
    Lw7 = k.label('w7'); Ljoin = k.label('join')
    k(f's_cmp_eq_u32 {s(sw)}, 7\ns_cbranch_scc1 {Lw7}')
    for T_ in range(4):
        for ks in range(2):
            for hh in range(2):
                k(f'ds_read_b64_tr_b16 {v(AZ+8*T_+4*ks+2*hh,2)}, {v(aT)} offset:{(32*ks+16*hh)*ZS+224*T_}')
    for T_ in range(4):
        k(f's_waitcnt lgkmcnt({12 if T_ == 0 else 16-4*T_})')
        k(f'''v_mfma_f32_16x16x32_bf16 {v(PR+4*T_,4)}, {v(AZ+8*T_,4)}, {v(Fre0,4)}, 0
        v_mfma_f32_16x16x32_bf16 {v(PI+4*T_,4)}, {v(AZ+8*T_,4)}, {v(Fim0,4)}, 0
        v_mfma_f32_16x16x32_bf16 {v(PR+4*T_,4)}, {v(AZ+8*T_+4,4)}, {v(Fre1,4)}, {v(PR+4*T_,4)}
        v_mfma_f32_16x16x32_bf16 {v(PI+4*T_,4)}, {v(AZ+8*T_+4,4)}, {v(Fim1,4)}, {v(PI+4*T_,4)}''')
        if T_ == 0:
            for t2 in range(4): k(f'ds_read_b128 {v(CA+4*t2,4)}, {v(aC)} offset:{1792+448*t2}')
    k('s_waitcnt lgkmcnt(0)')
    for T_ in range(4):
        for i in range(4): k(f'v_mul_f32 {v(PR+4*T_+i)}, {v(PR+4*T_+i)}, {v(CA+4*T_+i)}\nv_mul_f32 {v(PI+4*T_+i)}, {v(PI+4*T_+i)}, {v(CA+4*T_+i)}')
    Lnsa = k.label('nsa')
    k(f's_cmp_lg_u32 {s(st0)}, 0\ns_cbranch_scc1 {Lnsa}')
    for t2 in range(4): k(f'ds_read_b128 {v(CA+4*t2,4)}, {v(aC)} offset:{448*t2}')
    k(f's_mov_b32 exec_lo, 0x00010001\ns_mov_b32 exec_hi, 0x00010001\ns_waitcnt lgkmcnt(0)')
    for e in range(16): k(f'v_add_f32 {v(PR+e)}, {v(PR+e)}, {v(CA+e)}')
    k(f's_mov_b64 exec, -1\n{Lnsa}:')
    UR = AZ; VV = AZ + 16
    for i in range(4):
        B = CA + 4 * i
        k(f'''v_cvt_pk_bf16_f32 {v(B)}, {v(PR+i)}, {v(PR+4+i)}
        v_cvt_pk_bf16_f32 {v(B+1)}, {v(PR+8+i)}, {v(PR+12+i)}
        v_cvt_pk_bf16_f32 {v(B+2)}, {v(PI+i)}, {v(PI+4+i)}
        v_cvt_pk_bf16_f32 {v(B+3)}, {v(PI+8+i)}, {v(PI+12+i)}
        v_mfma_f32_16x16x32_bf16 {v(UR+4*i,4)}, {v(AD+6*i,4)}, {v(B,4)}, 0
        v_mfma_f32_16x16x32_bf16 {v(VV+4*i,4)}, {v(AD+6*i+2,4)}, {v(B,4)}, 0''')
    UP = PR
    for i in range(4):
        k(f'''v_cvt_pk_bf16_f32 {v(UP+2*i)}, {v(UR+i)}, {v(UR+4+i)}
        v_cvt_pk_bf16_f32 {v(UP+2*i+1)}, {v(UR+8+i)}, {v(UR+12+i)}
        v_cvt_pk_bf16_f32 {v(UP+8+2*i)}, {v(VV+i)}, {v(VV+4+i)}
        v_cvt_pk_bf16_f32 {v(UP+8+2*i+1)}, {v(VV+8+i)}, {v(VV+12+i)}''')
    k(f's_branch {Ljoin}\n{Lw7}:')
    k(f'v_lshlrev_b32 {v(vt)}, 2, {v(vl)}\ns_add_u32 {s(sflag)}, {s(sflag)}, {238*4}')
    poll(f'buffer_load_dword {v(T)}, {v(vt)}, {s(rws,4)}, {s(sflag)} offen sc1', [T], 28, name='pm')
    k(f'v_lshlrev_b32 {v(vt)}, 1, {v(vxo)}')
    for (slot_, sec) in ((0, 2), (2, 4), (3, 3), (4, 5)):
        k(f's_mov_b32 {s(so)}, {MODV+sec*1792}')
        k(f'buffer_load_dwordx4 {v(CK+8*slot_,4)}, {v(vt)}, {s(rws,4)}, {s(so)} offen sc1\nbuffer_load_dwordx4 {v(CK+8*slot_+4,4)}, {v(vt)}, {s(rws,4)}, {s(so)} offen offset:16 sc1')
    for q in range(4): k(f'v_lshlrev_b32 {v(T+2*q)}, 16, {v(PI+q)}\nv_and_b32 {v(T+2*q+1)}, 0xffff0000, {v(PI+q)}')
    k('s_waitcnt vmcnt(0)')
    for e in range(8): k(f'v_mul_f32 {v(CK+8+e)}, {v(T+e)}, {v(CK+16+e)}')
    k(f'v_add_f32 {v(T+8)}, {v(CK+8)}, {v(CK+9)}\nv_mul_f32 {v(T+9)}, {v(T)}, {v(CK+24)}')
    for e in range(2, 8): k(f'v_add_f32 {v(T+8)}, {v(T+8)}, {v(CK+8+e)}')
    for e in range(1, 8): k(f'v_fmac_f32 {v(T+9)}, {v(T+e)}, {v(CK+24+e)}')
    k(f'v_permlane32_swap_b32 {v(T+8)}, {v(T+9)}\nv_add_f32 {v(T+8)}, {v(T+8)}, {v(T+9)}\nv_mov_b32 {v(T+9)}, {v(T+8)}\nv_permlane16_swap_b32 {v(T+8)}, {v(T+9)}\nv_add_f32 {v(T+8)}, {v(T+8)}, {v(T+9)}')
    for r in (8, 4, 2, 1): k(f'v_add_f32_dpp {v(T+8)}, {v(T+8)}, {v(T+8)} row_ror:{r} row_mask:0xf bank_mask:0xf')
    k(f'''v_readlane_b32 {s(st)}, {v(T+8)}, 0
    v_readlane_b32 {s(st2)}, {v(T+8)}, 32
    v_mov_b32 {v(T+9)}, {fl(-1/448)}
    v_mul_f32 {v(T+9)}, {s(st)}, {v(T+9)}
    v_cmp_gt_u32 vcc, 56, {v(vl)}
    v_cndmask_b32 {v(T+9)}, 0, {v(T+9)}, vcc
    v_mov_b32 {v(T+10)}, {s(st2)}
    v_mov_b32 {v(vt2)}, {MISC}
    ds_write_b32 {v(vt2)}, {v(T+10)} offset:4
    v_lshlrev_b32 {v(vt)}, 5, {v(vl)}
    v_add_u32 {v(vt)}, {CB_}, {v(vt)}''')
    for e in range(8): k(f'v_add_f32 {v(CK+8+e)}, {v(CK+8+e)}, {v(T+9)}')
    for c in range(5): k(f'ds_write_b128 {v(vt)}, {v(CK+8*c,4)} offset:{2048*c}\nds_write_b128 {v(vt)}, {v(CK+8*c+4,4)} offset:{2048*c+16}')
    for i in range(16): k(f'v_mov_b32 {v(UP+i)}, 0')
    k(f'{Ljoin}:\nv_xor_b32 {v(vt)}, 64, {v(aU)}')
    for i in range(4): k(f'ds_write_b64 {v(aU)}, {v(UP+2*i,2)} offset:{2048*i}\nds_write_b64 {v(vt)}, {v(UP+8+2*i,2)} offset:{2048*i}')
    k(f'v_xor_b32 {v(vt2)}, 64, {v(aV)}\nv_lshlrev_b32 {v(vt)}, 5, {v(vl)}\nv_add_u32 {v(aC)}, {CB_}, {v(vt)}\ns_waitcnt lgkmcnt(0)\ns_barrier')
    k.stamp(7)
    BD = AZ; Y = PR
    for j in range(4): k(f'ds_read_b128 {v(BD+8*j,4)}, {v(aV)} offset:{2048*j}\nds_read_b128 {v(BD+8*j+4,4)}, {v(vt2)} offset:{2048*j}')
    for c in range(2): k(f'ds_read_b128 {v(CK+8*c,4)}, {v(aC)} offset:{2048*c}\nds_read_b128 {v(CK+8*c+4,4)}, {v(aC)} offset:{2048*c+16}')
    for j in range(4):
        k(f's_waitcnt lgkmcnt({10-2*j})')
        k(f'v_mfma_f32_16x16x32_bf16 {v(Y+4*j,4)}, {v(FR,4)}, {v(BD+8*j,4)}, 0')
        k(f'v_mfma_f32_16x16x32_bf16 {v(Y+4*j,4)}, {v(FI,4)}, {v(BD+8*j+4,4)}, {v(Y+4*j,4)}')
    for i in range(4):
        for j in range(4): k(f'v_mov_b32 {v(PI+4*i+j)}, {v(Y+4*j+i)}')
        k(f'ds_write_b128 {v(aY)}, {v(PI+4*i,4)} offset:{64*i}')
    for c in range(2, 5): k(f'ds_read_b128 {v(CK+8*c,4)}, {v(aC)} offset:{2048*c}\nds_read_b128 {v(CK+8*c+4,4)}, {v(aC)} offset:{2048*c+16}')
    k(f'''s_mul_i32 {s(st)}, {s(sw)}, {2*YS}
    v_add_u32 {v(vt2)}, {s(st)}, {v(vt)}
    s_waitcnt lgkmcnt(0)
    s_barrier''')
    YR = AZ
    for r in range(2): k(f'ds_read_b128 {v(YR+8*r,4)}, {v(vt2)} offset:{YS*r}\nds_read_b128 {v(YR+8*r+4,4)}, {v(vt2)} offset:{YS*r+16}')
    S = PR
    for r in range(2):
        k(f's_waitcnt lgkmcnt({2-2*r})')
        for e in range(8):
            x1 = XF + 8 * r + e
            k(f'v_fmac_f32 {v(x1)}, {v(CK+e)}, {v(YR+8*r+e)}')
            if e == 0: k(f'v_mul_f32 {v(S+2+r)}, {v(x1)}, {v(x1)}\nv_mul_f32 {v(S+4+r)}, {v(x1)}, {v(CK+8)}')
            else: k(f'v_fmac_f32 {v(S+2+r)}, {v(x1)}, {v(x1)}\nv_fmac_f32 {v(S+4+r)}, {v(x1)}, {v(CK+8+e)}')
            if e == 1: k(f'v_add_f32 {v(S+r)}, {v(x1-1)}, {v(x1)}')
            elif e > 1: k(f'v_add_f32 {v(S+r)}, {v(S+r)}, {v(x1)}')
    k(f'''v_permlane32_swap_b32 {v(S)}, {v(S+1)}
    v_permlane32_swap_b32 {v(S+2)}, {v(S+3)}
    v_permlane32_swap_b32 {v(S+4)}, {v(S+5)}
    v_add_f32 {v(S)}, {v(S)}, {v(S+1)}
    v_add_f32 {v(S+2)}, {v(S+2)}, {v(S+3)}
    v_add_f32 {v(S+4)}, {v(S+4)}, {v(S+5)}
    v_mov_b32 {v(S+5)}, {v(S+4)}
    v_permlane16_swap_b32 {v(S)}, {v(S+2)}
    v_permlane16_swap_b32 {v(S+4)}, {v(S+5)}
    v_add_f32 {v(S)}, {v(S)}, {v(S+2)}
    v_add_f32 {v(S+4)}, {v(S+4)}, {v(S+5)}''')
    for r in (8, 4, 2, 1):
        k(f'v_add_f32_dpp {v(S)}, {v(S)}, {v(S)} row_ror:{r} row_mask:0xf bank_mask:0xf\nv_add_f32_dpp {v(S+4)}, {v(S+4)}, {v(S+4)} row_ror:{r} row_mask:0xf bank_mask:0xf')
    k(f'v_mov_b32 {v(S+2)}, {v(S)}\nv_permlane16_swap_b32 {v(S)}, {v(S+2)}')
    ln_scalars(k, S, S + 2)
    sr = k.salloc(2); sm = k.salloc(2); sk = k.salloc(2); swin = k.salloc()
    k(f'''v_mul_f32 {v(S+4)}, {v(S+4)}, {v(S+2)}
    v_ashrrev_i32 {v(vt)}, 31, {v(S+4)}
    v_or_b32 {v(vt)}, 0x80000000, {v(vt)}
    v_xor_b32 {v(vt)}, {v(vt)}, {v(S+4)}
    v_and_b32 {v(vt)}, 0xfffff800, {v(vt)}
    s_lshl_b32 {s(st)}, {s(sw)}, 7
    s_add_u32 {s(st)}, {s(st)}, {s(st0)}
    s_sub_u32 {s(st)}, 2047, {s(st)}
    v_and_b32 {v(vt2)}, 32, {v(vl)}
    v_lshlrev_b32 {v(vt2)}, 1, {v(vt2)}
    v_sub_u32 {v(vt2)}, {s(st)}, {v(vt2)}
    v_or_b32 {v(vt)}, {v(vt)}, {v(vt2)}
    v_mov_b32 {v(vt2)}, {MISC}
    s_mov_b32 exec_lo, 1
    s_mov_b32 exec_hi, 1
    ds_max_u32 {v(vt2)}, {v(vt)}
    s_mov_b64 exec, -1
    v_readlane_b32 {s(sr)}, {v(S+2)}, 0
    v_readlane_b32 {s(sr+1)}, {v(S+2)}, 32
    v_readlane_b32 {s(sm)}, {v(S)}, 0
    v_readlane_b32 {s(sm+1)}, {v(S)}, 32
    v_readlane_b32 {s(sk)}, {v(vt)}, 0
    v_readlane_b32 {s(sk+1)}, {v(vt)}, 32
    s_waitcnt lgkmcnt(0)
    s_barrier
    ds_read_b64 {v(S+6,2)}, {v(vt2)}''')
    H = AZ; O = AZ + 16
    def rowcalc(r):
        for e in range(8):
            k(f'''v_mul_f32 {v(PI+e)}, {s(sr+r)}, {v(CK+16+e)}
            v_fma_f32 {v(PI+8+e)}, -{s(sm+r)}, {v(CK+16+e)}, {v(CK+24+e)}
            v_fma_f32 {v(H+8*r+e)}, {v(XF+8*r+e)}, {v(PI+e)}, {v(PI+8+e)}
            v_fma_f32 {v(O+8*r+e)}, {v(CK+32+e)}, {v(H+8*r+e)}, {v(XF+8*r+e)}''')
    rowcalc(0); rowcalc(1)
    k(f's_waitcnt lgkmcnt(0)\nv_readfirstlane_b32 {s(swin)}, {v(S+6)}')
    Lnw = k.label('nw'); Lr1 = k.label('r1'); Lpub = k.label('pub')
    k(f'''s_cmp_eq_u32 {s(swin)}, {s(sk+1)}
    s_cbranch_scc1 {Lr1}
    s_cmp_lg_u32 {s(swin)}, {s(sk)}
    s_cbranch_scc1 {Lnw}
    v_readlane_b32 {s(st2)}, {v(S+4)}, 0
    s_branch {Lpub}
    {Lr1}:
    v_readlane_b32 {s(st2)}, {v(S+4)}, 32''')
    G_ = CA; G2 = CK
    for e in range(8): k(f'v_mov_b32 {v(PI+e)}, {v(H+8+e)}\nv_mov_b32 {v(PI+8+e)}, {v(O+8+e)}')
    Lp2 = k.label('p2')
    k(f's_branch {Lp2}\n{Lpub}:')
    for e in range(8): k(f'v_mov_b32 {v(PI+e)}, {v(H+e)}\nv_mov_b32 {v(PI+8+e)}, {v(O+e)}')
    k(f'{Lp2}:')
    k(f'''v_mov_b32 {v(G_)}, {s(swin)}
    v_mov_b32 {v(G_+1)}, {v(vtag)}
    v_lshlrev_b32 {v(vt)}, 10, {v(vl)}
    s_lshl_b32 {s(st)}, s2, 3
    s_add_u32 {s(st)}, {s(st)}, {KEYS}
    s_bfm_b64 exec, {RK}, 0
    buffer_store_dwordx2 {v(G_,2)}, {v(vt)}, {s(rws,4)}, {s(st)} offen sc1
    s_mov_b64 exec, -1
    s_mul_i32 {s(so)}, s2, {SLS}
    s_add_u32 {s(so)}, {s(so)}, {SLOT}
    v_lshlrev_b32 {v(vt)}, 1, {v(vxo)}''')
    for q in range(4): k(f'v_cvt_pk_bf16_f32 {v(G_+4+2*q)}, {v(PI+2*q)}, {v(PI+2*q+1)}\nv_mov_b32 {v(G_+5+2*q)}, {v(vtag)}')
    k(f'buffer_store_dwordx4 {v(G_+4,4)}, {v(vt)}, {s(rws,4)}, {s(so)} offen sc1\nbuffer_store_dwordx4 {v(G_+8,4)}, {v(vt)}, {s(rws,4)}, {s(so)} offen offset:16 sc1')
    for e in range(8): k(f'v_mov_b32 {v(G2+2*e)}, {v(PI+8+e)}\nv_mov_b32 {v(G2+2*e+1)}, {v(vtag)}')
    k(f'v_lshlrev_b32 {v(vt)}, 2, {v(vxo)}\nv_cmp_gt_u32 vcc, 56, {v(vl)}\nv_cndmask_b32 {v(vt)}, {v(vxo)}, {v(vt)}, vcc')
    for q in range(4): k(f'buffer_store_dwordx4 {v(G2+4*q,4)}, {v(vt)}, {s(rws,4)}, {s(so)} offen offset:{2048+16*q} sc1')
    k(f'''v_add_f32 {v(G_)}, {s(st2)}, {v(S+7)}
    v_mov_b32 {v(vt)}, 6144
    s_mov_b64 exec, 1
    buffer_store_dwordx2 {v(G_,2)}, {v(vt)}, {s(rws,4)}, {s(so)} offen sc1
    s_mov_b64 exec, -1
    s_mov_b32 {s(swin)}, -1
    {Lnw}:''')
    k.stamp(8)
    for r in range(2):
        for q in range(4): k(f'v_cvt_pk_bf16_f32 {v(H+4*r+q)}, {v(O+8*r+2*q)}, {v(O+8*r+2*q+1)}')
    k(f'''s_mov_b32 {s(st)}, 57344
    buffer_store_dwordx4 {v(H,4)}, {v(vout)}, {s(r3,4)}, 0 offen sc1
    buffer_store_dwordx4 {v(H+4,4)}, {v(vout)}, {s(r3,4)}, {s(st)} offen sc1
    s_cmp_lg_u32 {s(swin)}, -1
    s_cbranch_scc1 {Lend}
    s_waitcnt vmcnt(0)
    v_mov_b32 {v(vt)}, 6272
    s_mov_b64 exec, 1
    buffer_store_dword {v(vtag)}, {v(vt)}, {s(rws,4)}, {s(so)} offen sc1
    s_branch {Lend}''')
    def keypoll(KR):
        k(f'''s_and_b32 {s(st)}, {s(sa)}, {RK-1}
        s_lshl_b32 {s(sflag)}, {s(st)}, 10
        s_add_u32 {s(sflag)}, {s(sflag)}, {KEYS}
        v_lshlrev_b32 {v(vt)}, 4, {v(vl)}''')
        poll(f'buffer_load_dwordx4 {v(KR,4)}, {v(vt)}, {s(rws,4)}, {s(sflag)} offen sc1', [KR+1, KR+3], name='pk')
        k(f'v_max_u32 {v(vt)}, {v(KR)}, {v(KR+2)}')
        for r in (8, 4, 2, 1): k(f'v_max_u32_dpp {v(vt)}, {v(vt)}, {v(vt)} row_ror:{r} row_mask:0xf bank_mask:0xf')
        k(f'''v_readlane_b32 {s(sj)}, {v(vt)}, 0
        v_readlane_b32 {s(st)}, {v(vt)}, 16
        s_max_u32 {s(sj)}, {s(sj)}, {s(st)}
        v_readlane_b32 {s(st)}, {v(vt)}, 32
        s_max_u32 {s(sj)}, {s(sj)}, {s(st)}
        v_readlane_b32 {s(st)}, {v(vt)}, 48
        s_max_u32 {s(sj)}, {s(sj)}, {s(st)}
        s_and_b32 {s(sj)}, {s(sj)}, 2047
        s_sub_u32 {s(sj)}, 2047, {s(sj)}''')
        k(f'''s_and_b32 {s(st)}, {s(sj)}, 63
        s_sub_u32 {s(st2)}, 64, {s(st)}
        s_and_b32 {s(st2)}, {s(st2)}, 31
        s_cmp_ge_u32 {s(st)}, 32
        s_cselect_b32 {s(st)}, {s(st2)}, {s(st)}
        s_cselect_b32 {s(st2)}, 16, 0
        s_and_b32 {s(ss2)}, {s(st)}, 7
        s_add_u32 {s(ss2)}, {s(ss2)}, {s(st2)}
        s_lshr_b32 {s(st)}, {s(st)}, 3
        s_lshl_b32 {s(st)}, {s(st)}, 5
        s_add_u32 {s(ss2)}, {s(ss2)}, {s(st)}
        s_lshr_b32 {s(st)}, {s(sj)}, 10
        s_lshl_b32 {s(st)}, {s(st)}, 3
        s_add_u32 {s(ss2)}, {s(ss2)}, {s(st)}
        s_mul_i32 {s(ss2)}, {s(ss2)}, {SLS}
        s_add_u32 {s(ss2)}, {s(ss2)}, {SLOT}''')
    def gather_mfma(AFR, GR, ACC, sbase, scratch):
        k(f'v_lshlrev_b32 {v(vt)}, 4, {v(vl)}\ns_lshl_b32 {s(st)}, {s(sw)}, 9\ns_add_u32 {s(st)}, {s(st)}, {scratch}\nv_lshl_add_u32 {v(vo)}, {v(vl)}, 3, {s(st)}\nv_lshl_add_u32 {v(GR+6)}, {v(vg)}, 4, {s(st)}')
        poll(f'buffer_load_dwordx4 {v(GR,4)}, {v(vt)}, {s(rws,4)}, {s(sbase)} offen sc1', [GR+1, GR+3], 56, name='pg')
        k(f'v_mov_b32 {v(GR+1)}, {v(GR+2)}\nds_write_b64 {v(vo)}, {v(GR,2)}\ns_waitcnt lgkmcnt(0)')
        for i in range(7): k(f'ds_read_b128 {v(GR+8+4*i,4)}, {v(GR+6)} offset:{64*i}')
        for i in range(7):
            k(f's_waitcnt lgkmcnt({6-i})')
            k(f'v_mfma_f32_16x16x32_bf16 {v(ACC,4)}, {v(AFR+4*i,4)}, {v(GR+8+4*i,4)}, {"0" if i == 0 else v(ACC,4)}')
    k.nv = VBASE
    AFR = k.valloc(28, 4); GR = k.valloc(36, 4); ACC = k.valloc(4, 4); E = k.valloc(8, 4)
    SCR = 57344; RED = SCR + 4096
    k(f'{LG}:')
    sg = smir
    k(f'''s_mul_i32 {s(sg)}, {s(sb)}, 7
    s_add_u32 {s(sg)}, {s(sg)}, {s(sa)}
    s_sub_u32 {s(sg)}, {s(sg)}, 16
    s_bitcmp1_b32 {s(sw)}, 2
    s_cselect_b32 {s(r3)}, {s(pw+4)}, {s(pw+2)}
    s_cselect_b32 {s(r3+1)}, {s(pw+5)}, {s(pw+3)}
    s_mov_b32 {s(r3+2)}, {448*3584}
    s_mov_b32 {s(r3+3)}, 0x00020000
    v_lshrrev_b32 {v(vt)}, 2, {v(vl)}
    v_mul_u32_u24 {v(vo)}, 3584, {v(vt)}
    v_and_b32 {v(vt)}, 3, {v(vl)}
    v_lshl_add_u32 {v(vo)}, {v(vt)}, 4, {v(vo)}
    s_and_b32 {s(st)}, {s(sw)}, 3
    s_mul_i32 {s(so)}, {s(st)}, {112*3584}
    s_lshl_b32 {s(st2)}, {s(sg)}, 6
    s_add_u32 {s(so)}, {s(so)}, {s(st2)}
    s_mul_i32 {s(st)}, {s(sw)}, 7168''')
    for i in range(7):
        k(f's_mov_b32 m0, {s(st)}\ns_add_u32 {s(st)}, {s(st)}, 1024')
        k(f'buffer_load_dwordx4 {v(vo)}, {s(r3,4)}, {s(so)} offen lds\ns_add_u32 {s(so)}, {s(so)}, {16*3584}')
    k(f'''v_lshlrev_b32 {v(vt)}, 9, {v(vg)}
    v_bfe_u32 {v(vt2)}, {v(vl)}, 2, 2
    v_lshl_add_u32 {v(vt)}, {v(vt2)}, 6, {v(vt)}
    v_and_b32 {v(vt2)}, 3, {v(vl)}
    v_lshl_add_u32 {v(vt)}, {v(vt2)}, 3, {v(vt)}
    s_and_b32 {s(st)}, {s(sw)}, 1
    s_mul_i32 {s(st)}, {s(st)}, 28672
    s_bfe_u32 {s(st2)}, {s(sw)}, 0x10001
    s_lshl_b32 {s(st2)}, {s(st2)}, 5
    s_add_u32 {s(st)}, {s(st)}, {s(st2)}
    s_lshr_b32 {s(st2)}, {s(sw)}, 2
    s_mul_i32 {s(st2)}, {s(st2)}, {224*64}
    s_add_u32 {s(st)}, {s(st)}, {s(st2)}
    v_add_u32 {v(vt)}, {s(st)}, {v(vt)}
    s_waitcnt vmcnt(0)
    s_barrier''')
    for i in range(7):
        for hh in range(2): k(f'ds_read_b64_tr_b16 {v(AFR+4*i+2*hh,2)}, {v(vt)} offset:{2048*i+256*hh}')
    Lg1 = k.label('g1')
    k(f's_cmp_lg_u32 {s(sw)}, 0\ns_cbranch_scc1 {Lg1}')
    k.stamp(5)
    keypoll(GR)
    k(f'v_mov_b32 {v(vt)}, {RED}\nv_mov_b32 {v(vt2)}, {s(ss2)}\nds_write_b32 {v(vt)}, {v(vt2)}\n{Lg1}:\ns_waitcnt lgkmcnt(0)\ns_barrier')
    k(f'v_mov_b32 {v(vt)}, {RED}\nds_read_b32 {v(vt2)}, {v(vt)}\ns_lshr_b32 {s(st2)}, {s(sw)}, 2\ns_mul_i32 {s(st2)}, {s(st2)}, 896\ns_waitcnt lgkmcnt(0)\nv_readfirstlane_b32 {s(ss2)}, {v(vt2)}\ns_add_u32 {s(ss2)}, {s(ss2)}, {s(st2)}')
    k.stamp(6)
    gather_mfma(AFR, GR, ACC, ss2, SCR)
    k(f'''s_lshl_b32 {s(st)}, {s(sw)}, 6
    s_add_u32 {s(st)}, {s(st)}, {RED+64}
    v_lshl_add_u32 {v(vt)}, {v(vg)}, 4, {s(st)}
    s_mov_b32 exec_lo, 0x00010001
    s_mov_b32 exec_hi, 0x00010001
    ds_write_b128 {v(vt)}, {v(ACC,4)}
    s_mov_b64 exec, -1
    v_bfe_u32 {v(vt2)}, {v(vl)}, 4, 1
    v_lshlrev_b32 {v(vt2)}, 7, {v(vt2)}
    v_lshl_add_u32 {v(vt2)}, {v(vn)}, 2, {v(vt2)}
    s_waitcnt lgkmcnt(0)
    s_barrier
    s_cmp_lg_u32 {s(sw)}, 0
    s_cbranch_scc1 {Lend}
    ds_read_b32 {v(E)}, {v(vt2)} offset:{RED+64}
    ds_read_b32 {v(E+1)}, {v(vt2)} offset:{RED+64+256}
    ds_read_b32 {v(E+2)}, {v(vt2)} offset:{RED+64+64}
    ds_read_b32 {v(E+3)}, {v(vt2)} offset:{RED+64+64+256}
    v_lshlrev_b32 {v(vt)}, 2, {v(vl)}
    s_lshl_b32 {s(so)}, {s(sg)}, 7
    s_add_u32 {s(so)}, {s(so)}, {ACT}
    s_waitcnt lgkmcnt(0)
    v_add_f32 {v(E)}, {v(E)}, {v(E+1)}
    v_add_f32 {v(E+2)}, {v(E+2)}, {v(E+3)}''')
    rb1(k, E, E); rb1(k, E + 2, E + 2)
    k(f'''v_mul_f32 {v(E+1)}, 0xbfb8aa3b, {v(E)}
    v_exp_f32 {v(E+1)}, {v(E+1)}
    v_add_f32 {v(E+1)}, 1.0, {v(E+1)}
    v_rcp_f32 {v(E+1)}, {v(E+1)}
    v_mul_f32 {v(E)}, {v(E)}, {v(E+1)}''')
    rb1(k, E, E)
    k(f'''v_mul_f32 {v(E)}, {v(E)}, {v(E+2)}
    v_mov_b32 {v(E+5)}, {v(vtag)}
    v_mov_b32_dpp {v(E+1)}, {v(E)} quad_perm:[1,0,3,2] row_mask:0xf bank_mask:0xf
    v_cvt_pk_bf16_f32 {v(E+4)}, {v(E)}, {v(E+1)}
    s_mov_b32 exec_lo, 0x55555555
    s_mov_b32 exec_hi, 0
    buffer_store_dwordx2 {v(E+4,2)}, {v(vt)}, {s(rws,4)}, {s(so)} offen sc1''')
    k.stamp(7)
    k(f's_branch {Lend}')
    k(f'{LD}:')
    k(f'''s_cmp_eq_u32 {s(sb)}, 7
    s_cbranch_scc1 {Lend}
    s_lshl_b32 {s(sg)}, {s(sb)}, 2
    s_add_u32 {s(sg)}, {s(sg)}, {s(sa)}
    s_sub_u32 {s(sg)}, {s(sg)}, 23''')
    k.srd(r3, pw + 6, 1792 * 896); k.srd(r4, pout, 1835008)
    k(f'''v_lshrrev_b32 {v(vt)}, 1, {v(vl)}
    v_mul_u32_u24 {v(vo)}, 896, {v(vt)}
    v_and_b32 {v(vt)}, 1, {v(vl)}
    v_lshl_add_u32 {v(vo)}, {v(vt)}, 4, {v(vo)}
    s_mul_i32 {s(so)}, {s(sw)}, {224*896}
    s_lshl_b32 {s(st2)}, {s(sg)}, 5
    s_add_u32 {s(so)}, {s(so)}, {s(st2)}
    s_mul_i32 {s(st)}, {s(sw)}, 7168''')
    for i in range(7):
        k(f's_mov_b32 m0, {s(st)}\ns_add_u32 {s(st)}, {s(st)}, 1024')
        k(f'buffer_load_dwordx4 {v(vo)}, {s(r3,4)}, {s(so)} offen lds\ns_add_u32 {s(so)}, {s(so)}, {32*896}')
    k(f'''v_lshlrev_b32 {v(vt)}, 8, {v(vg)}
    v_and_b32 {v(vt2)}, 15, {v(vl)}
    v_lshl_add_u32 {v(vt)}, {v(vt2)}, 3, {v(vt)}
    s_mul_i32 {s(st)}, {s(sw)}, 7168
    v_add_u32 {v(vt)}, {s(st)}, {v(vt)}
    s_waitcnt vmcnt(0)''')
    for i in range(7):
        for hh in range(2): k(f'ds_read_b64_tr_b16 {v(AFR+4*i+2*hh,2)}, {v(vt)} offset:{1024*i+128*hh}')
    Ld1 = k.label('d1')
    k(f's_cmp_lg_u32 {s(sw)}, 0\ns_cbranch_scc1 {Ld1}')
    k.stamp(5)
    keypoll(GR)
    k(f'''v_lshlrev_b32 {v(vt)}, 3, {v(vn)}
    s_lshl_b32 {s(st)}, {s(sg)}, 7
    s_add_u32 {s(sflag)}, {s(ss2)}, {s(st)}
    s_lshl_b32 {s(st)}, {s(sg)}, 6
    s_add_u32 {s(so)}, {s(st)}, {MODV+5*1792}
    v_lshlrev_b32 {v(vo)}, 2, {v(vn)}
    v_mov_b32 {v(E+7)}, 0
    buffer_load_dword {v(E+6)}, {v(vo)}, {s(rws,4)}, {s(so)} offen sc1''')
    poll(f'''buffer_load_dwordx2 {v(E,2)}, {v(vt)}, {s(rws,4)}, {s(sflag)} offen offset:2048 sc1
    s_add_u32 {s(st)}, {s(ss2)}, 4096
    buffer_load_dwordx2 {v(E+2,2)}, {v(E+7)}, {s(rws,4)}, {s(st)} offen offset:2048 sc1''', [E+1, E+3], name='po')
    rb1(k, E + 2, E + 2)
    k(f'''v_mul_f32 {v(E+2)}, 0xbfb8aa3b, {v(E+2)}
    v_exp_f32 {v(E+2)}, {v(E+2)}
    v_add_f32 {v(E+2)}, 1.0, {v(E+2)}
    v_rcp_f32 {v(E+2)}, {v(E+2)}''')
    rb1(k, E + 2, E + 2)
    k(f's_add_u32 {s(sflag)}, {s(ss2)}, 6272')
    poll(f'buffer_load_dword {v(E+3)}, {v(E+7)}, {s(rws,4)}, {s(sflag)} offen sc1', [E+3], name='pf')
    k(f'{Ld1}:')
    k(f's_mul_i32 {s(sflag)}, {s(sw)}, 896\ns_add_u32 {s(sflag)}, {s(sflag)}, {ACT}')
    k.stamp(6)
    gather_mfma(AFR, GR, ACC, sflag, SCR)
    k(f'''s_lshl_b32 {s(st)}, {s(sw)}, 6
    s_add_u32 {s(st)}, {s(st)}, {RED+64}
    v_lshl_add_u32 {v(vt)}, {v(vg)}, 4, {s(st)}
    s_mov_b32 exec_lo, 0x00010001
    s_mov_b32 exec_hi, 0x00010001
    ds_write_b128 {v(vt)}, {v(ACC,4)}
    s_mov_b64 exec, -1
    v_lshlrev_b32 {v(vt2)}, 2, {v(vn)}
    s_waitcnt lgkmcnt(0)
    s_barrier
    s_cmp_lg_u32 {s(sw)}, 0
    s_cbranch_scc1 {Lend}''')
    for i in range(8): k(f'ds_read_b32 {v(GR+i)}, {v(vt2)} offset:{RED+64+64*i}')
    k(f'''s_mul_i32 {s(so)}, {s(sj)}, 896
    s_lshl_b32 {s(st)}, {s(sg)}, 5
    s_add_u32 {s(so)}, {s(so)}, {s(st)}
    v_lshlrev_b32 {v(vt)}, 1, {v(vn)}
    s_waitcnt lgkmcnt(0)''')
    for i in (1, 3, 5, 7): k(f'v_add_f32 {v(GR+i-1)}, {v(GR+i-1)}, {v(GR+i)}')
    k(f'v_add_f32 {v(GR)}, {v(GR)}, {v(GR+2)}\nv_add_f32 {v(GR+4)}, {v(GR+4)}, {v(GR+6)}\nv_add_f32 {v(GR)}, {v(GR)}, {v(GR+4)}')
    rb1(k, GR, GR); k(f'v_mul_f32 {v(GR)}, {v(GR)}, {v(E+2)}'); rb1(k, GR, GR)
    k(f'''v_fma_f32 {v(GR)}, {v(GR)}, {v(E+6)}, {v(E)}
    v_cvt_pk_bf16_f32 {v(GR)}, {v(GR)}, {v(GR)}
    s_bfm_b64 exec, 16, 0
    buffer_store_short {v(GR)}, {v(vt)}, {s(r4,4)}, {s(so)} offen sc1
    s_cmp_lg_u32 {s(sg)}, 0
    s_cbranch_scc1 {Lend}
    s_mov_b64 exec, 1
    v_mov_b32 {v(vt)}, {NONCE}
    buffer_store_dword {v(vtag)}, {v(vt)}, {s(rws,4)}, 0 offen sc1''')
    k.stamp(7)
    k(f's_branch {Lend}')
    k.nv = VBASE
    X = k.valloc(28, 4); C = k.valloc(8); T = k.valloc(8); A = k.valloc(8)
    sm_ = ss2; Lmt = k.label('mt')
    k(f'{Lmod}:')
    k(f'''s_sub_u32 {s(sm_)}, s2, 224
    v_lshrrev_b32 {v(vt)}, 3, v0
    v_mul_u32_u24 {v(vo)}, 5376, {v(vt)}
    v_and_b32 {v(vt2)}, 7, v0
    v_lshl_add_u32 {v(vo)}, {v(vt2)}, 4, {v(vo)}
    v_lshlrev_b32 {v(vt3)}, 1, {v(vt)}
    s_waitcnt lgkmcnt(0)''')
    k.srd(r3, pc, 896); k.srd(r4, pc + 2, 448 * 5376); k.srd(rws, pws, WSB)
    for i in range(7): k(f'buffer_load_ushort {v(C+i)}, {v(vt3)}, {s(r3,4)}, 0 offen offset:{128*i}')
    nonce(); k(f's_load_dword {s(stag)}, {s(st,2)}, 0')
    k(f's_lshl_b32 {s(so)}, {s(sm_)}, 7')
    for i in range(7):
        k(f'buffer_load_dwordx4 {v(X+4*i,4)}, {v(vo)}, {s(r4,4)}, {s(so)} offen')
        if i < 6: k(f's_add_u32 {s(so)}, {s(so)}, {64*5376}')
    k('s_waitcnt vmcnt(7)')
    for i in range(7): k(f'v_lshlrev_b32 {v(C+i)}, 16, {v(C+i)}\nv_mul_f32 {v(T+i)}, 0xbfb8aa3b, {v(C+i)}\nv_exp_f32 {v(T+i)}, {v(T+i)}')
    for i in range(7): k(f'v_add_f32 {v(T+i)}, 1.0, {v(T+i)}\nv_rcp_f32 {v(T+i)}, {v(T+i)}')
    for i in range(7): k(f'v_mul_f32 {v(C+i)}, {v(C+i)}, {v(T+i)}'); rb1(k, C + i, C + i)
    k('s_waitcnt lgkmcnt(0)'); tagcalc()
    aM = k.valloc()
    k(f'''v_lshrrev_b32 {v(vt)}, 6, v0
    v_lshlrev_b32 {v(aM)}, 8, {v(vt)}
    v_and_b32 {v(vt2)}, 7, v0
    v_lshl_add_u32 {v(aM)}, {v(vt2)}, 5, {v(aM)}
    v_bfe_u32 {v(vt2)}, v0, 4, 1
    v_lshl_add_u32 {v(aM)}, {v(vt2)}, 3, {v(aM)}
    v_bfe_u32 {v(vt2)}, v0, 5, 1
    v_lshl_add_u32 {v(aM)}, {v(vt2)}, 2, {v(aM)}
    {Lmt}:''')
    for i in range(7):
        k(f's_waitcnt vmcnt({6-i})')
        for q in range(4):
            k(f'v_lshlrev_b32 {v(T)}, 16, {v(X+4*i+q)}\nv_and_b32 {v(T+1)}, 0xffff0000, {v(X+4*i+q)}')
            if i == 0: k(f'v_mul_f32 {v(A+2*q)}, {v(T)}, {v(C)}\nv_mul_f32 {v(A+2*q+1)}, {v(T+1)}, {v(C)}')
            else: k(f'v_fmac_f32 {v(A+2*q)}, {v(T)}, {v(C+i)}\nv_fmac_f32 {v(A+2*q+1)}, {v(T+1)}, {v(C+i)}')
    Lnp = k.label('np')
    k(f's_sub_u32 {s(st)}, {s(sm_)}, 22\ns_cmp_ge_u32 {s(st)}, 10\ns_cbranch_scc1 {Lnp}\ns_add_u32 {s(so)}, {s(sm_)}, 10\ns_lshl_b32 {s(so)}, {s(so)}, 7')
    for i in range(7):
        k(f'buffer_load_dwordx4 {v(X+4*i,4)}, {v(vo)}, {s(r4,4)}, {s(so)} offen')
        if i < 6: k(f's_add_u32 {s(so)}, {s(so)}, {64*5376}')
    k(f'{Lnp}:')
    for q in range(4): k(f'v_permlane32_swap_b32 {v(A+2*q)}, {v(A+2*q+1)}')
    for q in range(4): k(f'v_add_f32 {v(A+2*q)}, {v(A+2*q)}, {v(A+2*q+1)}')
    for p in range(2): k(f'v_permlane16_swap_b32 {v(A+4*p)}, {v(A+4*p+2)}')
    for p in range(2): k(f'v_add_f32 {v(A+4*p)}, {v(A+4*p)}, {v(A+4*p+2)}')
    for p in range(2): k(f'v_add_f32_dpp {v(A+4*p)}, {v(A+4*p)}, {v(A+4*p)} row_ror:8 row_mask:0xf bank_mask:0xf')
    Lmn = k.label('mn')
    k(f'''ds_write_b32 {v(aM)}, {v(A)}
    ds_write_b32 {v(aM)}, {v(A+4)} offset:16
    s_waitcnt lgkmcnt(0)
    s_barrier
    s_cmp_lg_u32 {s(sw)}, 0
    s_cbranch_scc1 {Lmn}
    v_lshlrev_b32 {v(vt)}, 2, v0''')
    for i in range(8): k(f'ds_read_b32 {v(T+i)}, {v(vt)} offset:{256*i}')
    k(f'''s_mul_i32 {s(st2)}, {s(sm_)}, 37
    s_lshr_b32 {s(st2)}, {s(st2)}, 8
    s_lshl_b32 {s(sj)}, {s(sm_)}, 8
    s_add_u32 {s(sj)}, {s(sj)}, {MODV}
    s_add_u32 {s(sflag)}, {s(sm_)}, 224
    s_waitcnt lgkmcnt(0)''')
    for i in range(1, 8): k(f'v_add_f32 {v(T)}, {v(T)}, {v(T+i)}')
    rb1(k, T, T); k(f'v_add_f32 {v(T+1)}, 1.0, {v(T)}'); rb1(k, T + 1, T + 1)
    k(f'''v_mul_f32 {v(T+2)}, 0x45000000, {v(T)}
    s_cmp_eq_u32 {s(st2)}, 0
    s_cselect_b64 vcc, -1, 0
    v_cndmask_b32 {v(T)}, {v(T)}, {v(T+2)}, vcc
    s_cmp_eq_u32 {s(st2)}, 1
    s_cselect_b64 vcc, -1, 0
    v_cndmask_b32 {v(T)}, {v(T)}, {v(T+1)}, vcc
    s_cmp_eq_u32 {s(st2)}, 4
    s_cselect_b64 vcc, -1, 0
    v_cndmask_b32 {v(T)}, {v(T)}, {v(T+1)}, vcc
    buffer_store_dword {v(T)}, {v(vt)}, {s(rws,4)}, {s(sj)} offen sc1
    s_waitcnt vmcnt(0)''')
    sendflag()
    k(f'''{Lmn}:
    s_sub_u32 {s(st)}, {s(sm_)}, 22
    s_cmp_ge_u32 {s(st)}, 10
    s_cbranch_scc1 {Lend}
    s_add_u32 {s(sm_)}, {s(sm_)}, 10
    s_barrier
    s_branch {Lmt}''')
    k(f'{Lend}:'); k.dump(); k('s_endpgm')
    return k
if __name__ == '__main__':
    K.diag = '--diag' in sys.argv
    k = gen()
    k.lines, n = hazard.fix(k.lines); print(k.name, 'vgpr', k.vmax, 'sgpr', k.ns, 'nops', n, 'lines', len(k.lines), 'lds', LDS)
    open(sys.argv[1], 'w').write(emit([k], [(NAME, 256, 512, LDS)]))
```

```python
import sys, struct
from asmlib import *
import hazard
NAME = 'adaLN_cond__spectral_fnet__moe_arch_mod__prompt_kernel'
MODV = 0x1C0000; NONCE = 0x1C8000; FLAG1 = 0x280000; FRS = 0x6000; KEYS = 0x2B0000; KRS = 0x4000; ACT = 0x1F0000; ARS = 0x2000; SLOT = 0x200000; SLS = 4096
WSB = 0x300000
HUGE = 0x3ff00000
OPT = dict(ST=0, FS=32, KS=32, SLEEP=1, HELP=1, EARLY=3, LATE=4, WTRIG=2, MDELAY=0, PD=1, TOUCHW=0, PREP=0, FW=0)
ZS = 928
UB = 64 * ZS; CB_ = UB + 32768; CAB = CB_ + 5 * 2048; MISC = CAB + 3584; XB = MISC + 64
LDS = XB + 16 * 896 + 128
XS = 288
def fl(x): return '0x%08x' % struct.unpack('<I', struct.pack('<f', x))[0]
def rb1(k, dst, src): k(f'v_cvt_pk_bf16_f32 {v(dst)}, {v(src)}, {v(src)}\nv_and_b32 {v(dst)}, 0xffff0000, {v(dst)}')
def ln_scalars(k, vm, vr):
    k(f'''v_mul_f32 {v(vm)}, {fl(1/448)}, {v(vm)}
    v_mul_f32 {v(vr)}, {fl(1/448)}, {v(vr)}
    v_fma_f32 {v(vr)}, -{v(vm)}, {v(vm)}, {v(vr)}
    v_max_f32 {v(vr)}, 0, {v(vr)}
    v_add_f32 {v(vr)}, 0x3727c5ac, {v(vr)}
    v_rsq_f32 {v(vr)}, {v(vr)}
    v_mul_f32 {v(vm)}, {v(vm)}, {v(vr)}''')

def gen():
    FS = OPT['FS']; KS = OPT['KS']; SLEEP = OPT['SLEEP']
    k = K(NAME); k.ns = 3; k.nv = 1
    def stamp(i, mode):
        if OPT['ST'] in mode: k.stamp(i)
    Lend = k.label('end'); Lmod = k.label('mod'); LG = k.label('G'); LD = k.label('D'); Lsp = k.label('sp')
    k.stamp(0, True); k.stamp(1)
    px = k.salloc(2); pws = k.salloc(2); pw = k.salloc(8); pc = k.salloc(4); pout = k.salloc(2)
    stag = k.salloc(); sw = k.salloc(); sa = k.salloc(); sb = k.salloc(); st = k.salloc(); st2 = k.salloc(); so = k.salloc(); scnt = k.salloc()
    sj = k.salloc(); ss2 = k.salloc(); sones = k.salloc(); sflag = k.salloc()
    rx = k.salloc(4); rws = k.salloc(4); r3 = k.salloc(4); r4 = k.salloc(4)
    vl = k.valloc(); vg = k.valloc(); vn = k.valloc(); vt = k.valloc(); vt2 = k.valloc(); vo = k.valloc(); vtag = k.valloc(); vt3 = k.valloc()
    VBASE = k.nv
    k(f'''s_load_dwordx2 {s(px,2)}, s[0:1], 0
    s_load_dwordx4 {s(pc,4)}, s[0:1], 80
    s_load_dwordx2 {s(pws,2)}, s[0:1], 112
    s_load_dwordx8 {s(pw,8)}, s[0:1], 48
    s_load_dwordx2 {s(pout,2)}, s[0:1], 96
    v_lshrrev_b32 {v(vt)}, 6, v0
    v_and_b32 {v(vl)}, 63, v0
    v_readfirstlane_b32 {s(sw)}, {v(vt)}
    v_lshrrev_b32 {v(vg)}, 4, {v(vl)}
    v_and_b32 {v(vn)}, 15, {v(vl)}
    s_lshr_b32 {s(sa)}, s2, 3
    s_and_b32 {s(sb)}, s2, 7
    s_cmp_lt_u32 {s(sa)}, 16
    s_cbranch_scc1 {k.name}_S1
    s_cmp_ge_u32 s2, 256
    s_cbranch_scc1 {Lend}
    s_cmp_lt_u32 {s(sa)}, 23
    s_cbranch_scc1 {LG}
    s_sub_u32 {s(ss2)}, s2, 216
    s_cmp_ge_u32 {s(sa)}, 27
    s_cbranch_scc1 {Lmod}
    s_cmp_lg_u32 {s(sb)}, 7
    s_cbranch_scc1 {LD}
    s_add_u32 {s(ss2)}, {s(sa)}, 17
    s_cmp_ge_u32 {s(sa)}, 25
    s_cbranch_scc1 {Lsp}''')
    def check(check_regs):
        r0 = check_regs[0]
        if len(check_regs) == 1: k(f'v_cmp_ne_u32 vcc, {s(stag)}, {v(r0)}')
        else:
            k(f'v_xor_b32 {v(vt3)}, {s(stag)}, {v(r0)}')
            for r in check_regs[1:]: k(f'v_xor_b32 {v(vt2)}, {s(stag)}, {v(r)}\nv_or_b32 {v(vt3)}, {v(vt3)}, {v(vt2)}')
            k(f'v_cmp_ne_u32 vcc, 0, {v(vt3)}')
    def poll(load, check_regs, nlanes=64, name='poll', wait='vmcnt(0)'):
        Lp = k.label(name); Ld = k.label(name + 'd')
        k(f's_mov_b32 {s(scnt)}, 0')
        if nlanes < 64: k(f's_bfm_b64 exec, {nlanes}, 0')
        k(f'{Lp}:'); k(load); k(f's_add_u32 {s(scnt)}, {s(scnt)}, 1\ns_waitcnt {wait}')
        check(check_regs)
        k(f's_cbranch_vccz {Ld}')
        if SLEEP: k(f's_sleep {SLEEP}')
        k(f's_cmp_lt_u32 {s(scnt)}, 0x200000\ns_cbranch_scc1 {Lp}\n{Ld}:')
        if nlanes < 64: k('s_mov_b64 exec, -1')
    def ppoll(loadf, nld, regsf, depth, nlanes=64, name='pp'):
        if depth == 1: return poll(loadf(0), regsf(0), nlanes, name)
        Lp = k.label(name); Ld = k.label(name + 'd')
        k(f's_mov_b32 {s(scnt)}, 0')
        if nlanes < 64: k(f's_bfm_b64 exec, {nlanes}, 0')
        for i in range(depth - 1): k(loadf(i)); k('s_sleep 1')
        k(f'{Lp}:')
        for i in range(depth):
            k(loadf((i + depth - 1) % depth)); k(f's_waitcnt vmcnt({nld*(depth-1)})'); check(regsf(i)); k(f's_cbranch_vccz {Ld}\ns_sleep 1')
        k(f's_add_u32 {s(scnt)}, {s(scnt)}, 1\ns_cmp_lt_u32 {s(scnt)}, 0x100000\ns_cbranch_scc1 {Lp}\n{Ld}:')
        if nlanes < 64: k('s_mov_b64 exec, -1')
    assert st2 == st + 1 and st % 2 == 0
    def nonce(): k(f's_add_u32 {s(st)}, {s(pws)}, {NONCE}\ns_addc_u32 {s(st2)}, {s(pws+1)}, 0\ns_load_dword {s(stag)}, {s(st,2)}, 0')
    def tagcalc(): k(f's_mul_i32 {s(stag)}, {s(stag)}, 0x9E3779B1\ns_add_u32 {s(stag)}, {s(stag)}, 0x7F4A7C15\nv_mov_b32 {v(vtag)}, {s(stag)}')
    def flagprep(vf): k(f's_mul_i32 {s(sflag)}, {s(sflag)}, {FS}\ns_add_u32 {s(sflag)}, {s(sflag)}, {FLAG1}\nv_mul_u32_u24 {v(vf)}, {FRS}, {v(vl)}')
    def sendflag(vf): k(f's_mov_b64 exec, 0xff\nbuffer_store_dword {v(vtag)}, {v(vf)}, {s(rws,4)}, {s(sflag)} offen sc1\ns_mov_b64 exec, -1')
    X = k.valloc(28, 4); C = k.valloc(8); T = k.valloc(8); A = k.valloc(8); aM = k.valloc(); vf = k.valloc()
    sm_ = ss2; sadd = sj; smul = sones
    k(f'{Lmod}:')
    k(f'''s_mul_i32 {s(st)}, {s(sw)}, 56
    v_lshrrev_b32 {v(vt)}, 3, {v(vl)}
    v_add_u32 {v(vt2)}, {s(st)}, {v(vt)}
    v_mul_u32_u24 {v(vo)}, 5376, {v(vt2)}
    v_and_b32 {v(vt2)}, 7, v0
    v_lshl_add_u32 {v(vo)}, {v(vt2)}, 4, {v(vo)}
    v_add_u32 {v(vt3)}, {s(st)}, {v(vl)}
    v_lshlrev_b32 {v(vt3)}, 1, {v(vt3)}
    s_lshl_b32 {s(so)}, {s(sm_)}, 7
    s_waitcnt lgkmcnt(0)''')
    k.srd(r3, pc, 896); k.srd(r4, pc + 2, 448 * 5376)
    if OPT['MDELAY'] & 1: nonce(); k('s_waitcnt lgkmcnt(0)')
    k(f'buffer_load_ushort {v(C+7)}, {v(vt3)}, {s(r3,4)}, 0 offen')
    for i in range(7):
        k(f'buffer_load_dwordx4 {v(X+4*i,4)}, {v(vo)}, {s(r4,4)}, {s(so)} offen')
        if i < 6: k(f's_add_u32 {s(so)}, {s(so)}, {8*5376}')
    if not OPT['MDELAY'] & 1: nonce()
    k.srd(rws, pws, WSB)
    k.stamp(2)
    k(f'''v_lshlrev_b32 {v(vt3)}, 2, {v(vt)}
    v_lshrrev_b32 {v(vt)}, 6, v0
    v_lshlrev_b32 {v(aM)}, 8, {v(vt)}
    v_lshl_add_u32 {v(aM)}, {v(vt2)}, 5, {v(aM)}
    v_bfe_u32 {v(vt2)}, v0, 4, 1
    v_lshl_add_u32 {v(aM)}, {v(vt2)}, 3, {v(aM)}
    v_bfe_u32 {v(vt2)}, v0, 5, 1
    v_lshl_add_u32 {v(aM)}, {v(vt2)}, 2, {v(aM)}
    s_mul_i32 {s(st2)}, {s(sm_)}, 37
    s_lshr_b32 {s(st2)}, {s(st2)}, 8
    s_cmp_eq_u32 {s(st2)}, 0
    s_cselect_b32 {s(smul)}, 0x45000000, 1.0
    s_cmp_eq_u32 {s(st2)}, 1
    s_cselect_b32 {s(sadd)}, 1.0, 0
    s_cmp_eq_u32 {s(st2)}, 4
    s_cselect_b32 {s(sadd)}, 1.0, {s(sadd)}
    s_lshl_b32 {s(so)}, {s(sm_)}, 8
    s_add_u32 {s(so)}, {s(so)}, {MODV}
    s_add_u32 {s(sflag)}, {s(sm_)}, 128
    v_lshlrev_b32 {v(vo)}, 2, v0''')
    flagprep(vf)
    k(f'''s_waitcnt vmcnt(7)
    v_lshlrev_b32 {v(C+7)}, 16, {v(C+7)}
    v_mul_f32 {v(T)}, 0xbfb8aa3b, {v(C+7)}
    v_exp_f32 {v(T)}, {v(T)}
    v_add_f32 {v(T)}, 1.0, {v(T)}
    v_rcp_f32 {v(T)}, {v(T)}
    v_mul_f32 {v(C+7)}, {v(C+7)}, {v(T)}''')
    rb1(k, C + 7, C + 7)
    for i in range(7): k(f'ds_bpermute_b32 {v(C+i)}, {v(vt3)}, {v(C+7)} offset:{32*i}')
    k('s_waitcnt lgkmcnt(0)'); tagcalc()
    for i in range(7):
        k(f's_waitcnt vmcnt({6-i})')
        for q in range(4):
            k(f'v_lshlrev_b32 {v(T+2*(q&1))}, 16, {v(X+4*i+q)}\nv_and_b32 {v(T+2*(q&1)+1)}, 0xffff0000, {v(X+4*i+q)}')
            if i == 0: k(f'v_mul_f32 {v(A+2*q)}, {v(T+2*(q&1))}, {v(C)}\nv_mul_f32 {v(A+2*q+1)}, {v(T+2*(q&1)+1)}, {v(C)}')
            else: k(f'v_fmac_f32 {v(A+2*q)}, {v(T+2*(q&1))}, {v(C+i)}\nv_fmac_f32 {v(A+2*q+1)}, {v(T+2*(q&1)+1)}, {v(C+i)}')
    k.stamp(4)
    for q in range(4): k(f'v_permlane32_swap_b32 {v(A+2*q)}, {v(A+2*q+1)}')
    for q in range(4): k(f'v_add_f32 {v(A+2*q)}, {v(A+2*q)}, {v(A+2*q+1)}')
    for p in range(2): k(f'v_permlane16_swap_b32 {v(A+4*p)}, {v(A+4*p+2)}')
    for p in range(2): k(f'v_add_f32 {v(A+4*p)}, {v(A+4*p)}, {v(A+4*p+2)}')
    for p in range(2): k(f'v_add_f32_dpp {v(A+4*p)}, {v(A+4*p)}, {v(A+4*p)} row_ror:8 row_mask:0xf bank_mask:0xf')
    k(f'''ds_write_b32 {v(aM)}, {v(A)}
    ds_write_b32 {v(aM)}, {v(A+4)} offset:16
    s_waitcnt lgkmcnt(0)
    s_barrier
    s_cmp_lg_u32 {s(sw)}, 0
    s_cbranch_scc1 {Lend}''')
    for i in range(8): k(f'ds_read_b32 {v(T+i)}, {v(vo)} offset:{256*i}')
    for i in (1, 3, 5, 7): k(f's_waitcnt lgkmcnt({7-i})\nv_add_f32 {v(T+i-1)}, {v(T+i-1)}, {v(T+i)}')
    k(f'v_add_f32 {v(T)}, {v(T)}, {v(T+2)}\nv_add_f32 {v(T+4)}, {v(T+4)}, {v(T+6)}\nv_add_f32 {v(T)}, {v(T)}, {v(T+4)}')
    rb1(k, T, T); k(f'v_add_f32 {v(T)}, {s(sadd)}, {v(T)}'); rb1(k, T, T)
    k(f'''v_mul_f32 {v(T)}, {s(smul)}, {v(T)}
    buffer_store_dword {v(T)}, {v(vo)}, {s(rws,4)}, {s(so)} offen sc1
    s_waitcnt vmcnt(0)''')
    sendflag(vf)
    k(f's_branch {Lend}')
    k.nv = VBASE
    F0 = k.valloc(16, 4); FB = k.valloc(16, 4); AD = k.valloc(24, 4); XF = k.valloc(16, 4)
    vstep = k.valloc(); vbase = k.valloc(); aU = k.valloc(4); aV = k.valloc(2); aT = k.valloc(); vx0 = k.valloc(); vx1 = k.valloc(); aC = k.valloc(); aK = k.valloc()
    vh0 = k.valloc(); vh1 = k.valloc(); vki = k.valloc(); vkm = k.valloc(); vsb = k.valloc(); vf = k.valloc()
    AZ = k.valloc(32, 4); PR = k.valloc(16, 4); PI = k.valloc(16, 4); CA = k.valloc(16, 4); CK = k.valloc(40, 4); BP = k.valloc(16, 4)
    XR = BP
    Fre0 = F0; Fim0 = F0 + 4; Fre1 = F0 + 8; Fim1 = F0 + 12
    X = AZ; T = PR; BF = CA; a1 = CA + 8; a2 = CA + 10; vs1 = CA + 12; aW = CA + 13; aR = CA + 14; aZ = CA + 15; aT1 = CK; aT2 = CK + 1; TG = PI
    soff = k.salloc(7); sslot = k.salloc(); st0 = k.salloc(); smir = k.salloc(); sxl = k.salloc(); sxo = k.salloc(); sz1 = k.salloc(); sz2 = k.salloc()
    k(f'''{k.name}_S1:
    s_lshr_b32 {s(ss2)}, {s(sa)}, 2
    s_lshl_b32 {s(st)}, {s(sb)}, 2
    s_add_u32 {s(ss2)}, {s(ss2)}, {s(st)}
    s_and_b32 {s(sj)}, {s(sa)}, 3
    s_lshl_b32 {s(sj)}, {s(sj)}, 1
    s_mul_i32 {s(so)}, {s(ss2)}, 896
    s_lshl_b32 {s(st)}, {s(sj)}, 7
    s_add_u32 {s(soff)}, {s(so)}, {s(st)}
    s_add_u32 {s(st2)}, {s(so)}, 896''')
    for i in range(1, 7):
        k(f's_add_u32 {s(soff+i)}, {s(soff+i-1)}, 128\ns_cmp_ge_u32 {s(soff+i)}, {s(st2)}\ns_cselect_b32 {s(soff+i)}, {s(so)}, {s(soff+i)}')
    k(f'''s_add_u32 {s(st)}, {s(sw)}, {s(sj)}
    s_and_b32 {s(st)}, {s(st)}, 7
    s_lshl_b32 {s(st)}, {s(st)}, 3
    v_lshrrev_b32 {v(vs1)}, 3, {v(vl)}
    v_add_u32 {v(vs1)}, {s(st)}, {v(vs1)}
    v_mul_u32_u24 {v(vt)}, 28672, {v(vs1)}
    v_and_b32 {v(vt2)}, 7, v0
    v_lshl_add_u32 {v(vo)}, {v(vt2)}, 4, {v(vt)}
    s_waitcnt lgkmcnt(0)''')
    k.srd(rx, px, 1835008)
    def xloads():
        for i in range(7): k(f'buffer_load_dwordx4 {v(X+4*i,4)}, {v(vo)}, {s(rx,4)}, {s(soff+i)} offen')
    Lx1 = k.label('x1'); Lx2 = k.label('x2')
    k(f"s_cmp_ge_u32 {s(sw)}, {OPT['LATE']}\ns_cbranch_scc1 {Lx1}"); xloads(); k(f'{Lx1}:')
    nonce(); k.srd(rws, pws, WSB)
    stamp(2, {1})
    k(f'''s_mov_b32 {s(sflag)}, s2
    s_mov_b32 {s(sones)}, 0x3f803f80
    s_and_b32 {s(st)}, {s(sw)}, 1
    s_lshl_b32 {s(st)}, {s(st)}, 4
    v_add_u32 {v(vt3)}, {s(st)}, {v(vn)}
    v_cvt_f32_u32 {v(vstep)}, {v(vt3)}
    s_bitcmp1_b32 {s(sw)}, 1
    s_cselect_b32 {s(st)}, {fl(0.25)}, 0
    s_cselect_b32 {s(st2)}, {fl(32.0)}, 0
    v_mov_b32 {v(vbase)}, {s(st)}
    v_mov_b32 {v(vt)}, {s(st2)}
    v_cmp_eq_u32 vcc, 0, {v(vt3)}
    v_cndmask_b32 {v(vstep)}, {v(vstep)}, {v(vt)}, vcc
    v_cndmask_b32 {v(vbase)}, {v(vbase)}, 0, vcc
    v_mul_f32 {v(vstep)}, {fl(1/64)}, {v(vstep)}
    v_lshlrev_b32 {v(vt)}, 2, {v(vg)}
    v_cvt_f32_u32 {v(vt)}, {v(vt)}
    v_fmac_f32 {v(vbase)}, {v(vstep)}, {v(vt)}''')
    for e in range(16):
        o = 32 * (e >> 3) + 16 * ((e >> 2) & 1) + (e & 3)
        k(f'v_fmamk_f32 {v(T+e)}, {v(vstep)}, {fl(o)}, {v(vbase)}')
    for e in range(16): k(f'v_cos_f32 {v(T+e)}, {v(T+e)}')
    for e in range(8): k(f'v_cvt_pk_bf16_f32 {v(BF+e)}, {v(T+2*e)}, {v(T+2*e+1)}')
    flagprep(vf)
    k(f'''v_mov_b32 {v(a1)}, 0
    v_mov_b32 {v(a1+1)}, 0
    v_mov_b32 {v(a2)}, 0
    v_mov_b32 {v(a2+1)}, 0
    v_mov_b32 {v(vt)}, {MISC}
    ds_write_b128 {v(vt)}, {v(a1,4)}
    v_mul_u32_u24 {v(aW)}, {XS}, {v(vs1)}
    v_and_b32 {v(vt2)}, 7, v0
    v_lshl_add_u32 {v(aW)}, {v(vt2)}, 4, {v(aW)}
    v_lshrrev_b32 {v(vt)}, 2, {v(vl)}
    v_mul_u32_u24 {v(aR)}, {XS}, {v(vt)}
    v_and_b32 {v(vt3)}, 3, {v(vl)}
    v_lshl_add_u32 {v(aR)}, {v(vt3)}, 3, {v(aR)}
    s_lshr_b32 {s(st)}, {s(sw)}, 2
    s_lshl_b32 {s(st)}, {s(st)}, 7
    v_add_u32 {v(aR)}, {s(st)}, {v(aR)}
    v_lshrrev_b32 {v(vt)}, 3, {v(vl)}
    v_mul_u32_u24 {v(aZ)}, 57344, {v(vt)}
    v_lshl_add_u32 {v(aZ)}, {v(vt2)}, 4, {v(aZ)}
    s_mul_i32 {s(scnt)}, {s(sw)}, 2304
    s_add_u32 {s(scnt)}, {s(scnt)}, {64*XS}
    v_mul_u32_u24 {v(aT1)}, 144, {v(vn)}
    v_lshl_add_u32 {v(aT1)}, {v(vg)}, 3, {v(aT1)}
    v_add_u32 {v(aT1)}, {s(scnt)}, {v(aT1)}
    v_mul_u32_u24 {v(aT2)}, 144, {v(vt)}
    v_lshl_add_u32 {v(aT2)}, {v(vt2)}, 4, {v(aT2)}
    v_add_u32 {v(aT2)}, {s(scnt)}, {v(aT2)}
    s_bfe_u32 {s(st2)}, {s(sw)}, 0x10001
    s_mul_i32 {s(st2)}, {s(st2)}, 28672
    s_add_u32 {s(sz1)}, {s(soff)}, {s(st2)}
    s_add_u32 {s(sz1)}, {s(sz1)}, {s(st)}
    s_and_b32 {s(st2)}, {s(sw)}, 1
    s_mul_i32 {s(st2)}, {s(st2)}, {16*57344}
    s_add_u32 {s(sz1)}, {s(sz1)}, {s(st2)}
    s_lshr_b32 {s(st)}, {s(sw)}, 2
    s_add_u32 {s(st)}, {s(st)}, {s(sj)}
    s_cmp_eq_u32 {s(st)}, 7
    s_cselect_b32 {s(sz1)}, {HUGE}, {s(sz1)}
    s_add_u32 {s(sz2)}, {s(sz1)}, {8*57344}''')
    assert a2 == a1 + 2 and a1 % 4 == 0
    k(f'''s_lshr_b32 {s(st)}, {s(sa)}, 2
    s_lshl_b32 {s(st)}, {s(st)}, 3
    s_add_u32 {s(sslot)}, {s(sb)}, {s(st)}
    s_bfe_u32 {s(smir)}, {s(sa)}, 0x10001
    s_sub_u32 {s(st)}, 64, {s(sslot)}
    s_cmp_eq_u32 {s(sslot)}, 0
    s_cselect_b32 {s(st)}, 32, {s(st)}
    s_cmp_eq_u32 {s(smir)}, 1
    s_cselect_b32 {s(st0)}, {s(st)}, {s(sslot)}
    s_and_b32 {s(st)}, {s(sa)}, 1
    s_lshl_b32 {s(st)}, {s(st)}, 10
    s_add_u32 {s(st0)}, {s(st0)}, {s(st)}
    s_lshl_b32 {s(st)}, {s(sw)}, 7
    s_add_u32 {s(st)}, {s(st)}, {s(st0)}
    s_mul_i32 {s(sxo)}, {s(st)}, 896
    s_sub_u32 {s(st)}, 2047, {s(st)}
    v_and_b32 {v(vki)}, 32, {v(vl)}
    v_lshlrev_b32 {v(vki)}, 1, {v(vki)}
    v_sub_u32 {v(vki)}, {s(st)}, {v(vki)}
    v_mov_b32 {v(vkm)}, 0xfffff800
    v_lshlrev_b32 {v(vt)}, 5, {v(vn)}
    v_lshl_add_u32 {v(vt)}, {v(vg)}, 3, {v(vt)}
    s_mul_i32 {s(sxl)}, {s(sw)}, 1792
    s_add_u32 {s(sxl)}, {s(sxl)}, {XB}
    v_add_u32 {v(vx0)}, {s(sxl)}, {v(vt)}
    v_lshlrev_b32 {v(vh0)}, 4, {v(vl)}
    v_add_u32 {v(vx1)}, {s(sxl)}, {v(vh0)}
    v_add_u32 {v(vh1)}, 1024, {v(vh0)}
    v_add_u32 {v(aK)}, {CB_}, {v(vh0)}
    v_mov_b32 {v(vt2)}, {HUGE}
    v_cmp_gt_u32 vcc, 12, {v(vn)}
    v_cndmask_b32 {v(vh1)}, {v(vt2)}, {v(vh1)}, vcc
    s_lshr_b32 {s(st)}, {s(sw)}, 1
    v_lshlrev_b32 {v(vt)}, 2, {v(vg)}
    v_xor_b32 {v(vt)}, {v(vt)}, {v(vn)}
    v_and_b32 {v(vt)}, 7, {v(vt)}
    v_xor_b32 {v(vt)}, {s(st)}, {v(vt)}
    v_lshlrev_b32 {v(aU)}, 4, {v(vt)}
    v_lshl_add_u32 {v(aU)}, {v(vn)}, 11, {v(aU)}
    v_lshl_add_u32 {v(aU)}, {v(vg)}, 9, {v(aU)}
    s_and_b32 {s(st)}, {s(sw)}, 1
    s_lshl_b32 {s(st)}, {s(st)}, 3
    s_add_u32 {s(st)}, {s(st)}, {UB}
    v_add_u32 {v(aU)}, {s(st)}, {v(aU)}
    v_xor_b32 {v(aU+1)}, 16, {v(aU)}
    v_xor_b32 {v(aU+2)}, 32, {v(aU)}
    v_xor_b32 {v(aU+3)}, 48, {v(aU)}
    s_lshl_b32 {s(st)}, {s(sw)}, 1
    v_xor_b32 {v(vt)}, {v(vg)}, {v(vn)}
    v_xor_b32 {v(vt)}, {s(st)}, {v(vt)}
    v_and_b32 {v(vt)}, 7, {v(vt)}
    v_lshlrev_b32 {v(aV)}, 4, {v(vt)}
    v_lshl_add_u32 {v(aV)}, {v(vn)}, 7, {v(aV)}
    s_lshl_b32 {s(st)}, {s(sw)}, 12
    s_add_u32 {s(st)}, {s(st)}, {UB}
    v_add_u32 {v(aV)}, {s(st)}, {v(aV)}
    v_xor_b32 {v(aV+1)}, 16, {v(aV)}
    v_lshrrev_b32 {v(vt)}, 2, {v(vl)}
    v_mul_u32_u24 {v(aT)}, {ZS}, {v(vt)}
    v_mul_u32_u24 {v(vt)}, 56, {v(vt3)}
    s_lshl_b32 {s(st)}, {s(sw)}, 3
    v_add3_u32 {v(aT)}, {v(aT)}, {v(vt)}, {s(st)}
    v_mul_u32_u24 {v(aC)}, 112, {v(vg)}
    s_lshl_b32 {s(st)}, {s(sw)}, 4
    s_add_u32 {s(st)}, {s(st)}, {CAB}
    v_add_u32 {v(aC)}, {s(st)}, {v(aC)}''')
    v7a = vsb; v7b = k.valloc(); v7c = PI + 10
    k.srd(r4, pw, 896)
    k(f'''s_cmp_eq_u32 {s(sw)}, 7
    s_cselect_b32 {s(r4+2)}, {s(r4+2)}, 0
    v_lshlrev_b32 {v(v7a)}, 3, {v(vl)}
    v_add_u32 {v(v7b)}, 512, {v(v7a)}
    v_cmp_gt_u32 vcc, 48, {v(vl)}
    v_cndmask_b32 {v(v7b)}, {v(vt2)}, {v(v7b)}, vcc''')
    def gen_f28():
        k(f'''v_cvt_f32_u32 {v(vstep)}, {v(vn)}
        v_mul_f32 {v(vstep)}, {fl(1/28)}, {v(vstep)}
        v_lshlrev_b32 {v(vt)}, 3, {v(vg)}
        v_cvt_f32_u32 {v(vt)}, {v(vt)}
        v_cmp_gt_u32 vcc, 12, {v(vn)}''')
        for b in range(2):
            if b == 1: k(f'v_add_f32 {v(vstep)}, {fl(16/28)}, {v(vstep)}')
            k(f'v_mul_f32 {v(vbase)}, {v(vt)}, {v(vstep)}')
            for e in range(8): k(f'v_fmamk_f32 {v(TG+e)}, {v(vstep)}, {fl(e)}, {v(vbase)}')
            for e in range(8): k(f'v_sin_f32 {v(TG+8+e)}, {v(TG+e)}\nv_cos_f32 {v(TG+e)}, {v(TG+e)}')
            for e in range(4): k(f'v_cvt_pk_bf16_f32 {v(FB+8*b+e)}, {v(TG+2*e)}, {v(TG+2*e+1)}\nv_cvt_pk_bf16_f32 {v(FB+8*b+4+e)}, -{v(TG+8+2*e)}, -{v(TG+9+2*e)}')
        for e in range(8): k(f'v_cndmask_b32 {v(FB+8+e)}, 0, {v(FB+8+e)}, vcc')
    sx1 = k.salloc(); sx2 = k.salloc(); sm0 = k.salloc(); sm1 = k.salloc(); ssw = k.salloc(2)
    def gen_w():
        k(f'''v_lshlrev_b32 {v(vt)}, 6, {v(vn)}
        v_add_u32 {v(vt)}, {s(st0)}, {v(vt)}
        v_cvt_f32_u32 {v(vstep)}, {v(vt)}
        v_mul_f32 {v(vstep)}, {fl(1/2048)}, {v(vstep)}
        v_lshlrev_b32 {v(vt)}, 2, {v(vg)}
        v_cvt_f32_u32 {v(vbase)}, {v(vt)}
        v_mul_f32 {v(vbase)}, {v(vbase)}, {v(vstep)}''')
        for e in range(8): k(f'v_fmamk_f32 {v(TG+e)}, {v(vstep)}, {fl(16*(e>>2)+(e&3))}, {v(vbase)}')
        for e in range(8): k(f'v_sin_f32 {v(TG+8+e)}, {v(TG+e)}\nv_cos_f32 {v(TG+e)}, {v(TG+e)}')
        for e in range(4): k(f'v_cvt_pk_bf16_f32 {v(Fre0+e)}, {v(TG+2*e)}, {v(TG+2*e+1)}\nv_cvt_pk_bf16_f32 {v(Fim0+e)}, -{v(TG+8+2*e)}, -{v(TG+9+2*e)}')
        Lns = k.label('ns'); Lnx = k.label('nx')
        k(f'''s_cmp_eq_u32 {s(smir)}, 1
        s_cselect_b32 {s(sx1)}, 0, 0x80008000
        s_cselect_b32 {s(sx2)}, 0x80008000, 0
        s_cmp_eq_u32 {s(sslot)}, 0
        s_cbranch_scc1 {Lns}''')
        for q in range(4): k(f'v_xor_b32 {v(Fre1+q)}, {s(sx1)}, {v(Fim0+q)}\nv_xor_b32 {v(Fim1+q)}, {s(sx2)}, {v(Fre0+q)}')
        k(f's_branch {Lnx}\n{Lns}:\ns_cmp_eq_u32 {s(smir)}, 1\ns_cselect_b32 {s(sm0)}, 0, -1\ns_cselect_b32 {s(sm1)}, -1, 0')
        for q in range(4):
            k(f'''v_and_b32 {v(Fre1+q)}, {s(sm1)}, {v(Fre0+q)}
            v_and_b32 {v(Fim1+q)}, {s(sm1)}, {v(Fim0+q)}
            v_and_b32 {v(Fre0+q)}, {s(sm0)}, {v(Fre0+q)}
            v_and_b32 {v(Fim0+q)}, {s(sm0)}, {v(Fim0+q)}''')
        k(f'{Lnx}:')
    def gen_da(TT):
        k(f'''v_cvt_f32_u32 {v(vstep)}, {v(vn)}
        v_mul_f32 {v(vstep)}, {fl(1/448)}, {v(vstep)}
        v_mul_u32_u24 {v(vt)}, 28, {v(vg)}
        s_lshl_b32 {s(st)}, {s(sw)}, 2
        v_add_u32 {v(vt)}, {s(st)}, {v(vt)}
        v_cvt_f32_u32 {v(vbase)}, {v(vt)}
        v_mul_f32 {v(vbase)}, {v(vbase)}, {v(vstep)}''')
        for q in range(4):
            for T_ in range(4): k(f'v_fmamk_f32 {v(TT+4*q+T_)}, {v(vstep)}, {fl(112*T_+q)}, {v(vbase)}')
        for e in range(16): k(f'v_sin_f32 {v(TT+16+e)}, {v(TT+e)}\nv_cos_f32 {v(TT+e)}, {v(TT+e)}')
        for q in range(4):
            A_ = AD + 6 * q
            k(f'''v_cvt_pk_bf16_f32 {v(A_)}, {v(TT+4*q)}, {v(TT+4*q+1)}
            v_cvt_pk_bf16_f32 {v(A_+1)}, {v(TT+4*q+2)}, {v(TT+4*q+3)}
            v_cvt_pk_bf16_f32 {v(A_+2)}, {v(TT+16+4*q)}, {v(TT+16+4*q+1)}
            v_cvt_pk_bf16_f32 {v(A_+3)}, {v(TT+16+4*q+2)}, {v(TT+16+4*q+3)}
            v_xor_b32 {v(A_+4)}, 0x80008000, {v(A_)}
            v_xor_b32 {v(A_+5)}, 0x80008000, {v(A_+1)}''')
    if OPT['EARLY'] & 1: gen_w()
    k(f"s_cmp_lt_u32 {s(sw)}, {OPT['LATE']}\ns_cbranch_scc1 {Lx2}"); xloads(); k(f'{Lx2}:')
    if OPT['EARLY'] & 2: gen_f28()
    stamp(5, {1})
    for i in range(7):
        k(f's_waitcnt vmcnt({6-i})')
        if i < 2:
            for q in range(4): k(f'v_lshlrev_b32 {v(T+8*i+2*q)}, 16, {v(X+4*i+q)}\nv_and_b32 {v(T+8*i+2*q+1)}, 0xffff0000, {v(X+4*i+q)}')
        for q in range(4):
            k(f'v_dot2c_f32_bf16 {v(a1+(q&1))}, {s(sones)}, {v(X+4*i+q)}')
            k(f'v_dot2c_f32_bf16 {v(a2+(q&1))}, {v(X+4*i+q)}, {v(X+4*i+q)}')
    stamp(3, {1})
    k(f'''s_mov_b32 m0, {s(sxl)}
    s_add_u32 {s(st)}, {s(sxo)}, {57344-896}
    s_bfm_b64 exec, 56, 0
    buffer_load_dwordx4 {v(vh0)}, {s(rx,4)}, {s(sxo)} offen lds
    buffer_load_dwordx4 {v(vh0)}, {s(rx,4)}, {s(st)} offen offset:896 lds
    s_mov_b64 exec, -1
    buffer_load_dwordx2 {v(XF,2)}, {v(v7a)}, {s(r4,4)}, 0 offen
    buffer_load_dwordx2 {v(XF+2,2)}, {v(v7b)}, {s(r4,4)}, 0 offen''')
    if OPT['PREP']:
        Lpp = k.label('prep')
        k(f'''s_cmp_lt_u32 {s(sw)}, 5
        s_cbranch_scc1 {Lpp}
        s_mul_i32 {s(st)}, {s(sb)}, {FRS}
        s_sub_u32 {s(st2)}, {s(sw)}, 5
        s_mul_i32 {s(st2)}, {s(st2)}, {64*FS}
        s_add_u32 {s(st)}, {s(st)}, {s(st2)}
        s_add_u32 {s(st)}, {s(st)}, {FLAG1}
        v_mul_u32_u24 {v(XF+5)}, {FS}, {v(vl)}
        buffer_load_dword {v(XF+4)}, {v(XF+5)}, {s(rws,4)}, {s(st)} offen sc1
        {Lpp}:''')
    k(f'v_add_f32 {v(a1)}, {v(a1)}, {v(a1+1)}\nv_add_f32 {v(a2)}, {v(a2)}, {v(a2+1)}')
    for dp in ('quad_perm:[1,0,3,2]', 'quad_perm:[2,3,0,1]', 'row_half_mirror'):
        k(f'v_add_f32_dpp {v(a1)}, {v(a1)}, {v(a1)} {dp} row_mask:0xf bank_mask:0xf')
        k(f'v_add_f32_dpp {v(a2)}, {v(a2)}, {v(a2)} {dp} row_mask:0xf bank_mask:0xf')
    ln_scalars(k, a1, a2)
    for h in range(2):
        for q in range(8): k(f'v_fma_f32 {v(T+8*h+q)}, {v(T+8*h+q)}, {v(a2)}, -{v(a1)}')
        for q in range(4): k(f'v_cvt_pk_bf16_f32 {v(X+4*h+q)}, {v(T+8*h+2*q)}, {v(T+8*h+2*q+1)}')
        k(f'ds_write_b128 {v(aW)}, {v(X+4*h,4)} offset:{128*h}')
    k(f's_waitcnt lgkmcnt(0)\ns_barrier')
    stamp(6, {1})
    AF = X
    for tau in range(4):
        for ks in range(2):
            for hh in range(2):
                k(f'ds_read_b64_tr_b16 {v(AF+8*tau+4*ks+2*hh,2)}, {v(aR)} offset:{(32*ks+16*hh)*XS+32*tau}')
    tagcalc()
    for tau in range(4):
        k(f's_waitcnt lgkmcnt({12-4*tau})')
        k(f'v_mfma_f32_16x16x32_bf16 {v(T+4*tau,4)}, {v(AF+8*tau,4)}, {v(BF,4)}, 0')
        k(f'v_mfma_f32_16x16x32_bf16 {v(T+4*tau,4)}, {v(AF+8*tau+4,4)}, {v(BF+4,4)}, {v(T+4*tau,4)}')
    for tau in range(4):
        k(f'v_cvt_pk_bf16_f32 {v(PI+2*tau)}, {v(T+4*tau)}, {v(T+4*tau+1)}\nv_cvt_pk_bf16_f32 {v(PI+2*tau+1)}, {v(T+4*tau+2)}, {v(T+4*tau+3)}')
        k(f'ds_write_b64 {v(aT1)}, {v(PI+2*tau,2)} offset:{32*tau}')
    k(f's_waitcnt lgkmcnt(0)\nds_read_b128 {v(X,4)}, {v(aT2)}\nds_read_b128 {v(X+4,4)}, {v(aT2)} offset:{8*144}')
    for h in range(2):
        k(f's_waitcnt lgkmcnt({1-h})\nbuffer_store_dwordx4 {v(X+4*h,4)}, {v(aZ)}, {s(rws,4)}, {s(sz1 if h == 0 else sz2)} offen sc1')
    stamp(4, {1})
    k.srd(r3, pout, 1835008)
    k(f'''s_and_b32 {s(sj)}, {s(sb)}, 7
    s_mul_i32 {s(sj)}, {s(sj)}, {FRS}
    s_add_u32 {s(sj)}, {s(sj)}, {FLAG1}
    v_mul_u32_u24 {v(vo)}, {FS}, {v(vl)}
    s_waitcnt vmcnt(0)
    s_barrier''')
    stamp(7, {1})
    Lnf = k.label('nf')
    k(f"s_cmp_lg_u32 {s(sw)}, {OPT['FW']}\ns_cbranch_scc1 {Lnf}"); sendflag(vf)
    if OPT['ST'] == 2: k('s_waitcnt vmcnt(0)'); k.stamp(2)
    k(f'{Lnf}:')
    T = AZ
    Lp7 = k.label('p7'); Lp6 = k.label('p6'); LA0 = k.label('A0'); LA = k.label('A')
    k(f's_cmp_eq_u32 {s(sw)}, 7\ns_cbranch_scc1 {Lp7}')
    if not OPT['EARLY'] & 1: gen_w()
    k(f'''s_lshl_b32 {s(sz1)}, {s(sa)}, 4
    s_mul_i32 {s(st)}, {s(sw)}, 9
    s_add_u32 {s(sz1)}, {s(sz1)}, {s(st)}
    s_mul_i32 {s(sz2)}, {s(sslot)}, 57344
    v_mov_b32 {v(vt)}, {MISC}
    s_cmp_eq_u32 {s(sw)}, 6
    s_cbranch_scc1 {Lp6}''')
    poll(f'ds_read_b32 {v(T)}, {v(vt)} offset:8', [T], name='pl', wait='lgkmcnt(0)')
    k(f's_branch {LA0}\n{Lp6}:\ns_add_u32 {s(so)}, {s(sj)}, {64*FS}')
    if OPT['ST'] == 2:
        k.stamp(2); k(f'buffer_load_dword {v(CK)}, {v(vo)}, {s(rws,4)}, {s(sj)} offen sc1\nbuffer_load_dword {v(CK+1)}, {v(vo)}, {s(rws,4)}, {s(so)} offen sc1\ns_waitcnt vmcnt(0)'); k.stamp(3)
    ppoll(lambda i: f'''buffer_load_dword {v(CK+2*i)}, {v(vo)}, {s(rws,4)}, {s(sj)} offen sc1
    buffer_load_dword {v(CK+2*i+1)}, {v(vo)}, {s(rws,4)}, {s(so)} offen sc1''', 2, lambda i: [CK+2*i, CK+2*i+1], OPT['PD'], name='pz')
    k(f'ds_write_b32 {v(vt)}, {v(vtag)} offset:8\n{LA0}:')
    stamp(5, {0, 2})
    if OPT['ST'] == 2: k(f's_mov_b32 s92, {s(scnt)}')
    k('s_bfm_b64 exec, 56, 0')
    def zrow():
        k(f'''s_and_b32 {s(st)}, {s(sz1)}, 63
        s_mul_i32 {s(st2)}, {s(st)}, {ZS}
        s_mul_i32 {s(st)}, {s(st)}, 896
        s_mov_b32 m0, {s(st2)}
        s_add_u32 {s(st)}, {s(st)}, {s(sz2)}
        s_add_u32 {s(sz1)}, {s(sz1)}, 1
        buffer_load_dwordx4 {v(vh0)}, {s(rws,4)}, {s(st)} offen sc1 lds''')
    for i in range(9): zrow()
    Lz = k.label('z')
    k(f's_cmp_lg_u32 {s(sw)}, 6\ns_cbranch_scc1 {Lz}'); zrow(); k(f'{Lz}:\ns_mov_b64 exec, -1')
    stamp(7, {2})
    gen_da(AZ)
    k(f's_branch {LA}\n{Lp7}:')
    k(f'''v_lshlrev_b32 {v(v7b)}, 1, {v(v7b)}
    v_and_b32 {v(v7c)}, 3, {v(vl)}
    v_lshlrev_b32 {v(v7c)}, 8, {v(v7c)}
    v_lshrrev_b32 {v(vt)}, 2, {v(vl)}
    v_lshl_add_u32 {v(v7c)}, {v(vt)}, 4, {v(v7c)}
    v_add_u32 {v(v7c)}, {CB_}, {v(v7c)}
    s_add_u32 {s(so)}, {s(sj)}, {128*FS}''')
    for i in range(16): k(f'v_mov_b32 {v(PR+i)}, 0')
    if OPT['ST'] == 2:
        k.stamp(2); k(f'buffer_load_dword {v(BP)}, {v(vo)}, {s(rws,4)}, {s(so)} offen sc1\ns_waitcnt vmcnt(0)'); k.stamp(3)
    ppoll(lambda i: f'buffer_load_dword {v(BP+i)}, {v(vo)}, {s(rws,4)}, {s(so)} offen sc1', 1, lambda i: [BP+i], OPT['PD'], 42, name='pm')
    stamp(5, {0, 2})
    if OPT['ST'] == 2: k(f's_mov_b32 s92, {s(scnt)}')
    k(f's_mov_b32 m0, {CAB}\ns_mov_b32 {s(st2)}, {MODV}')
    for i in range(4):
        if i == 3: k('s_bfm_b64 exec, 32, 0')
        k(f'buffer_load_dwordx4 {v(vh0)}, {s(rws,4)}, {s(st2)} offen offset:{1024*i} sc1 lds')
    k('s_mov_b64 exec, -1')
    for (slot_, sec) in ((2, 4), (3, 3), (0, 2), (4, 5)):
        k(f's_mov_b32 {s(st2)}, {MODV+sec*1792}')
        k(f'buffer_load_dwordx4 {v(CK+8*slot_,4)}, {v(vh0)}, {s(rws,4)}, {s(st2)} offen sc1\nbuffer_load_dwordx4 {v(CK+8*slot_+4,4)}, {v(v7b)}, {s(rws,4)}, {s(st2)} offen sc1')
    for q in range(4): k(f'v_lshlrev_b32 {v(T+2*q)}, 16, {v(XF+q)}\nv_and_b32 {v(T+2*q+1)}, 0xffff0000, {v(XF+q)}')
    k('s_waitcnt vmcnt(4)')
    for e in range(8): k(f'v_mul_f32 {v(CK+8+e)}, {v(T+e)}, {v(CK+16+e)}')
    k(f'v_add_f32 {v(T+8)}, {v(CK+8)}, {v(CK+9)}\nv_mul_f32 {v(T+9)}, {v(T)}, {v(CK+24)}')
    for e in range(2, 8): k(f'v_add_f32 {v(T+8)}, {v(T+8)}, {v(CK+8+e)}\nv_fmac_f32 {v(T+9)}, {v(T+e-1)}, {v(CK+24+e-1)}')
    k(f'v_fmac_f32 {v(T+9)}, {v(T+7)}, {v(CK+31)}')
    for c in (2, 3): k(f'ds_write_b128 {v(v7c)}, {v(CK+8*c,4)} offset:{2048*c}\nds_write_b128 {v(v7c)}, {v(CK+8*c+4,4)} offset:{2048*c+1024}')
    k(f'v_permlane32_swap_b32 {v(T+8)}, {v(T+9)}\nv_add_f32 {v(T+8)}, {v(T+8)}, {v(T+9)}\nv_mov_b32 {v(T+9)}, {v(T+8)}\nv_permlane16_swap_b32 {v(T+8)}, {v(T+9)}\nv_add_f32 {v(T+8)}, {v(T+8)}, {v(T+9)}')
    for r in (8, 4, 2, 1): k(f'v_add_f32_dpp {v(T+8)}, {v(T+8)}, {v(T+8)} row_ror:{r} row_mask:0xf bank_mask:0xf')
    k(f'''v_readlane_b32 {s(st)}, {v(T+8)}, 0
    v_readlane_b32 {s(st2)}, {v(T+8)}, 32
    v_mov_b32 {v(T+9)}, {fl(-1/448)}
    v_mul_f32 {v(T+9)}, {s(st)}, {v(T+9)}
    v_cmp_gt_u32 vcc, 48, {v(vl)}
    v_cndmask_b32 {v(T+11)}, 0, {v(T+9)}, vcc
    v_mov_b32 {v(T+10)}, {s(st2)}
    v_mov_b32 {v(vt2)}, {MISC}
    ds_write_b32 {v(vt2)}, {v(T+10)} offset:4''')
    for e in range(8): k(f'v_add_f32 {v(CK+8+e)}, {v(CK+8+e)}, {v(T+9 if e < 4 else T+11)}')
    k('s_waitcnt vmcnt(0)')
    for c in (1, 0, 4): k(f'ds_write_b128 {v(v7c)}, {v(CK+8*c,4)} offset:{2048*c}\nds_write_b128 {v(v7c)}, {v(CK+8*c+4,4)} offset:{2048*c+1024}')
    k(f'{LA}:')
    if not OPT['EARLY'] & 2: gen_f28()
    stamp(3, {0})
    for r in range(2): k(f'ds_read_b64 {v(XR+4*r,2)}, {v(vx0)} offset:{896*r}\nds_read_b64 {v(XR+4*r+2,2)}, {v(vx0)} offset:{896*r+512}')
    k(f'v_cmp_gt_u32 vcc, 12, {v(vn)}\ns_waitcnt lgkmcnt(0)')
    for r in range(2):
        for q in (2, 3): k(f'v_cndmask_b32 {v(XR+4*r+q)}, 0, {v(XR+4*r+q)}, vcc')
    for q in range(8): k(f'v_lshlrev_b32 {v(XF+2*q)}, 16, {v(XR+q)}\nv_and_b32 {v(XF+2*q+1)}, 0xffff0000, {v(XR+q)}')
    k(f's_waitcnt vmcnt(0)\ns_barrier')
    stamp(6, {0, 2})
    def kreads():
        for c in range(5): k(f'ds_read_b128 {v(CK+8*c,4)}, {v(aK)} offset:{2048*c}\nds_read_b128 {v(CK+8*c+4,4)}, {v(aK)} offset:{2048*c+1024}')
        k(f'v_mov_b32 {v(vt2)}, {MISC}\nds_read_b32 {v(vsb)}, {v(vt2)} offset:4')
    Lw7 = k.label('w7'); Ljoin = k.label('join')
    k(f's_cmp_eq_u32 {s(sw)}, 7\ns_cbranch_scc1 {Lw7}')
    for T_ in range(4):
        for ks in range(2):
            for hh in range(2):
                k(f'ds_read_b64_tr_b16 {v(AZ+8*T_+4*ks+2*hh,2)}, {v(aT)} offset:{(32*ks+16*hh)*ZS+224*T_}')
    for T_ in range(4):
        k(f's_waitcnt lgkmcnt({12 if T_ == 0 else 16-4*T_})')
        k(f'''v_mfma_f32_16x16x32_bf16 {v(PR+4*T_,4)}, {v(AZ+8*T_,4)}, {v(Fre0,4)}, 0
        v_mfma_f32_16x16x32_bf16 {v(PR+4*T_,4)}, {v(AZ+8*T_+4,4)}, {v(Fre1,4)}, {v(PR+4*T_,4)}''')
        if T_ == 0:
            for t2 in range(4): k(f'ds_read_b128 {v(CA+4*t2,4)}, {v(aC)} offset:{1792+448*t2}')
    k('s_waitcnt lgkmcnt(0)')
    Lsa = k.label('sa'); Lsab = k.label('sab')
    for T_ in range(4):
        k(f'''v_mfma_f32_16x16x32_bf16 {v(PI+4*T_,4)}, {v(AZ+8*T_,4)}, {v(Fim0,4)}, 0
        v_mfma_f32_16x16x32_bf16 {v(PI+4*T_,4)}, {v(AZ+8*T_+4,4)}, {v(Fim1,4)}, {v(PI+4*T_,4)}''')
        for i in range(4): k(f'v_mul_f32 {v(PR+4*T_+i)}, {v(PR+4*T_+i)}, {v(CA+4*T_+i)}')
    k(f's_cmp_eq_u32 {s(st0)}, 0\ns_cbranch_scc1 {Lsa}\n{Lsab}:')
    for i in range(4):
        k(f'v_cvt_pk_bf16_f32 {v(BP+4*i)}, {v(PR+i)}, {v(PR+4+i)}\nv_cvt_pk_bf16_f32 {v(BP+4*i+1)}, {v(PR+8+i)}, {v(PR+12+i)}')
    UR = AZ; VV = AZ + 16
    for i in range(4):
        B = BP + 4 * i
        for T_ in range(4): k(f'v_mul_f32 {v(PI+4*T_+i)}, {v(PI+4*T_+i)}, {v(CA+4*T_+i)}')
        k(f'''v_cvt_pk_bf16_f32 {v(B+2)}, {v(PI+i)}, {v(PI+4+i)}
        v_cvt_pk_bf16_f32 {v(B+3)}, {v(PI+8+i)}, {v(PI+12+i)}''')
        if i > 0:
            k(f'''v_mfma_f32_16x16x32_bf16 {v(UR+4*(i-1),4)}, {v(AD+6*(i-1),4)}, {v(B-4,4)}, 0
            v_mfma_f32_16x16x32_bf16 {v(VV+4*(i-1),4)}, {v(AD+6*(i-1)+2,4)}, {v(B-4,4)}, 0''')
    k(f'''v_mfma_f32_16x16x32_bf16 {v(UR+12,4)}, {v(AD+18,4)}, {v(BP+12,4)}, 0
    v_mfma_f32_16x16x32_bf16 {v(VV+12,4)}, {v(AD+20,4)}, {v(BP+12,4)}, 0''')
    UP = PR
    for i in range(4): k(f'v_cvt_pk_bf16_f32 {v(UP+2*i)}, {v(UR+i)}, {v(UR+4+i)}\nv_cvt_pk_bf16_f32 {v(UP+8+2*i)}, {v(VV+i)}, {v(VV+4+i)}')
    for i in range(4):
        k(f'v_cvt_pk_bf16_f32 {v(UP+2*i+1)}, {v(UR+8+i)}, {v(UR+12+i)}\nds_write_b64 {v(aU+i)}, {v(UP+2*i,2)} offset:{128*i}\nv_xor_b32 {v(aU+i)}, 64, {v(aU+i)}')
    for i in range(4):
        k(f'v_cvt_pk_bf16_f32 {v(UP+8+2*i+1)}, {v(VV+8+i)}, {v(VV+12+i)}\nds_write_b64 {v(aU+i)}, {v(UP+8+2*i,2)} offset:{128*i}')
    k(f's_branch {Ljoin}')
    k(f'{Lsa}:')
    for t2 in range(4): k(f'ds_read_b128 {v(BP+4*t2,4)}, {v(aC)} offset:{448*t2}')
    k(f's_mov_b32 exec_lo, 0x00010001\ns_mov_b32 exec_hi, 0x00010001\ns_waitcnt lgkmcnt(0)')
    for e in range(16): k(f'v_add_f32 {v(PR+e)}, {v(PR+e)}, {v(BP+e)}')
    k(f's_mov_b64 exec, -1\ns_nop 1\ns_branch {Lsab}')
    k(f'{Lw7}:')
    for i in range(4): k(f'ds_write_b64 {v(aU+i)}, {v(PR,2)} offset:{128*i}\nv_xor_b32 {v(aU+i)}, 64, {v(aU+i)}')
    for i in range(4): k(f'ds_write_b64 {v(aU+i)}, {v(PR,2)} offset:{128*i}')
    k(f'{Ljoin}:')
    k(f'''v_xor_b32 {v(vt)}, 64, {v(aV)}
    v_xor_b32 {v(vt2)}, 64, {v(aV+1)}
    v_mov_b32 {v(CA+1)}, {v(vtag)}
    v_mov_b32 {v(CA+3)}, {v(vtag)}
    v_mov_b32 {v(CA+5)}, {v(vtag)}
    v_mov_b32 {v(CA+7)}, {v(vtag)}
    s_waitcnt lgkmcnt(0)
    s_barrier''')
    stamp(7, {0})
    BD = AZ; Y = PI
    k(f'''ds_read_b128 {v(BD,4)}, {v(aV)}
    ds_read_b128 {v(BD+4,4)}, {v(vt)}
    ds_read_b128 {v(BD+8,4)}, {v(aV+1)} offset:2048
    ds_read_b128 {v(BD+12,4)}, {v(vt2)} offset:2048
    s_mul_i32 {s(so)}, s2, {SLS}
    s_add_u32 {s(so)}, {s(so)}, {SLOT}
    s_mul_i32 {s(sj)}, s2, {KS}
    s_add_u32 {s(sj)}, {s(sj)}, {KEYS}
    v_mul_u32_u24 {v(vo)}, {KRS}, {v(vl)}''')
    kreads()
    for r in range(2):
        k(f's_waitcnt lgkmcnt({11+3-2*r})')
        for b in range(2): k(f'v_mfma_f32_16x16x32_bf16 {v(Y+8*r+4*b,4)}, {v(BD+8*r,4)}, {v(FB+8*b,4)}, 0')
        k(f's_waitcnt lgkmcnt({11+2-2*r})')
        for b in range(2): k(f'v_mfma_f32_16x16x32_bf16 {v(Y+8*r+4*b,4)}, {v(BD+8*r+4,4)}, {v(FB+8*b+4,4)}, {v(Y+8*r+4*b,4)}')
    S = PR
    k('s_waitcnt lgkmcnt(7)')
    for r in range(2):
        for e in range(8):
            x1 = XF + 8 * r + e
            k(f'v_fmac_f32 {v(x1)}, {v(CK+e)}, {v(Y+8*r+e)}')
            if e == 0: k(f'v_mul_f32 {v(S+2+r)}, {v(x1)}, {v(x1)}\nv_mul_f32 {v(S+4+r)}, {v(x1)}, {v(CK+8)}')
            else: k(f'v_fmac_f32 {v(S+2+r)}, {v(x1)}, {v(x1)}\nv_fmac_f32 {v(S+4+r)}, {v(x1)}, {v(CK+8+e)}')
            if e == 1: k(f'v_add_f32 {v(S+r)}, {v(x1-1)}, {v(x1)}')
            elif e > 1: k(f'v_add_f32 {v(S+r)}, {v(S+r)}, {v(x1)}')
    k(f'''v_permlane32_swap_b32 {v(S+4)}, {v(S+5)}
    v_permlane32_swap_b32 {v(S+2)}, {v(S+3)}
    v_permlane32_swap_b32 {v(S)}, {v(S+1)}
    v_add_f32 {v(S+4)}, {v(S+4)}, {v(S+5)}
    v_add_f32 {v(S+2)}, {v(S+2)}, {v(S+3)}
    v_add_f32 {v(S)}, {v(S)}, {v(S+1)}
    v_mov_b32 {v(S+5)}, {v(S+4)}
    v_permlane16_swap_b32 {v(S)}, {v(S+2)}
    v_permlane16_swap_b32 {v(S+4)}, {v(S+5)}
    v_add_f32 {v(S)}, {v(S)}, {v(S+2)}
    v_add_f32 {v(S+4)}, {v(S+4)}, {v(S+5)}''')
    for r in (8, 4, 2, 1):
        k(f'v_add_f32_dpp {v(S)}, {v(S)}, {v(S)} row_ror:{r} row_mask:0xf bank_mask:0xf\nv_add_f32_dpp {v(S+4)}, {v(S+4)}, {v(S+4)} row_ror:{r} row_mask:0xf bank_mask:0xf')
    k(f'v_mov_b32 {v(S+2)}, {v(S)}\nv_permlane16_swap_b32 {v(S)}, {v(S+2)}')
    k('s_waitcnt lgkmcnt(0)')
    ln_scalars(k, S, S + 2)
    sr = k.salloc(2); sm = k.salloc(2); sk = k.salloc(2); swin = k.salloc()
    k(f'''v_fma_f32 {v(S+4)}, {v(S+4)}, {v(S+2)}, {v(vsb)}
    v_readlane_b32 {s(sr)}, {v(S+2)}, 0
    v_ashrrev_i32 {v(vt)}, 31, {v(S+4)}
    v_readlane_b32 {s(sr+1)}, {v(S+2)}, 32
    v_or_b32 {v(vt)}, 0x80000000, {v(vt)}
    v_readlane_b32 {s(sm)}, {v(S)}, 0
    v_xor_b32 {v(vt)}, {v(vt)}, {v(S+4)}
    v_readlane_b32 {s(sm+1)}, {v(S)}, 32
    v_and_or_b32 {v(vt)}, {v(vt)}, {v(vkm)}, {v(vki)}
    s_mov_b32 exec_lo, 1
    s_mov_b32 exec_hi, 1
    ds_max_u32 {v(vt2)}, {v(vt)}
    s_mov_b64 exec, -1
    v_readlane_b32 {s(sk)}, {v(vt)}, 0
    v_readlane_b32 {s(sk+1)}, {v(vt)}, 32''')
    H = AZ; O = AZ + 16
    def hcalc(r, dst):
        for e in range(8):
            k(f'''v_mul_f32 {v(PI+e)}, {s(sr+r)}, {v(CK+16+e)}
            v_fma_f32 {v(PI+8+e)}, -{s(sm+r)}, {v(CK+16+e)}, {v(CK+24+e)}''')
        for e in range(8): k(f'v_fma_f32 {v(dst+e)}, {v(XF+8*r+e)}, {v(PI+e)}, {v(PI+8+e)}')
    Lb = k.label('rb'); Lc = k.label('rc'); Lnw = k.label('nw')
    k(f'v_mov_b32 {v(S+7)}, {v(vtag)}\ns_waitcnt lgkmcnt(0)\ns_barrier\nds_read_b32 {v(S+6)}, {v(vt2)}')
    stamp(2, {0})
    Lk0 = k.label('k0')
    k(f'''s_cmp_lg_u32 {s(sw)}, 0
    s_cbranch_scc1 {Lk0}
    s_mov_b64 exec, 0xff
    s_waitcnt lgkmcnt(0)
    buffer_store_dwordx2 {v(S+6,2)}, {v(vo)}, {s(rws,4)}, {s(sj)} offen sc1
    s_mov_b64 exec, -1
    {Lk0}:''')
    k(f's_max_u32 {s(st2)}, {s(sk)}, {s(sk+1)}\ns_cmp_gt_u32 {s(sk+1)}, {s(sk)}\ns_cbranch_scc1 {Lb}')
    hcalc(0, H)
    for q in range(4): k(f'v_cvt_pk_bf16_f32 {v(CA+2*q)}, {v(H+2*q)}, {v(H+2*q+1)}')
    k(f's_branch {Lc}\n{Lb}:')
    hcalc(1, H + 8)
    for q in range(4): k(f'v_cvt_pk_bf16_f32 {v(CA+2*q)}, {v(H+8+2*q)}, {v(H+8+2*q+1)}')
    k(f'''{Lc}:
    s_waitcnt lgkmcnt(0)
    v_readfirstlane_b32 {s(swin)}, {v(S+6)}
    s_cmp_lg_u32 {s(swin)}, {s(st2)}
    s_cbranch_scc1 {Lnw}
    buffer_store_dwordx4 {v(CA,4)}, {v(vh0)}, {s(rws,4)}, {s(so)} offen sc1
    buffer_store_dwordx4 {v(CA+4,4)}, {v(vh1)}, {s(rws,4)}, {s(so)} offen sc1
    {Lnw}:''')
    stamp(4, {0})
    Ld_ = k.label('rd'); Le_ = k.label('re')
    k(f's_cmp_gt_u32 {s(sk+1)}, {s(sk)}\ns_cbranch_scc1 {Ld_}')
    hcalc(1, H + 8)
    k(f's_branch {Le_}\n{Ld_}:')
    hcalc(0, H)
    k(f'{Le_}:')
    for e in range(16): k(f'v_fma_f32 {v(O+e)}, {v(CK+32+(e&7))}, {v(H+e)}, {v(XF+e)}')
    for q in range(8): k(f'v_cvt_pk_bf16_f32 {v(H+q)}, {v(O+2*q)}, {v(O+2*q+1)}')
    k(f'''ds_write_b64 {v(vx0)}, {v(H,2)}
    ds_write_b64 {v(vx0)}, {v(H+4,2)} offset:896
    s_mov_b32 exec_lo, 0x0fff0fff
    s_mov_b32 exec_hi, 0x0fff0fff
    ds_write_b64 {v(vx0)}, {v(H+2,2)} offset:512
    ds_write_b64 {v(vx0)}, {v(H+6,2)} offset:{896+512}
    s_bfm_b64 exec, 56, 0
    s_waitcnt lgkmcnt(0)
    ds_read_b128 {v(H,4)}, {v(vx1)}
    ds_read_b128 {v(H+4,4)}, {v(vx1)} offset:896
    s_add_u32 {s(st)}, {s(sxo)}, 57344
    s_waitcnt lgkmcnt(1)
    buffer_store_dwordx4 {v(H,4)}, {v(vh0)}, {s(r3,4)}, {s(sxo)} offen sc1
    s_waitcnt lgkmcnt(0)
    buffer_store_dwordx4 {v(H+4,4)}, {v(vh0)}, {s(r3,4)}, {s(st)} offen sc1
    s_cmp_lg_u32 {s(swin)}, {s(st2)}
    s_cbranch_scc1 {Lend}
    s_waitcnt vmcnt(0)
    v_mov_b32 {v(vt)}, 2048
    s_mov_b64 exec, 1
    buffer_store_dword {v(vtag)}, {v(vt)}, {s(rws,4)}, {s(so)} offen sc1
    s_branch {Lend}''')
    sg = smir; skey = sones
    def modtouch():
        k.srd(r4, pc + 2, 448 * 5376)
        k(f'''s_sub_u32 {s(st)}, {s(sa)}, 16
        s_lshl_b32 {s(st)}, {s(st)}, 1
        s_add_u32 {s(st)}, {s(st)}, {s(sw)}
        s_cmp_eq_u32 {s(sb)}, 7
        s_cselect_b32 {s(st2)}, 37, 52
        s_cselect_b32 {s(scnt)}, 7, 5
        s_mul_i32 {s(st2)}, {s(st2)}, {s(st)}
        s_lshr_b32 {s(st2)}, {s(st2)}, 8
        s_mul_i32 {s(scnt)}, {s(scnt)}, {s(st2)}
        s_sub_u32 {s(st)}, {s(st)}, {s(scnt)}
        s_lshl_b32 {s(scnt)}, {s(st)}, 3
        s_add_u32 {s(scnt)}, {s(scnt)}, {s(sb)}
        s_add_u32 {s(so)}, {s(st)}, 35
        s_cmp_lt_u32 {s(st)}, 5
        s_cselect_b32 {s(scnt)}, {s(scnt)}, {s(so)}
        s_lshl_b32 {s(scnt)}, {s(scnt)}, 7
        s_sub_u32 {s(st2)}, 6, {s(st2)}
        s_mul_i32 {s(st2)}, {s(st2)}, {64*5376}
        s_add_u32 {s(scnt)}, {s(scnt)}, {s(st2)}
        s_cmp_lt_u32 {s(sw)}, {2 if OPT['HELP'] else 0}
        s_cselect_b32 {s(r4+2)}, {s(r4+2)}, 0
        v_mul_u32_u24 {v(vt)}, 5376, {v(vl)}
        buffer_load_dword {v(vt2)}, {v(vt)}, {s(r4,4)}, {s(scnt)} offen''')
    def keymax(KR):
        k(f'v_max_u32 {v(vt2)}, {v(KR)}, {v(KR+2)}')
        for r in (8, 4, 2, 1): k(f'v_max_u32_dpp {v(vt2)}, {v(vt2)}, {v(vt2)} row_ror:{r} row_mask:0xf bank_mask:0xf')
        k(f'''v_readlane_b32 {s(skey)}, {v(vt2)}, 0
        v_readlane_b32 {s(st)}, {v(vt2)}, 16
        v_readlane_b32 {s(st2)}, {v(vt2)}, 32
        v_readlane_b32 {s(sj)}, {v(vt2)}, 48
        s_max_u32 {s(skey)}, {s(skey)}, {s(st)}
        s_max_u32 {s(st2)}, {s(st2)}, {s(sj)}
        s_max_u32 {s(skey)}, {s(skey)}, {s(st2)}''')
    def key2slot(dst):
        k(f'''s_and_b32 {s(sj)}, {s(skey)}, 2047
        s_sub_u32 {s(sj)}, 2047, {s(sj)}
        s_and_b32 {s(st)}, {s(sj)}, 63
        s_sub_u32 {s(st2)}, 64, {s(st)}
        s_and_b32 {s(st2)}, {s(st2)}, 31
        s_cmp_ge_u32 {s(st)}, 32
        s_cselect_b32 {s(st)}, {s(st2)}, {s(st)}
        s_cselect_b32 {s(st2)}, 16, 0
        s_and_b32 {s(dst)}, {s(st)}, 7
        s_add_u32 {s(dst)}, {s(dst)}, {s(st2)}
        s_lshr_b32 {s(st)}, {s(st)}, 3
        s_lshl_b32 {s(st)}, {s(st)}, 5
        s_add_u32 {s(dst)}, {s(dst)}, {s(st)}
        s_lshr_b32 {s(st)}, {s(sj)}, 10
        s_lshl_b32 {s(st)}, {s(st)}, 3
        s_add_u32 {s(dst)}, {s(dst)}, {s(st)}
        s_mul_i32 {s(dst)}, {s(dst)}, {SLS}
        s_add_u32 {s(dst)}, {s(dst)}, {SLOT}''')
    keyloads = lambda KR: f'''buffer_load_dwordx2 {v(KR,2)}, {v(vt)}, {s(rws,4)}, {s(sflag)} offen sc1
        buffer_load_dwordx2 {v(KR+2,2)}, {v(vt)}, {s(rws,4)}, {s(so)} offen sc1'''
    def keysetup(): k(f"v_mul_u32_u24 {v(vt)}, {KS}, {v(vl)}\ns_mul_i32 {s(sflag)}, {s(sb)}, {KRS}\ns_add_u32 {s(sflag)}, {s(sflag)}, {KEYS}\ns_add_u32 {s(so)}, {s(sflag)}, {64*KS}")
    def partials(ACC, va):
        k(f's_mov_b32 exec_lo, 0x00010001\ns_mov_b32 exec_hi, 0x00010001\nds_write_b128 {v(va)}, {v(ACC,4)}\ns_mov_b64 exec, -1')
    k(f'{Lsp}:\ns_waitcnt lgkmcnt(0)'); modtouch(); k(f's_branch {Lend}')
    k.nv = VBASE
    AFR = k.valloc(28, 4); GR = k.valloc(40, 4); ACC = k.valloc(4, 4); E = k.valloc(8, 4); vp = k.valloc(); va1 = k.valloc(); va2 = k.valloc(2)
    def wtouch():
        if not OPT['TOUCHW']: return
        k(f"""s_sub_u32 {s(st)}, {s(sa)}, 16
        s_lshl_b32 {s(st)}, {s(st)}, 3
        s_add_u32 {s(st)}, {s(st)}, {s(sw)}
        s_cmp_ge_u32 {s(st)}, 28
        s_cselect_b32 {s(r3)}, {s(pw+4)}, {s(pw+2)}
        s_cselect_b32 {s(r3+1)}, {s(pw+5)}, {s(pw+3)}
        s_cselect_b32 {s(st2)}, 28, 0
        s_cmp_ge_u32 {s(st)}, 56
        s_cselect_b32 {s(r3)}, {s(pw+6)}, {s(r3)}
        s_cselect_b32 {s(r3+1)}, {s(pw+7)}, {s(r3+1)}
        s_cselect_b32 {s(st2)}, 56, {s(st2)}
        s_cselect_b64 vcc, -1, 0
        s_cselect_b32 {s(scnt)}, 2, 7
        s_mov_b32 {s(r3+2)}, {448*3584}
        s_mov_b32 {s(r3+3)}, 0x00020000
        s_sub_u32 {s(st)}, {s(st)}, {s(st2)}
        s_mul_i32 {s(st)}, {s(st)}, 57344
        s_mul_i32 {s(scnt)}, {s(scnt)}, {s(sb)}
        s_lshr_b32 {s(scnt)}, {s(scnt)}, 1
        s_lshl_b32 {s(scnt)}, {s(scnt)}, 7
        s_add_u32 {s(st)}, {s(st)}, {s(scnt)}
        v_lshrrev_b32 {v(vt)}, 2, {v(vl)}
        v_mul_u32_u24 {v(vt)}, 3584, {v(vt)}
        v_and_b32 {v(vt3)}, 3, {v(vl)}
        v_lshl_add_u32 {v(vt)}, {v(vt3)}, 7, {v(vt)}
        v_mul_u32_u24 {v(vt3)}, 896, {v(vl)}
        v_cndmask_b32 {v(vt)}, {v(vt)}, {v(vt3)}, vcc
        s_waitcnt vmcnt(0)
        s_barrier
        buffer_load_dword {v(vt2)}, {v(vt)}, {s(r3,4)}, {s(st)} offen""")
    def wtrig():
        if not OPT['WTRIG']: return
        L = k.label('wt')
        k(f's_waitcnt lgkmcnt(0)'); tagcalc()
        k(f"""s_cmp_lg_u32 {s(sw)}, 0
        s_cbranch_scc1 {L}
        s_mul_i32 {s(sflag)}, {s(sb)}, {FRS}
        s_add_u32 {s(sflag)}, {s(sflag)}, {FLAG1 + (128 if OPT['WTRIG'] == 1 else 0)*FS}
        v_mul_u32_u24 {v(vt)}, {FS}, {v(vl)}""")
        if OPT['WTRIG'] == 3:
            k(f's_add_u32 {s(so)}, {s(sflag)}, {64*FS}')
            poll(f'buffer_load_dword {v(E)}, {v(vt)}, {s(rws,4)}, {s(sflag)} offen sc1\nbuffer_load_dword {v(E+1)}, {v(vt)}, {s(rws,4)}, {s(so)} offen sc1', [E, E+1], name='pw')
        else: poll(f'buffer_load_dword {v(E)}, {v(vt)}, {s(rws,4)}, {s(sflag)} offen sc1', [E], 42 if OPT['WTRIG'] == 1 else 64, name='pw')
        k.stamp(2)
        k(f'{L}:')
    SCR = 57344; RED = SCR + 4096
    k(f'{LG}:\ns_waitcnt lgkmcnt(0)')
    if OPT['MDELAY'] & 2: nonce(); k('s_waitcnt lgkmcnt(0)'); modtouch()
    else: modtouch(); nonce()
    k.srd(rws, pws, WSB); wtouch(); wtrig()
    k(f'''s_mul_i32 {s(sg)}, {s(sb)}, 7
    s_add_u32 {s(sg)}, {s(sg)}, {s(sa)}
    s_sub_u32 {s(sg)}, {s(sg)}, 16
    s_lshl_b32 {s(st)}, {s(sg)}, 2
    s_xor_b32 {s(sj)}, {s(sw)}, {s(st)}
    s_and_b32 {s(sj)}, {s(sj)}, 7
    s_bitcmp1_b32 {s(sj)}, 2
    s_cselect_b32 {s(r3)}, {s(pw+4)}, {s(pw+2)}
    s_cselect_b32 {s(r3+1)}, {s(pw+5)}, {s(pw+3)}
    s_mov_b32 {s(r3+2)}, {448*3584}
    s_mov_b32 {s(r3+3)}, 0x00020000
    v_lshrrev_b32 {v(vt)}, 2, {v(vl)}
    v_mul_u32_u24 {v(vo)}, 3584, {v(vt)}
    v_and_b32 {v(vt)}, 3, {v(vl)}
    v_lshl_add_u32 {v(vo)}, {v(vt)}, 4, {v(vo)}
    s_and_b32 {s(st)}, {s(sw)}, 3
    s_mul_i32 {s(so)}, {s(st)}, {112*3584}
    s_lshl_b32 {s(st2)}, {s(sg)}, 6
    s_add_u32 {s(so)}, {s(so)}, {s(st2)}
    s_mul_i32 {s(st)}, {s(sj)}, 7168
    s_waitcnt vmcnt(0) lgkmcnt(0)
    s_barrier''')
    for i in range(7):
        k(f's_mov_b32 m0, {s(st)}\ns_add_u32 {s(st)}, {s(st)}, 1024')
        k(f'buffer_load_dwordx4 {v(vo)}, {s(r3,4)}, {s(so)} offen lds\ns_add_u32 {s(so)}, {s(so)}, {16*3584}')
    if not OPT['WTRIG']: tagcalc()
    sact = k.salloc(); sact2 = k.salloc()
    k(f'''v_lshlrev_b32 {v(vt)}, 9, {v(vg)}
    v_bfe_u32 {v(vt2)}, {v(vl)}, 2, 2
    v_lshl_add_u32 {v(vt)}, {v(vt2)}, 6, {v(vt)}
    v_and_b32 {v(vt2)}, 3, {v(vl)}
    v_lshl_add_u32 {v(vt)}, {v(vt2)}, 3, {v(vt)}
    s_and_b32 {s(st)}, {s(sw)}, 1
    s_mul_i32 {s(st)}, {s(st)}, 28672
    s_bfe_u32 {s(st2)}, {s(sw)}, 0x10001
    s_lshl_b32 {s(st2)}, {s(st2)}, 5
    s_add_u32 {s(st)}, {s(st)}, {s(st2)}
    s_lshr_b32 {s(st2)}, {s(sw)}, 2
    s_mul_i32 {s(scnt)}, {s(st2)}, 448
    s_mul_i32 {s(st2)}, {s(st2)}, {224*64}
    s_add_u32 {s(st)}, {s(st)}, {s(st2)}
    v_add_u32 {v(vt)}, {s(st)}, {v(vt)}
    s_add_u32 {s(scnt)}, {s(scnt)}, {SCR}
    v_lshl_add_u32 {v(E+6)}, {v(vg)}, 4, {s(scnt)}
    v_bfe_u32 {v(E+7)}, {v(vl)}, 4, 1
    v_lshlrev_b32 {v(E+7)}, 7, {v(E+7)}
    v_lshl_add_u32 {v(E+7)}, {v(vn)}, 2, {v(E+7)}
    s_lshl_b32 {s(st)}, {s(sw)}, 6
    s_add_u32 {s(st)}, {s(st)}, {RED}
    v_lshl_add_u32 {v(vp)}, {v(vg)}, 4, {s(st)}
    v_mul_u32_u24 {v(va1)}, {ARS}, {v(vg)}
    v_lshl_add_u32 {v(va1)}, {v(vn)}, 3, {v(va1)}
    v_lshlrev_b32 {v(va2)}, 3, {v(vn)}
    s_lshl_b32 {s(sact)}, {s(sg)}, 7
    s_add_u32 {s(sact)}, {s(sact)}, {ACT}
    s_add_u32 {s(sact2)}, {s(sact)}, {4*ARS}
    v_mov_b32 {v(E+5)}, {v(vtag)}
    v_mov_b32 {v(E)}, 0
    v_mov_b32 {v(E+1)}, 0
    v_mov_b32 {v(E+2)}, {RED+1024}
    ds_write_b64 {v(E+2)}, {v(E,2)}
    s_waitcnt vmcnt(0) lgkmcnt(0)
    s_barrier''')
    for i in range(7):
        for hh in range(2): k(f'ds_read_b64_tr_b16 {v(AFR+4*i+2*hh,2)}, {v(vt)} offset:{2048*i+256*hh}')
    Lg1 = k.label('g1'); Lgp = k.label('gp'); Lgf = k.label('gf'); Lw1 = k.label('w1'); Lr = k.label('r'); Lrs = k.label('rs'); Lrx = k.label('rx')
    sprev = k.salloc()
    CTL = RED + 1024
    k(f'''v_mov_b32 {v(va2+1)}, {CTL}
    s_cmp_eq_u32 {s(sw)}, 1
    s_cbranch_scc1 {Lw1}
    s_cmp_lg_u32 {s(sw)}, 0
    s_cbranch_scc1 {Lg1}''')
    k.stamp(5)
    keysetup()
    k(f's_mov_b32 {s(scnt)}, 0'); k(keyloads(GR))
    k(f'''{Lgp}:
    s_add_u32 {s(scnt)}, {s(scnt)}, 1
    s_waitcnt vmcnt(0)
    v_cmp_eq_u32 vcc, {s(stag)}, {v(GR+1)}
    v_cmp_eq_u32 {s(sr,2)}, {s(stag)}, {v(GR+3)}
    v_cndmask_b32 {v(GR+4)}, 0, {v(GR)}, vcc
    v_cndmask_b32 {v(GR+6)}, 0, {v(GR+2)}, {s(sr,2)}
    s_and_b64 vcc, vcc, {s(sr,2)}
    s_cmp_eq_u64 vcc, -1
    s_cbranch_scc1 {Lgf}''')
    k(keyloads(GR)); keymax(GR + 4); key2slot(ss2)
    k(f'''v_mov_b32 {v(GR+8)}, {s(ss2)}
    ds_write_b32 {v(va2+1)}, {v(GR+8)}
    s_cmp_lt_u32 {s(scnt)}, 0x200000
    s_cbranch_scc1 {Lgp}
    {Lgf}:''')
    keymax(GR + 4); key2slot(ss2)
    k(f'''v_mov_b32 {v(GR+8)}, {s(ss2)}
    v_mov_b32 {v(GR+9)}, 1
    ds_write_b64 {v(va2+1)}, {v(GR+8,2)}
    s_branch {Lg1}
    {Lw1}:
    v_lshlrev_b32 {v(vo)}, 4, {v(vl)}
    v_add_u32 {v(E)}, 1024, {v(vo)}
    v_cmp_gt_u32 vcc, 12, {v(vn)}
    v_cndmask_b32 {v(E)}, {v(vo)}, {v(E)}, vcc
    v_lshlrev_b32 {v(E+1)}, 5, {v(vn)}
    v_lshl_add_u32 {v(E+1)}, {v(vg)}, 3, {v(E+1)}
    v_add_u32 {v(E+1)}, {SCR}, {v(E+1)}
    s_mov_b32 {s(sprev)}, 0
    s_mov_b32 {s(scnt)}, 0
    {Lr}:
    ds_read_b64 {v(GR,2)}, {v(va2+1)}
    s_add_u32 {s(scnt)}, {s(scnt)}, 1
    s_cmp_ge_u32 {s(scnt)}, 0x2000000
    s_cbranch_scc1 {Lg1}
    s_waitcnt lgkmcnt(0)
    v_readfirstlane_b32 {s(ss2)}, {v(GR)}
    v_readfirstlane_b32 {s(st)}, {v(GR+1)}
    s_cmp_lg_u32 {s(ss2)}, {s(sprev)}
    s_cbranch_scc1 {Lrs}
    s_cmp_eq_u32 {s(st)}, 0
    s_cbranch_scc1 {Lr}
    s_branch {Lg1}
    {Lrs}:
    buffer_load_dwordx4 {v(GR+4,4)}, {v(vo)}, {s(rws,4)}, {s(ss2)} offen sc1
    buffer_load_dwordx4 {v(GR+8,4)}, {v(E)}, {s(rws,4)}, {s(ss2)} offen sc1
    s_waitcnt vmcnt(0)''')
    check([GR+5, GR+7, GR+9, GR+11])
    k(f'''s_cbranch_vccnz {Lr}
    s_mov_b32 {s(sprev)}, {s(ss2)}
    v_mov_b32 {v(GR+5)}, {v(GR+6)}
    v_mov_b32 {v(GR+9)}, {v(GR+10)}
    ds_write_b64 {v(E+1)}, {v(GR+4,2)}
    s_mov_b32 exec_lo, 0x0fff0fff
    s_mov_b32 exec_hi, 0x0fff0fff
    ds_write_b64 {v(E+1)}, {v(GR+8,2)} offset:512
    s_mov_b64 exec, -1
    s_branch {Lr}
    {Lg1}:
    s_waitcnt lgkmcnt(0)
    s_barrier''')
    k.stamp(6)
    for i in range(7): k(f'ds_read_b128 {v(GR+12+4*i,4)}, {v(E+6)} offset:{64*i}')
    for i in range(7):
        k(f's_waitcnt lgkmcnt({6-i})')
        k(f'v_mfma_f32_16x16x32_bf16 {v(ACC,4)}, {v(AFR+4*i,4)}, {v(GR+12+4*i,4)}, {"0" if i == 0 else v(ACC,4)}')
    partials(ACC, vp)
    k(f'''s_waitcnt lgkmcnt(0)
    s_barrier
    s_cmp_lg_u32 {s(sw)}, 0
    s_cbranch_scc1 {Lend}
    ds_read_b32 {v(E)}, {v(E+7)} offset:{RED}
    ds_read_b32 {v(E+1)}, {v(E+7)} offset:{RED+256}
    ds_read_b32 {v(E+2)}, {v(E+7)} offset:{RED+64}
    ds_read_b32 {v(E+3)}, {v(E+7)} offset:{RED+64+256}
    s_waitcnt lgkmcnt(2)
    v_add_f32 {v(E)}, {v(E)}, {v(E+1)}''')
    rb1(k, E, E)
    k(f'''v_mul_f32 {v(E+1)}, 0xbfb8aa3b, {v(E)}
    v_exp_f32 {v(E+1)}, {v(E+1)}
    s_waitcnt lgkmcnt(0)
    v_add_f32 {v(E+2)}, {v(E+2)}, {v(E+3)}
    v_add_f32 {v(E+1)}, 1.0, {v(E+1)}
    v_rcp_f32 {v(E+1)}, {v(E+1)}''')
    rb1(k, E + 2, E + 2)
    k(f'v_mul_f32 {v(E)}, {v(E)}, {v(E+1)}')
    rb1(k, E, E)
    k(f'''v_mul_f32 {v(E)}, {v(E)}, {v(E+2)}
    v_mov_b32_dpp {v(E+1)}, {v(E)} quad_perm:[1,0,3,2] row_mask:0xf bank_mask:0xf
    v_cvt_pk_bf16_f32 {v(E+4)}, {v(E)}, {v(E+1)}
    ds_bpermute_b32 {v(E+4)}, {v(va2)}, {v(E+4)}
    s_waitcnt lgkmcnt(0)
    buffer_store_dwordx2 {v(E+4,2)}, {v(va1)}, {s(rws,4)}, {s(sact)} offen sc1
    buffer_store_dwordx2 {v(E+4,2)}, {v(va1)}, {s(rws,4)}, {s(sact2)} offen sc1''')
    k.stamp(7)
    k(f's_branch {Lend}')
    sro = sprev
    k(f'{LD}:\ns_waitcnt lgkmcnt(0)')
    if OPT['MDELAY'] & 2: nonce(); k('s_waitcnt lgkmcnt(0)'); modtouch()
    else: modtouch(); nonce()
    k.srd(rws, pws, WSB); wtouch(); wtrig()
    k(f's_lshl_b32 {s(sg)}, {s(sb)}, 2\ns_add_u32 {s(sg)}, {s(sg)}, {s(sa)}\ns_sub_u32 {s(sg)}, {s(sg)}, 23')
    k.srd(r3, pw + 6, 1792 * 896); k.srd(r4, pout, 1835008)
    k(f'''v_lshrrev_b32 {v(vt)}, 1, {v(vl)}
    v_mul_u32_u24 {v(vo)}, 896, {v(vt)}
    v_and_b32 {v(vt)}, 1, {v(vl)}
    v_lshl_add_u32 {v(vo)}, {v(vt)}, 4, {v(vo)}
    s_lshl_b32 {s(st)}, {s(sg)}, 1
    s_add_u32 {s(ss2)}, {s(sw)}, {s(st)}
    s_and_b32 {s(ss2)}, {s(ss2)}, 7
    s_mul_i32 {s(so)}, {s(ss2)}, {224*896}
    s_lshl_b32 {s(st2)}, {s(sg)}, 5
    s_add_u32 {s(so)}, {s(so)}, {s(st2)}
    s_mul_i32 {s(st)}, {s(sw)}, 7168
    v_lshlrev_b32 {v(E+4)}, 1, {v(vn)}
    s_mov_b32 {s(sro)}, {HUGE}
    s_waitcnt vmcnt(0) lgkmcnt(0)
    s_barrier''')
    for i in range(7):
        k(f's_mov_b32 m0, {s(st)}\ns_add_u32 {s(st)}, {s(st)}, 1024')
        k(f'buffer_load_dwordx4 {v(vo)}, {s(r3,4)}, {s(so)} offen lds\ns_add_u32 {s(so)}, {s(so)}, {32*896}')
    if not OPT['WTRIG']: tagcalc()
    k(f'''v_lshlrev_b32 {v(vt)}, 8, {v(vg)}
    v_lshl_add_u32 {v(vt)}, {v(vn)}, 3, {v(vt)}
    s_mul_i32 {s(st)}, {s(sw)}, 7168
    v_add_u32 {v(vt)}, {s(st)}, {v(vt)}
    s_mul_i32 {s(sact)}, {s(ss2)}, 896
    s_add_u32 {s(sact)}, {s(sact)}, {ACT}
    s_mul_i32 {s(st)}, {s(sb)}, {ARS}
    s_add_u32 {s(sact)}, {s(sact)}, {s(st)}
    s_lshl_b32 {s(st)}, {s(sw)}, 6
    s_add_u32 {s(st)}, {s(st)}, {RED}
    v_lshl_add_u32 {v(vp)}, {v(vg)}, 4, {s(st)}
    v_lshlrev_b32 {v(va2)}, 2, {v(vn)}
    s_waitcnt vmcnt(0)''')
    for i in range(7):
        for hh in range(2): k(f'ds_read_b64_tr_b16 {v(AFR+4*i+2*hh,2)}, {v(vt)} offset:{1024*i+128*hh}')
    Ld1 = k.label('d1')
    k(f's_cmp_lg_u32 {s(sw)}, 0\ns_cbranch_scc1 {Ld1}')
    k.stamp(5)
    keysetup()
    poll(keyloads(GR), [GR+1, GR+3], name='pk')
    keymax(GR); key2slot(ss2)
    k(f'''s_lshl_b32 {s(st)}, {s(sg)}, 6
    s_add_u32 {s(so)}, {s(st)}, {MODV+5*1792}
    v_mov_b32 {v(E+7)}, 0
    buffer_load_dword {v(E+6)}, {v(va2)}, {s(rws,4)}, {s(so)} offen sc1
    s_and_b32 {s(st)}, {s(skey)}, 0xfffff800
    s_or_b32 {s(st)}, {s(st)}, 0x400
    s_ashr_i32 {s(st2)}, {s(st)}, 31
    s_not_b32 {s(st2)}, {s(st2)}
    s_or_b32 {s(st2)}, {s(st2)}, 0x80000000
    s_xor_b32 {s(st)}, {s(st)}, {s(st2)}
    v_mov_b32 {v(E+2)}, {s(st)}''')
    rb1(k, E + 2, E + 2)
    k(f'''v_mul_f32 {v(E+2)}, 0xbfb8aa3b, {v(E+2)}
    v_exp_f32 {v(E+2)}, {v(E+2)}
    v_add_f32 {v(E+2)}, 1.0, {v(E+2)}
    v_rcp_f32 {v(E+2)}, {v(E+2)}''')
    rb1(k, E + 2, E + 2)
    k(f's_add_u32 {s(sflag)}, {s(ss2)}, 2048')
    poll(f'buffer_load_dword {v(E+3)}, {v(E+7)}, {s(rws,4)}, {s(sflag)} offen sc1', [E+3], name='pf')
    k(f'''s_mul_i32 {s(sro)}, {s(sj)}, 896
    s_lshl_b32 {s(st)}, {s(sg)}, 5
    s_add_u32 {s(sro)}, {s(sro)}, {s(st)}
    buffer_load_ushort {v(E)}, {v(E+4)}, {s(r4,4)}, {s(sro)} offen sc1
    {Ld1}:''')
    k.stamp(6)
    k(f'v_lshlrev_b32 {v(vt)}, 4, {v(vl)}\ns_lshl_b32 {s(st)}, {s(sw)}, 9\ns_add_u32 {s(st)}, {s(st)}, {SCR}\nv_lshl_add_u32 {v(vo)}, {v(vl)}, 3, {s(st)}\nv_lshl_add_u32 {v(GR+6)}, {v(vg)}, 4, {s(st)}')
    poll(f'buffer_load_dwordx4 {v(GR,4)}, {v(vt)}, {s(rws,4)}, {s(sact)} offen sc1', [GR+1, GR+3], 56, name='pg')
    k.stamp(7)
    k(f'v_mov_b32 {v(GR+1)}, {v(GR+2)}\nds_write_b64 {v(vo)}, {v(GR,2)}\ns_waitcnt lgkmcnt(0)')
    for i in range(7): k(f'ds_read_b128 {v(GR+8+4*i,4)}, {v(GR+6)} offset:{64*i}')
    for i in range(7):
        k(f's_waitcnt lgkmcnt({6-i})')
        k(f'v_mfma_f32_16x16x32_bf16 {v(ACC,4)}, {v(AFR+4*i,4)}, {v(GR+8+4*i,4)}, {"0" if i == 0 else v(ACC,4)}')
    partials(ACC, vp)
    k(f'''s_waitcnt lgkmcnt(0)
    s_barrier
    s_cmp_lg_u32 {s(sw)}, 0
    s_cbranch_scc1 {Lend}''')
    for i in range(8): k(f'ds_read_b32 {v(GR+i)}, {v(va2)} offset:{RED+64*i}')
    k(f'v_lshlrev_b32 {v(E)}, 16, {v(E)}')
    for i in (1, 3, 5, 7): k(f's_waitcnt lgkmcnt({7-i})\nv_add_f32 {v(GR+i-1)}, {v(GR+i-1)}, {v(GR+i)}')
    k(f'v_add_f32 {v(GR)}, {v(GR)}, {v(GR+2)}\nv_add_f32 {v(GR+4)}, {v(GR+4)}, {v(GR+6)}\nv_add_f32 {v(GR)}, {v(GR)}, {v(GR+4)}')
    rb1(k, GR, GR); k(f'v_mul_f32 {v(GR)}, {v(GR)}, {v(E+2)}'); rb1(k, GR, GR)
    k(f'''v_fma_f32 {v(GR)}, {v(GR)}, {v(E+6)}, {v(E)}
    v_cvt_pk_bf16_f32 {v(GR)}, {v(GR)}, {v(GR)}
    s_bfm_b64 exec, 16, 0
    buffer_store_short {v(GR)}, {v(E+4)}, {s(r4,4)}, {s(sro)} offen sc1
    s_cmp_lg_u32 {s(sg)}, 0
    s_cbranch_scc1 {Lend}
    s_mov_b64 exec, 1
    v_mov_b32 {v(vt)}, {NONCE}
    buffer_store_dword {v(vtag)}, {v(vt)}, {s(rws,4)}, 0 offen sc1''')
    k(f'{Lend}:'); k.dump(); k('s_endpgm')
    return k
if __name__ == '__main__':
    K.diag = '--diag' in sys.argv
    for a in sys.argv[2:]:
        if '=' in a:
            kk, vv = a.split('='); assert kk in OPT; OPT[kk] = int(vv) if vv.lstrip('-').isdigit() else vv
    k = gen()
    k.lines, n = hazard.fix(k.lines); print(k.name, 'vgpr', k.vmax, 'sgpr', k.ns, 'nops', n, 'lines', len(k.lines), 'lds', LDS)
    open(sys.argv[1], 'w').write(emit([k], [(NAME, 256, 512, LDS)]))
```

```python
import sys, struct
from asmlib import *
import hazard
NAME = 'adaLN_cond__spectral_fnet__moe_arch_mod__prompt_kernel'
MODV = 0x1C0000; NONCE = 0x1C8000; FLAG1 = 0x280000; FRS = 0x6000; KEYS = 0x2B0000; KRS = 0x4000; ACT = 0x1F0000; ARS = 0x2000; SLOT = 0x200000; SLS = 4096
WSB = 0x300000
HUGE = 0x3ff00000
OPT = dict(ST=0, FS=32, KS=32, SLEEP=1, HELP=1, EARLY=3, LATE=4, WTRIG=0, MDELAY=3, PD=1, TOUCHW=0, PREP=0, FW=0, DAFIRST=1, SLOW=2, NPW=4, OUT='plain', MFIRST=0)
ZS = 928
UB = 64 * ZS; CB_ = UB + 32768; CAB = CB_ + 5 * 2048; MISC = CAB + 3584; XB = MISC + 64
LDS = XB + 16 * 896 + 128
XS = 288
def fl(x): return '0x%08x' % struct.unpack('<I', struct.pack('<f', x))[0]
def rb1(k, dst, src): k(f'v_cvt_pk_bf16_f32 {v(dst)}, {v(src)}, {v(src)}\nv_and_b32 {v(dst)}, 0xffff0000, {v(dst)}')
def ln_scalars(k, vm, vr):
    k(f'''v_mul_f32 {v(vm)}, {fl(1/448)}, {v(vm)}
    v_mul_f32 {v(vr)}, {fl(1/448)}, {v(vr)}
    v_fma_f32 {v(vr)}, -{v(vm)}, {v(vm)}, {v(vr)}
    v_max_f32 {v(vr)}, 0, {v(vr)}
    v_add_f32 {v(vr)}, 0x3727c5ac, {v(vr)}
    v_rsq_f32 {v(vr)}, {v(vr)}
    v_mul_f32 {v(vm)}, {v(vm)}, {v(vr)}''')

def gen():
    FS = OPT['FS']; KS = OPT['KS']; SLEEP = OPT['SLEEP']
    k = K(NAME); k.ns = 3; k.nv = 1
    def stamp(i, mode):
        if OPT['ST'] in mode: k.stamp(i)
    Lend = k.label('end'); Lmod = k.label('mod'); LG = k.label('G'); LD = k.label('D'); Lsp = k.label('sp')
    k.stamp(0, True); k.stamp(1)
    px = k.salloc(2); pws = k.salloc(2); pw = k.salloc(8); pc = k.salloc(4); pout = k.salloc(2)
    stag = k.salloc(); sw = k.salloc(); sa = k.salloc(); sb = k.salloc(); st = k.salloc(); st2 = k.salloc(); so = k.salloc(); scnt = k.salloc()
    sj = k.salloc(); ss2 = k.salloc(); sones = k.salloc(); sflag = k.salloc()
    rx = k.salloc(4); rws = k.salloc(4); r3 = k.salloc(4); r4 = k.salloc(4)
    vl = k.valloc(); vg = k.valloc(); vn = k.valloc(); vt = k.valloc(); vt2 = k.valloc(); vo = k.valloc(); vtag = k.valloc(); vt3 = k.valloc()
    VBASE = k.nv
    k(f'''s_load_dwordx2 {s(px,2)}, s[0:1], 0
    s_load_dwordx4 {s(pc,4)}, s[0:1], 80
    s_load_dwordx2 {s(pws,2)}, s[0:1], 112
    s_load_dwordx8 {s(pw,8)}, s[0:1], 48
    s_load_dwordx2 {s(pout,2)}, s[0:1], 96
    v_lshrrev_b32 {v(vt)}, 6, v0
    v_and_b32 {v(vl)}, 63, v0
    v_readfirstlane_b32 {s(sw)}, {v(vt)}
    v_lshrrev_b32 {v(vg)}, 4, {v(vl)}
    v_and_b32 {v(vn)}, 15, {v(vl)}
    s_lshr_b32 {s(sa)}, s2, 3
    s_and_b32 {s(sb)}, s2, 7
    s_cmp_lt_u32 {s(sa)}, 16
    s_cbranch_scc1 {k.name}_S1
    s_cmp_ge_u32 s2, 256
    s_cbranch_scc1 {Lend}
    s_cmp_lt_u32 {s(sa)}, 23
    s_cbranch_scc1 {LG}
    s_sub_u32 {s(ss2)}, s2, 216
    s_cmp_ge_u32 {s(sa)}, 27
    s_cbranch_scc1 {Lmod}
    s_cmp_lg_u32 {s(sb)}, 7
    s_cbranch_scc1 {LD}
    s_add_u32 {s(ss2)}, {s(sa)}, 17
    s_cmp_ge_u32 {s(sa)}, 25
    s_cbranch_scc1 {Lsp}''')
    def check(check_regs):
        r0 = check_regs[0]
        if len(check_regs) == 1: k(f'v_cmp_ne_u32 vcc, {s(stag)}, {v(r0)}')
        else:
            k(f'v_xor_b32 {v(vt3)}, {s(stag)}, {v(r0)}')
            for r in check_regs[1:]: k(f'v_xor_b32 {v(vt2)}, {s(stag)}, {v(r)}\nv_or_b32 {v(vt3)}, {v(vt3)}, {v(vt2)}')
            k(f'v_cmp_ne_u32 vcc, 0, {v(vt3)}')
    def poll(load, check_regs, nlanes=64, name='poll', wait='vmcnt(0)'):
        Lp = k.label(name); Ld = k.label(name + 'd')
        k(f's_mov_b32 {s(scnt)}, 0')
        if nlanes < 64: k(f's_bfm_b64 exec, {nlanes}, 0')
        k(f'{Lp}:'); k(load); k(f's_add_u32 {s(scnt)}, {s(scnt)}, 1\ns_waitcnt {wait}')
        check(check_regs)
        k(f's_cbranch_vccz {Ld}')
        if SLEEP: k(f's_sleep {SLEEP}')
        k(f's_cmp_lt_u32 {s(scnt)}, 0x200000\ns_cbranch_scc1 {Lp}\n{Ld}:')
        if nlanes < 64: k('s_mov_b64 exec, -1')
    def ppoll(loadf, nld, regsf, depth, nlanes=64, name='pp'):
        if depth == 1: return poll(loadf(0), regsf(0), nlanes, name)
        Lp = k.label(name); Ld = k.label(name + 'd')
        k(f's_mov_b32 {s(scnt)}, 0')
        if nlanes < 64: k(f's_bfm_b64 exec, {nlanes}, 0')
        for i in range(depth - 1): k(loadf(i)); k('s_sleep 1')
        k(f'{Lp}:')
        for i in range(depth):
            k(loadf((i + depth - 1) % depth)); k(f's_waitcnt vmcnt({nld*(depth-1)})'); check(regsf(i)); k(f's_cbranch_vccz {Ld}\ns_sleep 1')
        k(f's_add_u32 {s(scnt)}, {s(scnt)}, 1\ns_cmp_lt_u32 {s(scnt)}, 0x100000\ns_cbranch_scc1 {Lp}\n{Ld}:')
        if nlanes < 64: k('s_mov_b64 exec, -1')
    assert st2 == st + 1 and st % 2 == 0
    def nonce(): k(f's_add_u32 {s(st)}, {s(pws)}, {NONCE}\ns_addc_u32 {s(st2)}, {s(pws+1)}, 0\ns_load_dword {s(stag)}, {s(st,2)}, 0')
    def tagcalc(): k(f's_mul_i32 {s(stag)}, {s(stag)}, 0x9E3779B1\ns_add_u32 {s(stag)}, {s(stag)}, 0x7F4A7C15\nv_mov_b32 {v(vtag)}, {s(stag)}')
    def flagprep(vf): k(f's_mul_i32 {s(sflag)}, {s(sflag)}, {FS}\ns_add_u32 {s(sflag)}, {s(sflag)}, {FLAG1}\nv_mul_u32_u24 {v(vf)}, {FRS}, {v(vl)}')
    def sendflag(vf): k(f's_mov_b64 exec, 0xff\nbuffer_store_dword {v(vtag)}, {v(vf)}, {s(rws,4)}, {s(sflag)} offen sc1\ns_mov_b64 exec, -1')
    X = k.valloc(28, 4); C = k.valloc(8); T = k.valloc(8); A = k.valloc(8); aM = k.valloc(); vf = k.valloc()
    sm_ = ss2; sadd = sj; smul = sones
    k(f'{Lmod}:')
    k(f'''s_mul_i32 {s(st)}, {s(sw)}, 56
    v_lshrrev_b32 {v(vt)}, 3, {v(vl)}
    v_add_u32 {v(vt2)}, {s(st)}, {v(vt)}
    v_mul_u32_u24 {v(vo)}, 5376, {v(vt2)}
    v_and_b32 {v(vt2)}, 7, v0
    v_lshl_add_u32 {v(vo)}, {v(vt2)}, 4, {v(vo)}
    v_add_u32 {v(vt3)}, {s(st)}, {v(vl)}
    v_lshlrev_b32 {v(vt3)}, 1, {v(vt3)}
    s_lshl_b32 {s(so)}, {s(sm_)}, 7
    s_waitcnt lgkmcnt(0)''')
    k.srd(r3, pc, 896); k.srd(r4, pc + 2, 448 * 5376)
    if OPT['MDELAY'] & 1: nonce(); k('s_waitcnt lgkmcnt(0)')
    k(f'buffer_load_ushort {v(C+7)}, {v(vt3)}, {s(r3,4)}, 0 offen')
    for i in range(7):
        k(f'buffer_load_dwordx4 {v(X+4*i,4)}, {v(vo)}, {s(r4,4)}, {s(so)} offen')
        if i < 6: k(f's_add_u32 {s(so)}, {s(so)}, {8*5376}')
    if not OPT['MDELAY'] & 1: nonce()
    k.srd(rws, pws, WSB)
    k.stamp(2)
    k(f'''v_lshlrev_b32 {v(vt3)}, 2, {v(vt)}
    v_lshrrev_b32 {v(vt)}, 6, v0
    v_lshlrev_b32 {v(aM)}, 8, {v(vt)}
    v_lshl_add_u32 {v(aM)}, {v(vt2)}, 5, {v(aM)}
    v_bfe_u32 {v(vt2)}, v0, 4, 1
    v_lshl_add_u32 {v(aM)}, {v(vt2)}, 3, {v(aM)}
    v_bfe_u32 {v(vt2)}, v0, 5, 1
    v_lshl_add_u32 {v(aM)}, {v(vt2)}, 2, {v(aM)}
    s_mul_i32 {s(st2)}, {s(sm_)}, 37
    s_lshr_b32 {s(st2)}, {s(st2)}, 8
    s_cmp_eq_u32 {s(st2)}, 0
    s_cselect_b32 {s(smul)}, 0x45000000, 1.0
    s_cmp_eq_u32 {s(st2)}, 1
    s_cselect_b32 {s(sadd)}, 1.0, 0
    s_cmp_eq_u32 {s(st2)}, 4
    s_cselect_b32 {s(sadd)}, 1.0, {s(sadd)}
    s_lshl_b32 {s(so)}, {s(sm_)}, 8
    s_add_u32 {s(so)}, {s(so)}, {MODV}
    s_add_u32 {s(sflag)}, {s(sm_)}, 128
    v_lshlrev_b32 {v(vo)}, 2, v0''')
    flagprep(vf)
    k(f'''s_waitcnt vmcnt(7)
    v_lshlrev_b32 {v(C+7)}, 16, {v(C+7)}
    v_mul_f32 {v(T)}, 0xbfb8aa3b, {v(C+7)}
    v_exp_f32 {v(T)}, {v(T)}
    v_add_f32 {v(T)}, 1.0, {v(T)}
    v_rcp_f32 {v(T)}, {v(T)}
    v_mul_f32 {v(C+7)}, {v(C+7)}, {v(T)}''')
    rb1(k, C + 7, C + 7)
    for i in range(7): k(f'ds_bpermute_b32 {v(C+i)}, {v(vt3)}, {v(C+7)} offset:{32*i}')
    k('s_waitcnt lgkmcnt(0)'); tagcalc()
    for i in range(7):
        k(f's_waitcnt vmcnt({6-i})')
        for q in range(4):
            k(f'v_lshlrev_b32 {v(T+2*(q&1))}, 16, {v(X+4*i+q)}\nv_and_b32 {v(T+2*(q&1)+1)}, 0xffff0000, {v(X+4*i+q)}')
            if i == 0: k(f'v_mul_f32 {v(A+2*q)}, {v(T+2*(q&1))}, {v(C)}\nv_mul_f32 {v(A+2*q+1)}, {v(T+2*(q&1)+1)}, {v(C)}')
            else: k(f'v_fmac_f32 {v(A+2*q)}, {v(T+2*(q&1))}, {v(C+i)}\nv_fmac_f32 {v(A+2*q+1)}, {v(T+2*(q&1)+1)}, {v(C+i)}')
    k.stamp(4)
    for q in range(4): k(f'v_permlane32_swap_b32 {v(A+2*q)}, {v(A+2*q+1)}')
    for q in range(4): k(f'v_add_f32 {v(A+2*q)}, {v(A+2*q)}, {v(A+2*q+1)}')
    for p in range(2): k(f'v_permlane16_swap_b32 {v(A+4*p)}, {v(A+4*p+2)}')
    for p in range(2): k(f'v_add_f32 {v(A+4*p)}, {v(A+4*p)}, {v(A+4*p+2)}')
    for p in range(2): k(f'v_add_f32_dpp {v(A+4*p)}, {v(A+4*p)}, {v(A+4*p)} row_ror:8 row_mask:0xf bank_mask:0xf')
    k(f'''ds_write_b32 {v(aM)}, {v(A)}
    ds_write_b32 {v(aM)}, {v(A+4)} offset:16
    s_waitcnt lgkmcnt(0)
    s_barrier
    s_cmp_lg_u32 {s(sw)}, 0
    s_cbranch_scc1 {Lend}''')
    for i in range(8): k(f'ds_read_b32 {v(T+i)}, {v(vo)} offset:{256*i}')
    for i in (1, 3, 5, 7): k(f's_waitcnt lgkmcnt({7-i})\nv_add_f32 {v(T+i-1)}, {v(T+i-1)}, {v(T+i)}')
    k(f'v_add_f32 {v(T)}, {v(T)}, {v(T+2)}\nv_add_f32 {v(T+4)}, {v(T+4)}, {v(T+6)}\nv_add_f32 {v(T)}, {v(T)}, {v(T+4)}')
    rb1(k, T, T); k(f'v_add_f32 {v(T)}, {s(sadd)}, {v(T)}'); rb1(k, T, T)
    k(f'''v_mul_f32 {v(T)}, {s(smul)}, {v(T)}
    buffer_store_dword {v(T)}, {v(vo)}, {s(rws,4)}, {s(so)} offen sc1
    s_waitcnt vmcnt(0)''')
    sendflag(vf)
    k(f's_branch {Lend}')
    k.nv = VBASE
    F0 = k.valloc(16, 4); FB = k.valloc(16, 4); AD = k.valloc(24, 4); XF = k.valloc(16, 4)
    vstep = k.valloc(); vbase = k.valloc(); aU = k.valloc(4); aV = k.valloc(2); aT = k.valloc(); vx0 = k.valloc(); vx1 = k.valloc(); aC = k.valloc(); aK = k.valloc()
    vh0 = k.valloc(); vh1 = k.valloc(); vki = k.valloc(); vkm = k.valloc(); vsb = k.valloc(); vf = k.valloc()
    AZ = k.valloc(32, 4); PR = k.valloc(16, 4); PI = k.valloc(16, 4); CA = k.valloc(16, 4); CK = k.valloc(40, 4); BP = k.valloc(16, 4)
    XR = BP
    Fre0 = F0; Fim0 = F0 + 4; Fre1 = F0 + 8; Fim1 = F0 + 12
    X = AZ; T = PR; BF = CA; a1 = CA + 8; a2 = CA + 10; vs1 = CA + 12; aW = CA + 13; aR = CA + 14; aZ = CA + 15; aT1 = CK; aT2 = CK + 1; TG = PI
    soff = k.salloc(7); sslot = k.salloc(); st0 = k.salloc(); smir = k.salloc(); sxl = k.salloc(); sxo = k.salloc(); sz1 = k.salloc(); sz2 = k.salloc()
    k(f'''{k.name}_S1:
    s_lshr_b32 {s(ss2)}, {s(sa)}, 2
    s_lshl_b32 {s(st)}, {s(sb)}, 2
    s_add_u32 {s(ss2)}, {s(ss2)}, {s(st)}
    s_and_b32 {s(sj)}, {s(sa)}, 3
    s_lshl_b32 {s(sj)}, {s(sj)}, 1
    s_mul_i32 {s(so)}, {s(ss2)}, 896
    s_lshl_b32 {s(st)}, {s(sj)}, 7
    s_add_u32 {s(soff)}, {s(so)}, {s(st)}
    s_add_u32 {s(st2)}, {s(so)}, 896''')
    for i in range(1, 7):
        k(f's_add_u32 {s(soff+i)}, {s(soff+i-1)}, 128\ns_cmp_ge_u32 {s(soff+i)}, {s(st2)}\ns_cselect_b32 {s(soff+i)}, {s(so)}, {s(soff+i)}')
    k(f'''s_add_u32 {s(st)}, {s(sw)}, {s(sj)}
    s_and_b32 {s(st)}, {s(st)}, 7
    s_lshl_b32 {s(st)}, {s(st)}, 3
    v_lshrrev_b32 {v(vs1)}, 3, {v(vl)}
    v_add_u32 {v(vs1)}, {s(st)}, {v(vs1)}
    v_mul_u32_u24 {v(vt)}, 28672, {v(vs1)}
    v_and_b32 {v(vt2)}, 7, v0
    v_lshl_add_u32 {v(vo)}, {v(vt2)}, 4, {v(vt)}
    s_waitcnt lgkmcnt(0)''')
    k.srd(rx, px, 1835008)
    def xloads():
        for i in range(7): k(f'buffer_load_dwordx4 {v(X+4*i,4)}, {v(vo)}, {s(rx,4)}, {s(soff+i)} offen')
    Lx1 = k.label('x1'); Lx2 = k.label('x2')
    k(f"s_cmp_ge_u32 {s(sw)}, {OPT['LATE']}\ns_cbranch_scc1 {Lx1}"); xloads(); k(f'{Lx1}:')
    nonce(); k.srd(rws, pws, WSB)
    stamp(2, {1})
    k(f'''s_lshl_b32 {s(sflag)}, {s(ss2)}, 2
    s_lshr_b32 {s(st)}, {s(sj)}, 1
    s_add_u32 {s(sflag)}, {s(sflag)}, {s(st)}
    s_mov_b32 {s(sones)}, 0x3f803f80
    s_and_b32 {s(st)}, {s(sw)}, 1
    s_lshl_b32 {s(st)}, {s(st)}, 4
    v_add_u32 {v(vt3)}, {s(st)}, {v(vn)}
    v_cvt_f32_u32 {v(vstep)}, {v(vt3)}
    s_bitcmp1_b32 {s(sw)}, 1
    s_cselect_b32 {s(st)}, {fl(0.25)}, 0
    s_cselect_b32 {s(st2)}, {fl(32.0)}, 0
    v_mov_b32 {v(vbase)}, {s(st)}
    v_mov_b32 {v(vt)}, {s(st2)}
    v_cmp_eq_u32 vcc, 0, {v(vt3)}
    v_cndmask_b32 {v(vstep)}, {v(vstep)}, {v(vt)}, vcc
    v_cndmask_b32 {v(vbase)}, {v(vbase)}, 0, vcc
    v_mul_f32 {v(vstep)}, {fl(1/64)}, {v(vstep)}
    v_lshlrev_b32 {v(vt)}, 2, {v(vg)}
    v_cvt_f32_u32 {v(vt)}, {v(vt)}
    v_fmac_f32 {v(vbase)}, {v(vstep)}, {v(vt)}''')
    for e in range(16):
        o = 32 * (e >> 3) + 16 * ((e >> 2) & 1) + (e & 3)
        k(f'v_fmamk_f32 {v(T+e)}, {v(vstep)}, {fl(o)}, {v(vbase)}')
    for e in range(16): k(f'v_cos_f32 {v(T+e)}, {v(T+e)}')
    for e in range(8): k(f'v_cvt_pk_bf16_f32 {v(BF+e)}, {v(T+2*e)}, {v(T+2*e+1)}')
    flagprep(vf)
    k(f'''v_mov_b32 {v(a1)}, 0
    v_mov_b32 {v(a1+1)}, 0
    v_mov_b32 {v(a2)}, 0
    v_mov_b32 {v(a2+1)}, 0
    v_mov_b32 {v(vt)}, {MISC}
    ds_write_b128 {v(vt)}, {v(a1,4)}
    v_mul_u32_u24 {v(aW)}, {XS}, {v(vs1)}
    v_and_b32 {v(vt2)}, 7, v0
    v_lshl_add_u32 {v(aW)}, {v(vt2)}, 4, {v(aW)}
    v_lshrrev_b32 {v(vt)}, 2, {v(vl)}
    v_mul_u32_u24 {v(aR)}, {XS}, {v(vt)}
    v_and_b32 {v(vt3)}, 3, {v(vl)}
    v_lshl_add_u32 {v(aR)}, {v(vt3)}, 3, {v(aR)}
    s_lshr_b32 {s(st)}, {s(sw)}, 2
    s_lshl_b32 {s(st)}, {s(st)}, 7
    v_add_u32 {v(aR)}, {s(st)}, {v(aR)}
    v_lshrrev_b32 {v(vt)}, 3, {v(vl)}
    v_mul_u32_u24 {v(aZ)}, 57344, {v(vt)}
    v_lshl_add_u32 {v(aZ)}, {v(vt2)}, 4, {v(aZ)}
    s_mul_i32 {s(scnt)}, {s(sw)}, 2304
    s_add_u32 {s(scnt)}, {s(scnt)}, {64*XS}
    v_mul_u32_u24 {v(aT1)}, 144, {v(vn)}
    v_lshl_add_u32 {v(aT1)}, {v(vg)}, 3, {v(aT1)}
    v_add_u32 {v(aT1)}, {s(scnt)}, {v(aT1)}
    v_mul_u32_u24 {v(aT2)}, 144, {v(vt)}
    v_lshl_add_u32 {v(aT2)}, {v(vt2)}, 4, {v(aT2)}
    v_add_u32 {v(aT2)}, {s(scnt)}, {v(aT2)}
    s_bfe_u32 {s(st2)}, {s(sw)}, 0x10001
    s_mul_i32 {s(st2)}, {s(st2)}, 28672
    s_add_u32 {s(sz1)}, {s(soff)}, {s(st2)}
    s_add_u32 {s(sz1)}, {s(sz1)}, {s(st)}
    s_and_b32 {s(st2)}, {s(sw)}, 1
    s_mul_i32 {s(st2)}, {s(st2)}, {16*57344}
    s_add_u32 {s(sz1)}, {s(sz1)}, {s(st2)}
    s_lshr_b32 {s(st)}, {s(sw)}, 2
    s_add_u32 {s(st)}, {s(st)}, {s(sj)}
    s_cmp_eq_u32 {s(st)}, 7
    s_cselect_b32 {s(sz1)}, {HUGE}, {s(sz1)}
    s_add_u32 {s(sz2)}, {s(sz1)}, {8*57344}''')
    assert a2 == a1 + 2 and a1 % 4 == 0
    k(f'''s_lshr_b32 {s(st)}, {s(sa)}, 2
    s_lshl_b32 {s(st)}, {s(st)}, 3
    s_add_u32 {s(sslot)}, {s(sb)}, {s(st)}
    s_bfe_u32 {s(smir)}, {s(sa)}, 0x10001
    s_sub_u32 {s(st)}, 64, {s(sslot)}
    s_cmp_eq_u32 {s(sslot)}, 0
    s_cselect_b32 {s(st)}, 32, {s(st)}
    s_cmp_eq_u32 {s(smir)}, 1
    s_cselect_b32 {s(st0)}, {s(st)}, {s(sslot)}
    s_and_b32 {s(st)}, {s(sa)}, 1
    s_lshl_b32 {s(st)}, {s(st)}, 10
    s_add_u32 {s(st0)}, {s(st0)}, {s(st)}
    s_lshl_b32 {s(st)}, {s(sw)}, 7
    s_add_u32 {s(st)}, {s(st)}, {s(st0)}
    s_mul_i32 {s(sxo)}, {s(st)}, 896
    s_sub_u32 {s(st)}, 2047, {s(st)}
    v_and_b32 {v(vki)}, 32, {v(vl)}
    v_lshlrev_b32 {v(vki)}, 1, {v(vki)}
    v_sub_u32 {v(vki)}, {s(st)}, {v(vki)}
    v_mov_b32 {v(vkm)}, 0xfffff800
    v_lshlrev_b32 {v(vt)}, 5, {v(vn)}
    v_lshl_add_u32 {v(vt)}, {v(vg)}, 3, {v(vt)}
    s_mul_i32 {s(sxl)}, {s(sw)}, 1792
    s_add_u32 {s(sxl)}, {s(sxl)}, {XB}
    v_add_u32 {v(vx0)}, {s(sxl)}, {v(vt)}
    v_lshlrev_b32 {v(vh0)}, 4, {v(vl)}
    v_add_u32 {v(vx1)}, {s(sxl)}, {v(vh0)}
    v_add_u32 {v(aK)}, {CB_}, {v(vh0)}
    v_mov_b32 {v(vt2)}, {HUGE}
    s_lshr_b32 {s(st)}, {s(sw)}, 1
    v_lshlrev_b32 {v(vt)}, 2, {v(vg)}
    v_xor_b32 {v(vt)}, {v(vt)}, {v(vn)}
    v_and_b32 {v(vt)}, 7, {v(vt)}
    v_xor_b32 {v(vt)}, {s(st)}, {v(vt)}
    v_lshlrev_b32 {v(aU)}, 4, {v(vt)}
    v_lshl_add_u32 {v(aU)}, {v(vn)}, 11, {v(aU)}
    v_lshl_add_u32 {v(aU)}, {v(vg)}, 9, {v(aU)}
    s_and_b32 {s(st)}, {s(sw)}, 1
    s_lshl_b32 {s(st)}, {s(st)}, 3
    s_add_u32 {s(st)}, {s(st)}, {UB}
    v_add_u32 {v(aU)}, {s(st)}, {v(aU)}
    v_xor_b32 {v(aU+1)}, 16, {v(aU)}
    v_xor_b32 {v(aU+2)}, 32, {v(aU)}
    v_xor_b32 {v(aU+3)}, 48, {v(aU)}
    s_lshl_b32 {s(st)}, {s(sw)}, 1
    v_xor_b32 {v(vt)}, {v(vg)}, {v(vn)}
    v_xor_b32 {v(vt)}, {s(st)}, {v(vt)}
    v_and_b32 {v(vt)}, 7, {v(vt)}
    v_lshlrev_b32 {v(aV)}, 4, {v(vt)}
    v_lshl_add_u32 {v(aV)}, {v(vn)}, 7, {v(aV)}
    s_lshl_b32 {s(st)}, {s(sw)}, 12
    s_add_u32 {s(st)}, {s(st)}, {UB}
    v_add_u32 {v(aV)}, {s(st)}, {v(aV)}
    v_xor_b32 {v(aV+1)}, 16, {v(aV)}
    v_lshrrev_b32 {v(vt)}, 2, {v(vl)}
    v_mul_u32_u24 {v(aT)}, {ZS}, {v(vt)}
    v_mul_u32_u24 {v(vt)}, 56, {v(vt3)}
    s_lshl_b32 {s(st)}, {s(sw)}, 3
    v_add3_u32 {v(aT)}, {v(aT)}, {v(vt)}, {s(st)}
    v_mul_u32_u24 {v(aC)}, 112, {v(vg)}
    s_lshl_b32 {s(st)}, {s(sw)}, 4
    s_add_u32 {s(st)}, {s(st)}, {CAB}
    v_add_u32 {v(aC)}, {s(st)}, {v(aC)}''')
    v7a = vsb; v7b = k.valloc(); v7c = PI + 10
    k.srd(r4, pw, 896)
    k(f'''s_cmp_eq_u32 {s(sw)}, 7
    s_cselect_b32 {s(r4+2)}, {s(r4+2)}, 0
    v_lshlrev_b32 {v(v7a)}, 3, {v(vl)}
    v_add_u32 {v(v7b)}, 512, {v(v7a)}
    v_cmp_gt_u32 vcc, 48, {v(vl)}
    v_cndmask_b32 {v(v7b)}, {v(vt2)}, {v(v7b)}, vcc''')
    def gen_f28():
        k(f'''v_cvt_f32_u32 {v(vstep)}, {v(vn)}
        v_mul_f32 {v(vstep)}, {fl(1/28)}, {v(vstep)}
        v_lshlrev_b32 {v(vt)}, 3, {v(vg)}
        v_cvt_f32_u32 {v(vt)}, {v(vt)}
        v_cmp_gt_u32 vcc, 12, {v(vn)}''')
        for b in range(2):
            if b == 1: k(f'v_add_f32 {v(vstep)}, {fl(16/28)}, {v(vstep)}')
            k(f'v_mul_f32 {v(vbase)}, {v(vt)}, {v(vstep)}')
            for e in range(8): k(f'v_fmamk_f32 {v(TG+e)}, {v(vstep)}, {fl(e)}, {v(vbase)}')
            for e in range(8): k(f'v_sin_f32 {v(TG+8+e)}, {v(TG+e)}\nv_cos_f32 {v(TG+e)}, {v(TG+e)}')
            for e in range(4): k(f'v_cvt_pk_bf16_f32 {v(FB+8*b+e)}, {v(TG+2*e)}, {v(TG+2*e+1)}\nv_cvt_pk_bf16_f32 {v(FB+8*b+4+e)}, -{v(TG+8+2*e)}, -{v(TG+9+2*e)}')
        for e in range(8): k(f'v_cndmask_b32 {v(FB+8+e)}, 0, {v(FB+8+e)}, vcc')
    sx1 = k.salloc(); sx2 = k.salloc(); sm0 = k.salloc(); sm1 = k.salloc(); ssw = k.salloc(2)
    def gen_w():
        k(f'''v_lshlrev_b32 {v(vt)}, 6, {v(vn)}
        v_add_u32 {v(vt)}, {s(st0)}, {v(vt)}
        v_cvt_f32_u32 {v(vstep)}, {v(vt)}
        v_mul_f32 {v(vstep)}, {fl(1/2048)}, {v(vstep)}
        v_lshlrev_b32 {v(vt)}, 2, {v(vg)}
        v_cvt_f32_u32 {v(vbase)}, {v(vt)}
        v_mul_f32 {v(vbase)}, {v(vbase)}, {v(vstep)}''')
        for e in range(8): k(f'v_fmamk_f32 {v(TG+e)}, {v(vstep)}, {fl(16*(e>>2)+(e&3))}, {v(vbase)}')
        for e in range(8): k(f'v_sin_f32 {v(TG+8+e)}, {v(TG+e)}\nv_cos_f32 {v(TG+e)}, {v(TG+e)}')
        for e in range(4): k(f'v_cvt_pk_bf16_f32 {v(Fre0+e)}, {v(TG+2*e)}, {v(TG+2*e+1)}\nv_cvt_pk_bf16_f32 {v(Fim0+e)}, -{v(TG+8+2*e)}, -{v(TG+9+2*e)}')
        Lns = k.label('ns'); Lnx = k.label('nx')
        k(f'''s_cmp_eq_u32 {s(smir)}, 1
        s_cselect_b32 {s(sx1)}, 0, 0x80008000
        s_cselect_b32 {s(sx2)}, 0x80008000, 0
        s_cmp_eq_u32 {s(sslot)}, 0
        s_cbranch_scc1 {Lns}''')
        for q in range(4): k(f'v_xor_b32 {v(Fre1+q)}, {s(sx1)}, {v(Fim0+q)}\nv_xor_b32 {v(Fim1+q)}, {s(sx2)}, {v(Fre0+q)}')
        k(f's_branch {Lnx}\n{Lns}:\ns_cmp_eq_u32 {s(smir)}, 1\ns_cselect_b32 {s(sm0)}, 0, -1\ns_cselect_b32 {s(sm1)}, -1, 0')
        for q in range(4):
            k(f'''v_and_b32 {v(Fre1+q)}, {s(sm1)}, {v(Fre0+q)}
            v_and_b32 {v(Fim1+q)}, {s(sm1)}, {v(Fim0+q)}
            v_and_b32 {v(Fre0+q)}, {s(sm0)}, {v(Fre0+q)}
            v_and_b32 {v(Fim0+q)}, {s(sm0)}, {v(Fim0+q)}''')
        k(f'{Lnx}:')
    def gen_da(TT):
        k(f'''v_cvt_f32_u32 {v(vstep)}, {v(vn)}
        v_mul_f32 {v(vstep)}, {fl(1/448)}, {v(vstep)}
        v_mul_u32_u24 {v(vt)}, 28, {v(vg)}
        s_lshl_b32 {s(st)}, {s(sw)}, 2
        v_add_u32 {v(vt)}, {s(st)}, {v(vt)}
        v_cvt_f32_u32 {v(vbase)}, {v(vt)}
        v_mul_f32 {v(vbase)}, {v(vbase)}, {v(vstep)}''')
        for q in range(4):
            for T_ in range(4): k(f'v_fmamk_f32 {v(TT+4*q+T_)}, {v(vstep)}, {fl(112*T_+q)}, {v(vbase)}')
        for e in range(16): k(f'v_sin_f32 {v(TT+16+e)}, {v(TT+e)}\nv_cos_f32 {v(TT+e)}, {v(TT+e)}')
        for q in range(4):
            A_ = AD + 6 * q
            k(f'''v_cvt_pk_bf16_f32 {v(A_)}, {v(TT+4*q)}, {v(TT+4*q+1)}
            v_cvt_pk_bf16_f32 {v(A_+1)}, {v(TT+4*q+2)}, {v(TT+4*q+3)}
            v_cvt_pk_bf16_f32 {v(A_+2)}, {v(TT+16+4*q)}, {v(TT+16+4*q+1)}
            v_cvt_pk_bf16_f32 {v(A_+3)}, {v(TT+16+4*q+2)}, {v(TT+16+4*q+3)}
            v_xor_b32 {v(A_+4)}, 0x80008000, {v(A_)}
            v_xor_b32 {v(A_+5)}, 0x80008000, {v(A_+1)}''')
    if OPT['EARLY'] & 1: gen_w()
    k(f"s_cmp_lt_u32 {s(sw)}, {OPT['LATE']}\ns_cbranch_scc1 {Lx2}"); xloads(); k(f'{Lx2}:')
    if OPT['EARLY'] & 2: gen_f28()
    stamp(5, {1})
    for i in range(7):
        k(f's_waitcnt vmcnt({6-i})')
        if i < 2:
            for q in range(4): k(f'v_lshlrev_b32 {v(T+8*i+2*q)}, 16, {v(X+4*i+q)}\nv_and_b32 {v(T+8*i+2*q+1)}, 0xffff0000, {v(X+4*i+q)}')
        for q in range(4):
            k(f'v_dot2c_f32_bf16 {v(a1+(q&1))}, {s(sones)}, {v(X+4*i+q)}')
            k(f'v_dot2c_f32_bf16 {v(a2+(q&1))}, {v(X+4*i+q)}, {v(X+4*i+q)}')
    stamp(3, {1})
    k(f'''s_mov_b32 m0, {s(sxl)}
    s_add_u32 {s(st)}, {s(sxo)}, {57344-896}
    s_bfm_b64 exec, 56, 0
    buffer_load_dwordx4 {v(vh0)}, {s(rx,4)}, {s(sxo)} offen lds
    buffer_load_dwordx4 {v(vh0)}, {s(rx,4)}, {s(st)} offen offset:896 lds
    s_mov_b64 exec, -1
    buffer_load_dwordx2 {v(XF,2)}, {v(v7a)}, {s(r4,4)}, 0 offen
    buffer_load_dwordx2 {v(XF+2,2)}, {v(v7b)}, {s(r4,4)}, 0 offen''')
    if OPT['PREP']:
        Lpp = k.label('prep')
        k(f'''s_cmp_lt_u32 {s(sw)}, 5
        s_cbranch_scc1 {Lpp}
        s_mul_i32 {s(st)}, {s(sb)}, {FRS}
        s_sub_u32 {s(st2)}, {s(sw)}, 5
        s_mul_i32 {s(st2)}, {s(st2)}, {64*FS}
        s_add_u32 {s(st)}, {s(st)}, {s(st2)}
        s_add_u32 {s(st)}, {s(st)}, {FLAG1}
        v_mul_u32_u24 {v(XF+5)}, {FS}, {v(vl)}
        buffer_load_dword {v(XF+4)}, {v(XF+5)}, {s(rws,4)}, {s(st)} offen sc1
        {Lpp}:''')
    k(f'v_add_f32 {v(a1)}, {v(a1)}, {v(a1+1)}\nv_add_f32 {v(a2)}, {v(a2)}, {v(a2+1)}')
    for dp in ('quad_perm:[1,0,3,2]', 'quad_perm:[2,3,0,1]', 'row_half_mirror'):
        k(f'v_add_f32_dpp {v(a1)}, {v(a1)}, {v(a1)} {dp} row_mask:0xf bank_mask:0xf')
        k(f'v_add_f32_dpp {v(a2)}, {v(a2)}, {v(a2)} {dp} row_mask:0xf bank_mask:0xf')
    ln_scalars(k, a1, a2)
    for h in range(2):
        for q in range(8): k(f'v_fma_f32 {v(T+8*h+q)}, {v(T+8*h+q)}, {v(a2)}, -{v(a1)}')
        for q in range(4): k(f'v_cvt_pk_bf16_f32 {v(X+4*h+q)}, {v(T+8*h+2*q)}, {v(T+8*h+2*q+1)}')
        k(f'ds_write_b128 {v(aW)}, {v(X+4*h,4)} offset:{128*h}')
    k(f's_waitcnt lgkmcnt(0)\ns_barrier')
    stamp(6, {1})
    AF = X
    for tau in range(4):
        for ks in range(2):
            for hh in range(2):
                k(f'ds_read_b64_tr_b16 {v(AF+8*tau+4*ks+2*hh,2)}, {v(aR)} offset:{(32*ks+16*hh)*XS+32*tau}')
    tagcalc()
    for tau in range(4):
        k(f's_waitcnt lgkmcnt({12-4*tau})')
        k(f'v_mfma_f32_16x16x32_bf16 {v(T+4*tau,4)}, {v(AF+8*tau,4)}, {v(BF,4)}, 0')
        k(f'v_mfma_f32_16x16x32_bf16 {v(T+4*tau,4)}, {v(AF+8*tau+4,4)}, {v(BF+4,4)}, {v(T+4*tau,4)}')
    for tau in range(4):
        k(f'v_cvt_pk_bf16_f32 {v(PI+2*tau)}, {v(T+4*tau)}, {v(T+4*tau+1)}\nv_cvt_pk_bf16_f32 {v(PI+2*tau+1)}, {v(T+4*tau+2)}, {v(T+4*tau+3)}')
        k(f'ds_write_b64 {v(aT1)}, {v(PI+2*tau,2)} offset:{32*tau}')
    k(f's_waitcnt lgkmcnt(0)\nds_read_b128 {v(X,4)}, {v(aT2)}\nds_read_b128 {v(X+4,4)}, {v(aT2)} offset:{8*144}')
    for h in range(2):
        k(f's_waitcnt lgkmcnt({1-h})\nbuffer_store_dwordx4 {v(X+4*h,4)}, {v(aZ)}, {s(rws,4)}, {s(sz1 if h == 0 else sz2)} offen sc1')
    stamp(4, {1})
    k.srd(r3, pout, 1835008)
    k(f'''s_and_b32 {s(sj)}, {s(sb)}, 7
    s_mul_i32 {s(sj)}, {s(sj)}, {FRS}
    s_add_u32 {s(sj)}, {s(sj)}, {FLAG1}
    v_mul_u32_u24 {v(vo)}, {FS}, {v(vl)}
    s_waitcnt vmcnt(0)
    s_barrier''')
    stamp(7, {1})
    Lnf = k.label('nf')
    k(f"s_cmp_lg_u32 {s(sw)}, {OPT['FW']}\ns_cbranch_scc1 {Lnf}"); sendflag(vf)
    if OPT['ST'] == 2: k('s_waitcnt vmcnt(0)'); k.stamp(2)
    k(f'{Lnf}:')
    T = AZ
    Lp7 = k.label('p7'); LA = k.label('A')
    k(f'''s_lshl_b32 {s(st)}, {s(sa)}, 1
    s_add_u32 {s(st)}, {s(st)}, {s(sw)}
    s_and_b32 {s(st)}, {s(st)}, 7
    s_mul_i32 {s(sz1)}, {s(st)}, {4*ZS}
    s_mul_i32 {s(sz2)}, {s(sslot)}, 57344
    s_mul_i32 {s(st2)}, {s(st)}, {4*896}
    s_add_u32 {s(sz2)}, {s(sz2)}, {s(st2)}
    s_mul_i32 {s(st)}, {s(st)}, {16*FS}
    v_add_u32 {v(vt)}, {112*FS}, {v(vo)}
    v_add_u32 {v(vo)}, {s(st)}, {v(vo)}
    v_cmp_gt_u32 vcc, 16, {v(vl)}
    v_cndmask_b32 {v(vo)}, {v(vt)}, {v(vo)}, vcc
    s_cmp_eq_u32 {s(sw)}, 7
    s_cbranch_scc1 {Lp7}''')
    def zdma():
        k('s_bfm_b64 exec, 56, 0')
        for c in range(2):
            for j in range(4):
                k(f's_add_u32 {s(st)}, {s(sz1)}, {(32*c+j)*ZS}\ns_add_u32 {s(st2)}, {s(sz2)}, {(32*c+j)*896}\ns_mov_b32 m0, {s(st)}\ns_nop 0')
                k(f'buffer_load_dwordx4 {v(vh0)}, {s(rws,4)}, {s(st2)} offen sc1 lds')
        k('s_mov_b64 exec, -1')
    if not OPT['EARLY'] & 1: gen_w()
    if OPT['DAFIRST']: gen_da(AZ)
    poll(f'buffer_load_dword {v(CK)}, {v(vo)}, {s(rws,4)}, {s(sj)} offen sc1', [CK], 16, name='pz')
    stamp(5, {0})
    zdma()
    if not OPT['DAFIRST']: gen_da(AZ)
    k(f's_branch {LA}\n{Lp7}:')
    sdz = sx1; sdm = sx2
    L7 = k.label('l7'); L7a = k.label('l7a'); L7b = k.label('l7b'); L7c = k.label('l7c')
    k(f'''v_lshlrev_b32 {v(v7b)}, 1, {v(v7b)}
    v_and_b32 {v(v7c)}, 3, {v(vl)}
    v_lshlrev_b32 {v(v7c)}, 8, {v(v7c)}
    v_lshrrev_b32 {v(vt)}, 2, {v(vl)}
    v_lshl_add_u32 {v(v7c)}, {v(vt)}, 4, {v(v7c)}
    v_add_u32 {v(v7c)}, {CB_}, {v(v7c)}
    s_mov_b32 {s(sdz)}, 0
    s_mov_b32 {s(sdm)}, 0
    s_mov_b32 {s(scnt)}, 0''')
    for i in range(16): k(f'v_mov_b32 {v(PR+i)}, 0')
    for q in range(4): k(f'v_lshlrev_b32 {v(T+2*q)}, 16, {v(XF+q)}\nv_and_b32 {v(T+2*q+1)}, 0xffff0000, {v(XF+q)}')
    k(f'''{L7}:
    s_bfm_b64 exec, 58, 0
    buffer_load_dword {v(BP)}, {v(vo)}, {s(rws,4)}, {s(sj)} offen sc1
    s_add_u32 {s(scnt)}, {s(scnt)}, 1
    s_waitcnt vmcnt(0)
    v_cmp_ne_u32 vcc, {s(stag)}, {v(BP)}
    s_mov_b64 exec, -1
    s_cmp_ge_u32 {s(scnt)}, 0x200000
    s_cselect_b64 vcc, 0, vcc
    s_and_b32 {s(st)}, vcc_lo, 0xffff
    s_or_b32 {s(st)}, {s(st)}, {s(sdz)}
    {"s_xor_b32 %s, %s, 1" % (s(st2), s(sdm)) if OPT['MFIRST'] else ""}
    {"s_or_b32 %s, %s, %s" % (s(st), s(st), s(st2)) if OPT['MFIRST'] else ""}
    s_lshr_b64 {s(ssw,2)}, vcc, 16
    s_cmp_lg_u32 {s(st)}, 0
    s_cbranch_scc1 {L7a}
    s_mov_b32 {s(sdz)}, 1''')
    zdma()
    k(f'''{L7a}:
    s_cmp_eq_u32 {s(sdm)}, 1
    s_cbranch_scc1 {L7c}
    s_cmp_lg_u64 {s(ssw,2)}, 0
    s_cbranch_scc1 {L7}
    s_mov_b32 {s(sdm)}, 1''')
    stamp(5, {0})
    k(f's_mov_b32 m0, {CAB}\ns_mov_b32 {s(st2)}, {MODV}')
    for i in range(4):
        if i == 3: k('s_bfm_b64 exec, 32, 0')
        k(f'buffer_load_dwordx4 {v(vh0)}, {s(rws,4)}, {s(st2)} offen offset:{1024*i} sc1 lds')
    k('s_mov_b64 exec, -1')
    for (slot_, sec) in ((2, 4), (3, 3), (0, 2), (4, 5)):
        k(f's_mov_b32 {s(st2)}, {MODV+sec*1792}')
        k(f'buffer_load_dwordx4 {v(CK+8*slot_,4)}, {v(vh0)}, {s(rws,4)}, {s(st2)} offen sc1\nbuffer_load_dwordx4 {v(CK+8*slot_+4,4)}, {v(v7b)}, {s(rws,4)}, {s(st2)} offen sc1')
    k(f'{L7c}:\ns_cmp_eq_u32 {s(sdz)}, 0\ns_cbranch_scc1 {L7}')
    k(f'{LA}:')
    if not OPT['EARLY'] & 2: gen_f28()
    stamp(3, {0})
    for r in range(2): k(f'ds_read_b64 {v(XR+4*r,2)}, {v(vx0)} offset:{896*r}\nds_read_b64 {v(XR+4*r+2,2)}, {v(vx0)} offset:{896*r+512}')
    k(f'v_cmp_gt_u32 vcc, 12, {v(vn)}\ns_waitcnt lgkmcnt(0)')
    for r in range(2):
        for q in (2, 3): k(f'v_cndmask_b32 {v(XR+4*r+q)}, 0, {v(XR+4*r+q)}, vcc')
    for q in range(8): k(f'v_lshlrev_b32 {v(XF+2*q)}, 16, {v(XR+q)}\nv_and_b32 {v(XF+2*q+1)}, 0xffff0000, {v(XR+q)}')
    k(f's_waitcnt vmcnt(0)\ns_barrier')
    stamp(6, {0, 2})
    def kreads():
        for c in range(5): k(f'ds_read_b128 {v(CK+8*c,4)}, {v(aK)} offset:{2048*c}\nds_read_b128 {v(CK+8*c+4,4)}, {v(aK)} offset:{2048*c+1024}')
        k(f'v_mov_b32 {v(vt2)}, {MISC}\nds_read_b32 {v(vsb)}, {v(vt2)} offset:4')
    Lw7 = k.label('w7'); Ljoin = k.label('join')
    k(f's_cmp_eq_u32 {s(sw)}, 7\ns_cbranch_scc1 {Lw7}')
    for T_ in range(4):
        for ks in range(2):
            for hh in range(2):
                k(f'ds_read_b64_tr_b16 {v(AZ+8*T_+4*ks+2*hh,2)}, {v(aT)} offset:{(32*ks+16*hh)*ZS+224*T_}')
    for T_ in range(4):
        k(f's_waitcnt lgkmcnt({12 if T_ == 0 else 16-4*T_})')
        k(f'''v_mfma_f32_16x16x32_bf16 {v(PR+4*T_,4)}, {v(AZ+8*T_,4)}, {v(Fre0,4)}, 0
        v_mfma_f32_16x16x32_bf16 {v(PR+4*T_,4)}, {v(AZ+8*T_+4,4)}, {v(Fre1,4)}, {v(PR+4*T_,4)}''')
        if T_ == 0:
            for t2 in range(4): k(f'ds_read_b128 {v(CA+4*t2,4)}, {v(aC)} offset:{1792+448*t2}')
    k('s_waitcnt lgkmcnt(0)')
    Lsa = k.label('sa'); Lsab = k.label('sab')
    for T_ in range(4):
        k(f'''v_mfma_f32_16x16x32_bf16 {v(PI+4*T_,4)}, {v(AZ+8*T_,4)}, {v(Fim0,4)}, 0
        v_mfma_f32_16x16x32_bf16 {v(PI+4*T_,4)}, {v(AZ+8*T_+4,4)}, {v(Fim1,4)}, {v(PI+4*T_,4)}''')
        for i in range(4): k(f'v_mul_f32 {v(PR+4*T_+i)}, {v(PR+4*T_+i)}, {v(CA+4*T_+i)}')
    k(f's_cmp_eq_u32 {s(st0)}, 0\ns_cbranch_scc1 {Lsa}\n{Lsab}:')
    for i in range(4):
        k(f'v_cvt_pk_bf16_f32 {v(BP+4*i)}, {v(PR+i)}, {v(PR+4+i)}\nv_cvt_pk_bf16_f32 {v(BP+4*i+1)}, {v(PR+8+i)}, {v(PR+12+i)}')
    UR = AZ; VV = AZ + 16
    for i in range(4):
        B = BP + 4 * i
        for T_ in range(4): k(f'v_mul_f32 {v(PI+4*T_+i)}, {v(PI+4*T_+i)}, {v(CA+4*T_+i)}')
        k(f'''v_cvt_pk_bf16_f32 {v(B+2)}, {v(PI+i)}, {v(PI+4+i)}
        v_cvt_pk_bf16_f32 {v(B+3)}, {v(PI+8+i)}, {v(PI+12+i)}''')
        if i > 0:
            k(f'''v_mfma_f32_16x16x32_bf16 {v(UR+4*(i-1),4)}, {v(AD+6*(i-1),4)}, {v(B-4,4)}, 0
            v_mfma_f32_16x16x32_bf16 {v(VV+4*(i-1),4)}, {v(AD+6*(i-1)+2,4)}, {v(B-4,4)}, 0''')
    k(f'''v_mfma_f32_16x16x32_bf16 {v(UR+12,4)}, {v(AD+18,4)}, {v(BP+12,4)}, 0
    v_mfma_f32_16x16x32_bf16 {v(VV+12,4)}, {v(AD+20,4)}, {v(BP+12,4)}, 0''')
    UP = PR
    for i in range(4): k(f'v_cvt_pk_bf16_f32 {v(UP+2*i)}, {v(UR+i)}, {v(UR+4+i)}\nv_cvt_pk_bf16_f32 {v(UP+8+2*i)}, {v(VV+i)}, {v(VV+4+i)}')
    for i in range(4):
        k(f'v_cvt_pk_bf16_f32 {v(UP+2*i+1)}, {v(UR+8+i)}, {v(UR+12+i)}\nds_write_b64 {v(aU+i)}, {v(UP+2*i,2)} offset:{128*i}\nv_xor_b32 {v(aU+i)}, 64, {v(aU+i)}')
    for i in range(4):
        k(f'v_cvt_pk_bf16_f32 {v(UP+8+2*i+1)}, {v(VV+8+i)}, {v(VV+12+i)}\nds_write_b64 {v(aU+i)}, {v(UP+8+2*i,2)} offset:{128*i}')
    k(f's_branch {Ljoin}')
    k(f'{Lsa}:')
    for t2 in range(4): k(f'ds_read_b128 {v(BP+4*t2,4)}, {v(aC)} offset:{448*t2}')
    k(f's_mov_b32 exec_lo, 0x00010001\ns_mov_b32 exec_hi, 0x00010001\ns_waitcnt lgkmcnt(0)')
    for e in range(16): k(f'v_add_f32 {v(PR+e)}, {v(PR+e)}, {v(BP+e)}')
    k(f's_mov_b64 exec, -1\ns_nop 1\ns_branch {Lsab}')
    k(f'{Lw7}:')
    for e in range(8): k(f'v_mul_f32 {v(CK+8+e)}, {v(T+e)}, {v(CK+16+e)}')
    k(f'v_add_f32 {v(T+8)}, {v(CK+8)}, {v(CK+9)}\nv_mul_f32 {v(T+9)}, {v(T)}, {v(CK+24)}')
    for e in range(2, 8): k(f'v_add_f32 {v(T+8)}, {v(T+8)}, {v(CK+8+e)}\nv_fmac_f32 {v(T+9)}, {v(T+e-1)}, {v(CK+24+e-1)}')
    k(f'v_fmac_f32 {v(T+9)}, {v(T+7)}, {v(CK+31)}')
    for c in (2, 3, 0, 4): k(f'ds_write_b128 {v(v7c)}, {v(CK+8*c,4)} offset:{2048*c}\nds_write_b128 {v(v7c)}, {v(CK+8*c+4,4)} offset:{2048*c+1024}')
    k(f'v_permlane32_swap_b32 {v(T+8)}, {v(T+9)}\nv_add_f32 {v(T+8)}, {v(T+8)}, {v(T+9)}\nv_mov_b32 {v(T+9)}, {v(T+8)}\nv_permlane16_swap_b32 {v(T+8)}, {v(T+9)}\nv_add_f32 {v(T+8)}, {v(T+8)}, {v(T+9)}')
    for r in (8, 4, 2, 1): k(f'v_add_f32_dpp {v(T+8)}, {v(T+8)}, {v(T+8)} row_ror:{r} row_mask:0xf bank_mask:0xf')
    k(f'''v_readlane_b32 {s(st)}, {v(T+8)}, 0
    v_readlane_b32 {s(st2)}, {v(T+8)}, 32
    v_mov_b32 {v(T+9)}, {fl(-1/448)}
    v_mul_f32 {v(T+9)}, {s(st)}, {v(T+9)}
    v_cmp_gt_u32 vcc, 48, {v(vl)}
    v_cndmask_b32 {v(T+11)}, 0, {v(T+9)}, vcc
    v_mov_b32 {v(T+10)}, {s(st2)}
    v_mov_b32 {v(vt2)}, {MISC}
    ds_write_b32 {v(vt2)}, {v(T+10)} offset:4''')
    for e in range(8): k(f'v_add_f32 {v(CK+8+e)}, {v(CK+8+e)}, {v(T+9 if e < 4 else T+11)}')
    k(f'ds_write_b128 {v(v7c)}, {v(CK+8,4)} offset:2048\nds_write_b128 {v(v7c)}, {v(CK+12,4)} offset:{2048+1024}')
    for i in range(4): k(f'ds_write_b64 {v(aU+i)}, {v(PR,2)} offset:{128*i}\nv_xor_b32 {v(aU+i)}, 64, {v(aU+i)}')
    for i in range(4): k(f'ds_write_b64 {v(aU+i)}, {v(PR,2)} offset:{128*i}')
    k(f'{Ljoin}:')
    k(f'''v_xor_b32 {v(vt)}, 64, {v(aV)}
    v_xor_b32 {v(vt2)}, 64, {v(aV+1)}
    v_mov_b32 {v(CA+1)}, {v(vtag)}
    v_mov_b32 {v(CA+3)}, {v(vtag)}
    v_mov_b32 {v(CA+5)}, {v(vtag)}
    v_mov_b32 {v(CA+7)}, {v(vtag)}
    s_waitcnt lgkmcnt(0)
    s_barrier''')
    stamp(7, {0})
    BD = AZ; Y = PI
    k(f'''ds_read_b128 {v(BD,4)}, {v(aV)}
    ds_read_b128 {v(BD+4,4)}, {v(vt)}
    ds_read_b128 {v(BD+8,4)}, {v(aV+1)} offset:2048
    ds_read_b128 {v(BD+12,4)}, {v(vt2)} offset:2048
    s_mul_i32 {s(so)}, s2, {SLS}
    s_add_u32 {s(so)}, {s(so)}, {SLOT}
    s_mul_i32 {s(sj)}, s2, {KS}
    s_add_u32 {s(sj)}, {s(sj)}, {KEYS}
    v_mul_u32_u24 {v(vo)}, {KRS}, {v(vl)}''')
    kreads()
    for r in range(2):
        k(f's_waitcnt lgkmcnt({11+3-2*r})')
        for b in range(2): k(f'v_mfma_f32_16x16x32_bf16 {v(Y+8*r+4*b,4)}, {v(BD+8*r,4)}, {v(FB+8*b,4)}, 0')
        k(f's_waitcnt lgkmcnt({11+2-2*r})')
        for b in range(2): k(f'v_mfma_f32_16x16x32_bf16 {v(Y+8*r+4*b,4)}, {v(BD+8*r+4,4)}, {v(FB+8*b+4,4)}, {v(Y+8*r+4*b,4)}')
    S = PR
    k('s_waitcnt lgkmcnt(7)')
    for r in range(2):
        for e in range(8):
            x1 = XF + 8 * r + e
            k(f'v_fmac_f32 {v(x1)}, {v(CK+e)}, {v(Y+8*r+e)}')
            if e == 0: k(f'v_mul_f32 {v(S+2+r)}, {v(x1)}, {v(x1)}\nv_mul_f32 {v(S+4+r)}, {v(x1)}, {v(CK+8)}')
            else: k(f'v_fmac_f32 {v(S+2+r)}, {v(x1)}, {v(x1)}\nv_fmac_f32 {v(S+4+r)}, {v(x1)}, {v(CK+8+e)}')
            if e == 1: k(f'v_add_f32 {v(S+r)}, {v(x1-1)}, {v(x1)}')
            elif e > 1: k(f'v_add_f32 {v(S+r)}, {v(S+r)}, {v(x1)}')
    k(f'''v_permlane32_swap_b32 {v(S+4)}, {v(S+5)}
    v_permlane32_swap_b32 {v(S+2)}, {v(S+3)}
    v_permlane32_swap_b32 {v(S)}, {v(S+1)}
    v_add_f32 {v(S+4)}, {v(S+4)}, {v(S+5)}
    v_add_f32 {v(S+2)}, {v(S+2)}, {v(S+3)}
    v_add_f32 {v(S)}, {v(S)}, {v(S+1)}
    v_mov_b32 {v(S+5)}, {v(S+4)}
    v_permlane16_swap_b32 {v(S)}, {v(S+2)}
    v_permlane16_swap_b32 {v(S+4)}, {v(S+5)}
    v_add_f32 {v(S)}, {v(S)}, {v(S+2)}
    v_add_f32 {v(S+4)}, {v(S+4)}, {v(S+5)}''')
    for r in (8, 4, 2, 1):
        k(f'v_add_f32_dpp {v(S)}, {v(S)}, {v(S)} row_ror:{r} row_mask:0xf bank_mask:0xf\nv_add_f32_dpp {v(S+4)}, {v(S+4)}, {v(S+4)} row_ror:{r} row_mask:0xf bank_mask:0xf')
    k(f'v_mov_b32 {v(S+2)}, {v(S)}\nv_permlane16_swap_b32 {v(S)}, {v(S+2)}')
    k('s_waitcnt lgkmcnt(0)')
    ln_scalars(k, S, S + 2)
    sr = k.salloc(2); sm = k.salloc(2); sk = k.salloc(2); swin = k.salloc()
    k(f'''v_fma_f32 {v(S+4)}, {v(S+4)}, {v(S+2)}, {v(vsb)}
    v_readlane_b32 {s(sr)}, {v(S+2)}, 0
    v_ashrrev_i32 {v(vt)}, 31, {v(S+4)}
    v_readlane_b32 {s(sr+1)}, {v(S+2)}, 32
    v_or_b32 {v(vt)}, 0x80000000, {v(vt)}
    v_readlane_b32 {s(sm)}, {v(S)}, 0
    v_xor_b32 {v(vt)}, {v(vt)}, {v(S+4)}
    v_readlane_b32 {s(sm+1)}, {v(S)}, 32
    v_and_or_b32 {v(vt)}, {v(vt)}, {v(vkm)}, {v(vki)}
    s_mov_b32 exec_lo, 1
    s_mov_b32 exec_hi, 1
    ds_max_u32 {v(vt2)}, {v(vt)}
    s_mov_b64 exec, -1
    v_readlane_b32 {s(sk)}, {v(vt)}, 0
    v_readlane_b32 {s(sk+1)}, {v(vt)}, 32''')
    H = AZ; O = AZ + 16
    def hcalc(r, dst):
        for e in range(8):
            k(f'''v_mul_f32 {v(PI+e)}, {s(sr+r)}, {v(CK+16+e)}
            v_fma_f32 {v(PI+8+e)}, -{s(sm+r)}, {v(CK+16+e)}, {v(CK+24+e)}''')
        for e in range(8): k(f'v_fma_f32 {v(dst+e)}, {v(XF+8*r+e)}, {v(PI+e)}, {v(PI+8+e)}')
    Lb = k.label('rb'); Lc = k.label('rc'); Lnw = k.label('nw')
    k(f'v_mov_b32 {v(S+7)}, {v(vtag)}\ns_waitcnt lgkmcnt(0)\ns_barrier\nds_read_b32 {v(S+6)}, {v(vt2)}')
    stamp(2, {0})
    Lk0 = k.label('k0')
    k(f'''s_cmp_lg_u32 {s(sw)}, 0
    s_cbranch_scc1 {Lk0}
    s_mov_b64 exec, 0xff
    s_waitcnt lgkmcnt(0)
    buffer_store_dwordx2 {v(S+6,2)}, {v(vo)}, {s(rws,4)}, {s(sj)} offen sc1
    s_mov_b64 exec, -1
    {Lk0}:''')
    k(f's_max_u32 {s(st2)}, {s(sk)}, {s(sk+1)}\ns_cmp_gt_u32 {s(sk+1)}, {s(sk)}\ns_cbranch_scc1 {Lb}')
    hcalc(0, H)
    for q in range(4): k(f'v_cvt_pk_bf16_f32 {v(CA+2*q)}, {v(H+2*q)}, {v(H+2*q+1)}')
    k(f's_branch {Lc}\n{Lb}:')
    hcalc(1, H + 8)
    for q in range(4): k(f'v_cvt_pk_bf16_f32 {v(CA+2*q)}, {v(H+8+2*q)}, {v(H+8+2*q+1)}')
    k(f'''{Lc}:
    s_waitcnt lgkmcnt(0)
    v_readfirstlane_b32 {s(swin)}, {v(S+6)}
    s_cmp_lg_u32 {s(swin)}, {s(st2)}
    s_cbranch_scc1 {Lnw}
    buffer_store_dwordx4 {v(CA,4)}, {v(vh0)}, {s(rws,4)}, {s(so)} offen sc1
    buffer_store_dwordx4 {v(CA+4,4)}, {v(vh0)}, {s(rws,4)}, {s(so)} offen offset:1024 sc1
    {Lnw}:''')
    stamp(4, {0})
    Ld_ = k.label('rd'); Le_ = k.label('re')
    k(f's_cmp_gt_u32 {s(sk+1)}, {s(sk)}\ns_cbranch_scc1 {Ld_}')
    hcalc(1, H + 8)
    k(f's_branch {Le_}\n{Ld_}:')
    hcalc(0, H)
    k(f'{Le_}:')
    for e in range(16): k(f'v_fma_f32 {v(O+e)}, {v(CK+32+(e&7))}, {v(H+e)}, {v(XF+e)}')
    for q in range(8): k(f'v_cvt_pk_bf16_f32 {v(H+q)}, {v(O+2*q)}, {v(O+2*q+1)}')
    k(f'''ds_write_b64 {v(vx0)}, {v(H,2)}
    ds_write_b64 {v(vx0)}, {v(H+4,2)} offset:896
    s_mov_b32 exec_lo, 0x0fff0fff
    s_mov_b32 exec_hi, 0x0fff0fff
    ds_write_b64 {v(vx0)}, {v(H+2,2)} offset:512
    ds_write_b64 {v(vx0)}, {v(H+6,2)} offset:{896+512}
    s_bfm_b64 exec, 56, 0
    s_waitcnt lgkmcnt(0)
    ds_read_b128 {v(H,4)}, {v(vx1)}
    ds_read_b128 {v(H+4,4)}, {v(vx1)} offset:896
    s_add_u32 {s(st)}, {s(sxo)}, 57344
    s_waitcnt lgkmcnt(0)
    s_cmp_eq_u32 {s(swin)}, {s(st2)}
    s_cbranch_scc1 {Lend}w''')
    osc = {'plain': '', 'none': None}.get(OPT['OUT'], OPT['OUT'])
    if osc is not None:
        k(f'''buffer_store_dwordx4 {v(H,4)}, {v(vh0)}, {s(r3,4)}, {s(sxo)} offen {osc}
        buffer_store_dwordx4 {v(H+4,4)}, {v(vh0)}, {s(r3,4)}, {s(st)} offen {osc}''')
    k(f'''s_branch {Lend}
    {Lend}w:
    buffer_store_dwordx4 {v(H,4)}, {v(vh0)}, {s(r3,4)}, {s(sxo)} offen sc1
    buffer_store_dwordx4 {v(H+4,4)}, {v(vh0)}, {s(r3,4)}, {s(st)} offen sc1
    s_waitcnt vmcnt(0)
    v_lshlrev_b32 {v(vt)}, 2, {v(vl)}
    s_bfm_b64 exec, 32, 0
    buffer_store_dword {v(vtag)}, {v(vt)}, {s(rws,4)}, {s(so)} offen offset:2048 sc1
    s_branch {Lend}''')
    sg = smir; skey = sones
    def modtouch():
        k.srd(r4, pc + 2, 448 * 5376)
        k(f'''s_sub_u32 {s(st)}, {s(sa)}, 16
        s_lshl_b32 {s(st)}, {s(st)}, 1
        s_add_u32 {s(st)}, {s(st)}, {s(sw)}
        s_cmp_eq_u32 {s(sb)}, 7
        s_cselect_b32 {s(st2)}, 37, 52
        s_cselect_b32 {s(scnt)}, 7, 5
        s_mul_i32 {s(st2)}, {s(st2)}, {s(st)}
        s_lshr_b32 {s(st2)}, {s(st2)}, 8
        s_mul_i32 {s(scnt)}, {s(scnt)}, {s(st2)}
        s_sub_u32 {s(st)}, {s(st)}, {s(scnt)}
        s_lshl_b32 {s(scnt)}, {s(st)}, 3
        s_add_u32 {s(scnt)}, {s(scnt)}, {s(sb)}
        s_add_u32 {s(so)}, {s(st)}, 35
        s_cmp_lt_u32 {s(st)}, 5
        s_cselect_b32 {s(scnt)}, {s(scnt)}, {s(so)}
        s_lshl_b32 {s(scnt)}, {s(scnt)}, 7
        s_sub_u32 {s(st2)}, 6, {s(st2)}
        s_mul_i32 {s(st2)}, {s(st2)}, {64*5376}
        s_add_u32 {s(scnt)}, {s(scnt)}, {s(st2)}
        s_cmp_lt_u32 {s(sw)}, {2 if OPT['HELP'] else 0}
        s_cselect_b32 {s(r4+2)}, {s(r4+2)}, 0
        v_mul_u32_u24 {v(vt)}, 5376, {v(vl)}
        buffer_load_dword {v(vt2)}, {v(vt)}, {s(r4,4)}, {s(scnt)} offen''')
    def keymax(KR):
        k(f'v_max_u32 {v(vt2)}, {v(KR)}, {v(KR+2)}')
        for r in (8, 4, 2, 1): k(f'v_max_u32_dpp {v(vt2)}, {v(vt2)}, {v(vt2)} row_ror:{r} row_mask:0xf bank_mask:0xf')
        k(f'''v_readlane_b32 {s(skey)}, {v(vt2)}, 0
        v_readlane_b32 {s(st)}, {v(vt2)}, 16
        v_readlane_b32 {s(st2)}, {v(vt2)}, 32
        v_readlane_b32 {s(sj)}, {v(vt2)}, 48
        s_max_u32 {s(skey)}, {s(skey)}, {s(st)}
        s_max_u32 {s(st2)}, {s(st2)}, {s(sj)}
        s_max_u32 {s(skey)}, {s(skey)}, {s(st2)}''')
    def key2slot(dst):
        k(f'''s_and_b32 {s(sj)}, {s(skey)}, 2047
        s_sub_u32 {s(sj)}, 2047, {s(sj)}
        s_and_b32 {s(st)}, {s(sj)}, 63
        s_sub_u32 {s(st2)}, 64, {s(st)}
        s_and_b32 {s(st2)}, {s(st2)}, 31
        s_cmp_ge_u32 {s(st)}, 32
        s_cselect_b32 {s(st)}, {s(st2)}, {s(st)}
        s_cselect_b32 {s(st2)}, 16, 0
        s_and_b32 {s(dst)}, {s(st)}, 7
        s_add_u32 {s(dst)}, {s(dst)}, {s(st2)}
        s_lshr_b32 {s(st)}, {s(st)}, 3
        s_lshl_b32 {s(st)}, {s(st)}, 5
        s_add_u32 {s(dst)}, {s(dst)}, {s(st)}
        s_lshr_b32 {s(st)}, {s(sj)}, 10
        s_lshl_b32 {s(st)}, {s(st)}, 3
        s_add_u32 {s(dst)}, {s(dst)}, {s(st)}
        s_mul_i32 {s(dst)}, {s(dst)}, {SLS}
        s_add_u32 {s(dst)}, {s(dst)}, {SLOT}''')
    keyloads = lambda KR: f'''buffer_load_dwordx2 {v(KR,2)}, {v(vt)}, {s(rws,4)}, {s(sflag)} offen sc1
        buffer_load_dwordx2 {v(KR+2,2)}, {v(vt)}, {s(rws,4)}, {s(so)} offen sc1'''
    def keysetup(): k(f"v_mul_u32_u24 {v(vt)}, {KS}, {v(vl)}\ns_mul_i32 {s(sflag)}, {s(sb)}, {KRS}\ns_add_u32 {s(sflag)}, {s(sflag)}, {KEYS}\ns_add_u32 {s(so)}, {s(sflag)}, {64*KS}")
    def partials(ACC, va):
        k(f's_mov_b32 exec_lo, 0x00010001\ns_mov_b32 exec_hi, 0x00010001\nds_write_b128 {v(va)}, {v(ACC,4)}\ns_mov_b64 exec, -1')
    k(f'{Lsp}:\ns_waitcnt lgkmcnt(0)'); modtouch(); k(f's_branch {Lend}')
    k.nv = VBASE
    AFR = k.valloc(28, 4); GR = k.valloc(40, 4); ACC = k.valloc(4, 4); E = k.valloc(8, 4); vp = k.valloc(); va1 = k.valloc(); va2 = k.valloc(2)
    def wtouch():
        if not OPT['TOUCHW']: return
        k(f"""s_sub_u32 {s(st)}, {s(sa)}, 16
        s_lshl_b32 {s(st)}, {s(st)}, 3
        s_add_u32 {s(st)}, {s(st)}, {s(sw)}
        s_cmp_ge_u32 {s(st)}, 28
        s_cselect_b32 {s(r3)}, {s(pw+4)}, {s(pw+2)}
        s_cselect_b32 {s(r3+1)}, {s(pw+5)}, {s(pw+3)}
        s_cselect_b32 {s(st2)}, 28, 0
        s_cmp_ge_u32 {s(st)}, 56
        s_cselect_b32 {s(r3)}, {s(pw+6)}, {s(r3)}
        s_cselect_b32 {s(r3+1)}, {s(pw+7)}, {s(r3+1)}
        s_cselect_b32 {s(st2)}, 56, {s(st2)}
        s_cselect_b64 vcc, -1, 0
        s_cselect_b32 {s(scnt)}, 2, 7
        s_mov_b32 {s(r3+2)}, {448*3584}
        s_mov_b32 {s(r3+3)}, 0x00020000
        s_sub_u32 {s(st)}, {s(st)}, {s(st2)}
        s_mul_i32 {s(st)}, {s(st)}, 57344
        s_mul_i32 {s(scnt)}, {s(scnt)}, {s(sb)}
        s_lshr_b32 {s(scnt)}, {s(scnt)}, 1
        s_lshl_b32 {s(scnt)}, {s(scnt)}, 7
        s_add_u32 {s(st)}, {s(st)}, {s(scnt)}
        v_lshrrev_b32 {v(vt)}, 2, {v(vl)}
        v_mul_u32_u24 {v(vt)}, 3584, {v(vt)}
        v_and_b32 {v(vt3)}, 3, {v(vl)}
        v_lshl_add_u32 {v(vt)}, {v(vt3)}, 7, {v(vt)}
        v_mul_u32_u24 {v(vt3)}, 896, {v(vl)}
        v_cndmask_b32 {v(vt)}, {v(vt)}, {v(vt3)}, vcc
        s_waitcnt vmcnt(0)
        s_barrier
        buffer_load_dword {v(vt2)}, {v(vt)}, {s(r3,4)}, {s(st)} offen""")
    def slowstart(stride):
        if not OPT['SLOW']: return
        L = k.label('ss')
        k(f's_cmp_lg_u32 {s(sw)}, 7\ns_cbranch_scc1 {L}\nv_mul_u32_u24 {v(vt)}, {stride}, {v(vl)}\ns_mov_b32 {s(scnt)}, {s(so)}\ns_waitcnt vmcnt(0)')
        for r in range(OPT['SLOW']):
            k(f'buffer_load_dword {v(vt2)}, {v(vt)}, {s(r3,4)}, {s(scnt)} offen\ns_add_u32 {s(scnt)}, {s(scnt)}, {32*stride}\ns_waitcnt vmcnt(0)')
        k(f'{L}:')
    def wtrig():
        if not OPT['WTRIG']: return
        L = k.label('wt')
        k(f's_waitcnt lgkmcnt(0)'); tagcalc()
        k(f"""s_cmp_lg_u32 {s(sw)}, 0
        s_cbranch_scc1 {L}
        s_mul_i32 {s(sflag)}, {s(sb)}, {FRS}
        s_add_u32 {s(sflag)}, {s(sflag)}, {FLAG1 + (128 if OPT['WTRIG'] == 1 else 0)*FS}
        v_mul_u32_u24 {v(vt)}, {FS}, {v(vl)}""")
        if OPT['WTRIG'] == 3:
            k(f's_add_u32 {s(so)}, {s(sflag)}, {64*FS}')
            poll(f'buffer_load_dword {v(E)}, {v(vt)}, {s(rws,4)}, {s(sflag)} offen sc1\nbuffer_load_dword {v(E+1)}, {v(vt)}, {s(rws,4)}, {s(so)} offen sc1', [E, E+1], name='pw')
        else: poll(f'buffer_load_dword {v(E)}, {v(vt)}, {s(rws,4)}, {s(sflag)} offen sc1', [E], 42 if OPT['WTRIG'] == 1 else 64, name='pw')
        k.stamp(2)
        k(f'{L}:')
    SCR = 57344; RED = SCR + 4096
    k(f'{LG}:\ns_waitcnt lgkmcnt(0)')
    if OPT['MDELAY'] & 2: nonce(); k('s_waitcnt lgkmcnt(0)'); modtouch()
    else: modtouch(); nonce()
    k.srd(rws, pws, WSB); wtouch(); wtrig()
    k(f'''s_mul_i32 {s(sg)}, {s(sb)}, 7
    s_add_u32 {s(sg)}, {s(sg)}, {s(sa)}
    s_sub_u32 {s(sg)}, {s(sg)}, 16
    s_lshl_b32 {s(st)}, {s(sg)}, 2
    s_xor_b32 {s(sj)}, {s(sw)}, {s(st)}
    s_and_b32 {s(sj)}, {s(sj)}, 7
    s_bitcmp1_b32 {s(sj)}, 2
    s_cselect_b32 {s(r3)}, {s(pw+4)}, {s(pw+2)}
    s_cselect_b32 {s(r3+1)}, {s(pw+5)}, {s(pw+3)}
    s_mov_b32 {s(r3+2)}, {448*3584}
    s_mov_b32 {s(r3+3)}, 0x00020000
    v_lshrrev_b32 {v(vt)}, 2, {v(vl)}
    v_mul_u32_u24 {v(vo)}, 3584, {v(vt)}
    v_and_b32 {v(vt)}, 3, {v(vl)}
    v_lshl_add_u32 {v(vo)}, {v(vt)}, 4, {v(vo)}
    s_and_b32 {s(st)}, {s(sw)}, 3
    s_mul_i32 {s(so)}, {s(st)}, {112*3584}
    s_lshl_b32 {s(st2)}, {s(sg)}, 6
    s_add_u32 {s(so)}, {s(so)}, {s(st2)}
    s_mul_i32 {s(st)}, {s(sj)}, 7168''')
    slowstart(3584)
    k('s_waitcnt vmcnt(0) lgkmcnt(0)\ns_barrier')
    for i in range(7):
        k(f's_mov_b32 m0, {s(st)}\ns_add_u32 {s(st)}, {s(st)}, 1024')
        k(f'buffer_load_dwordx4 {v(vo)}, {s(r3,4)}, {s(so)} offen lds\ns_add_u32 {s(so)}, {s(so)}, {16*3584}')
    if not OPT['WTRIG']: tagcalc()
    sact = k.salloc(); sact2 = k.salloc()
    k(f'''v_lshlrev_b32 {v(vt)}, 9, {v(vg)}
    v_bfe_u32 {v(vt2)}, {v(vl)}, 2, 2
    v_lshl_add_u32 {v(vt)}, {v(vt2)}, 6, {v(vt)}
    v_and_b32 {v(vt2)}, 3, {v(vl)}
    v_lshl_add_u32 {v(vt)}, {v(vt2)}, 3, {v(vt)}
    s_and_b32 {s(st)}, {s(sw)}, 1
    s_mul_i32 {s(st)}, {s(st)}, 28672
    s_bfe_u32 {s(st2)}, {s(sw)}, 0x10001
    s_lshl_b32 {s(st2)}, {s(st2)}, 5
    s_add_u32 {s(st)}, {s(st)}, {s(st2)}
    s_lshr_b32 {s(st2)}, {s(sw)}, 2
    s_mul_i32 {s(scnt)}, {s(st2)}, 448
    s_mul_i32 {s(st2)}, {s(st2)}, {224*64}
    s_add_u32 {s(st)}, {s(st)}, {s(st2)}
    v_add_u32 {v(vt)}, {s(st)}, {v(vt)}
    s_add_u32 {s(scnt)}, {s(scnt)}, {SCR}
    v_lshl_add_u32 {v(E+6)}, {v(vg)}, 4, {s(scnt)}
    v_bfe_u32 {v(E+7)}, {v(vl)}, 4, 1
    v_lshlrev_b32 {v(E+7)}, 7, {v(E+7)}
    v_lshl_add_u32 {v(E+7)}, {v(vn)}, 2, {v(E+7)}
    s_lshl_b32 {s(st)}, {s(sw)}, 6
    s_add_u32 {s(st)}, {s(st)}, {RED}
    v_lshl_add_u32 {v(vp)}, {v(vg)}, 4, {s(st)}
    v_mul_u32_u24 {v(va1)}, {ARS}, {v(vg)}
    v_lshl_add_u32 {v(va1)}, {v(vn)}, 3, {v(va1)}
    v_lshlrev_b32 {v(va2)}, 3, {v(vn)}
    s_lshl_b32 {s(sact)}, {s(sg)}, 7
    s_add_u32 {s(sact)}, {s(sact)}, {ACT}
    s_add_u32 {s(sact2)}, {s(sact)}, {4*ARS}
    v_mov_b32 {v(E+5)}, {v(vtag)}
    v_mov_b32 {v(E)}, 0
    v_mov_b32 {v(E+1)}, 0
    v_mov_b32 {v(E+2)}, {RED+1024}
    ds_write_b64 {v(E+2)}, {v(E,2)}
    s_waitcnt vmcnt(0) lgkmcnt(0)
    s_barrier''')
    for i in range(7):
        for hh in range(2): k(f'ds_read_b64_tr_b16 {v(AFR+4*i+2*hh,2)}, {v(vt)} offset:{2048*i+256*hh}')
    Lg1 = k.label('g1'); Lgp = k.label('gp'); Lw1 = k.label('w1'); Lr = k.label('r'); Lrs = k.label('rs')
    sprev = k.salloc()
    CTL = RED + 1024
    NPW = OPT['NPW']; KPW = 128 // NPW
    k(f'''v_mov_b32 {v(va2+1)}, {CTL}
    s_cmp_eq_u32 {s(sw)}, 7
    s_cbranch_scc1 {Lw1}
    s_cmp_ge_u32 {s(sw)}, {NPW}
    s_cbranch_scc1 {Lg1}''')
    k.stamp(5)
    k(f'''v_mul_u32_u24 {v(vt)}, {KS}, {v(vl)}
    s_mul_i32 {s(sflag)}, {s(sb)}, {KRS}
    s_mul_i32 {s(st)}, {s(sw)}, {KPW*KS}
    s_add_u32 {s(sflag)}, {s(sflag)}, {s(st)}
    s_add_u32 {s(sflag)}, {s(sflag)}, {KEYS}
    s_bfm_b64 {s(sr,2)}, {KPW}, 0
    s_mov_b32 {s(scnt)}, 0
    v_mov_b32 {v(GR+2)}, 1
    {Lgp}:
    s_mov_b64 exec, {s(sr,2)}
    buffer_load_dwordx2 {v(GR,2)}, {v(vt)}, {s(rws,4)}, {s(sflag)} offen sc1
    s_add_u32 {s(scnt)}, {s(scnt)}, 1
    s_waitcnt vmcnt(0)
    v_cmp_eq_u32 vcc, {s(stag)}, {v(GR+1)}
    s_andn2_b64 {s(sr,2)}, {s(sr,2)}, vcc
    s_mov_b64 exec, vcc
    ds_max_u32 {v(va2+1)}, {v(GR)}
    s_cmp_ge_u32 {s(scnt)}, 0x200000
    s_cselect_b64 {s(sr,2)}, 0, {s(sr,2)}
    s_cmp_lg_u64 {s(sr,2)}, 0
    s_cbranch_scc1 {Lgp}
    s_mov_b64 exec, 1
    ds_add_u32 {v(va2+1)}, {v(GR+2)} offset:4
    s_mov_b64 exec, -1''')
    k.stamp(3)
    k(f'''s_branch {Lg1}
    {Lw1}:
    v_lshlrev_b32 {v(vo)}, 4, {v(vl)}
    v_lshlrev_b32 {v(E+1)}, 5, {v(vn)}
    v_lshl_add_u32 {v(E+1)}, {v(vg)}, 3, {v(E+1)}
    v_add_u32 {v(E+1)}, {SCR}, {v(E+1)}
    s_mov_b32 {s(sprev)}, 0
    s_mov_b32 {s(scnt)}, 0
    {Lr}:
    ds_read_b64 {v(GR,2)}, {v(va2+1)}
    s_add_u32 {s(scnt)}, {s(scnt)}, 1
    s_cmp_ge_u32 {s(scnt)}, 0x2000000
    s_cbranch_scc1 {Lg1}
    s_waitcnt lgkmcnt(0)
    v_readfirstlane_b32 {s(skey)}, {v(GR)}
    v_readfirstlane_b32 {s(st)}, {v(GR+1)}
    s_cmp_lg_u32 {s(skey)}, {s(sprev)}
    s_cbranch_scc1 {Lrs}
    s_cmp_lg_u32 {s(st)}, {NPW}
    s_cbranch_scc1 {Lr}
    s_branch {Lg1}
    {Lrs}:''')
    key2slot(ss2)
    k(f'''buffer_load_dwordx4 {v(GR+4,4)}, {v(vo)}, {s(rws,4)}, {s(ss2)} offen sc1
    buffer_load_dwordx4 {v(GR+8,4)}, {v(vo)}, {s(rws,4)}, {s(ss2)} offen offset:1024 sc1''')
    k.stamp(2)
    k('s_waitcnt vmcnt(0)')
    k.stamp(3)
    check([GR+5, GR+7, GR+9, GR+11])
    k(f'''s_cbranch_vccnz {Lr}
    s_mov_b32 {s(sprev)}, {s(skey)}
    v_mov_b32 {v(GR+5)}, {v(GR+6)}
    v_mov_b32 {v(GR+9)}, {v(GR+10)}
    ds_write_b64 {v(E+1)}, {v(GR+4,2)}
    ds_write_b64 {v(E+1)}, {v(GR+8,2)} offset:512
    s_branch {Lr}
    {Lg1}:
    s_waitcnt lgkmcnt(0)
    s_barrier''')
    k.stamp(6)
    for i in range(7): k(f'ds_read_b128 {v(GR+12+4*i,4)}, {v(E+6)} offset:{64*i}')
    for i in range(7):
        k(f's_waitcnt lgkmcnt({6-i})')
        k(f'v_mfma_f32_16x16x32_bf16 {v(ACC,4)}, {v(AFR+4*i,4)}, {v(GR+12+4*i,4)}, {"0" if i == 0 else v(ACC,4)}')
    partials(ACC, vp)
    k(f'''s_waitcnt lgkmcnt(0)
    s_barrier
    s_cmp_lg_u32 {s(sw)}, 0
    s_cbranch_scc1 {Lend}
    ds_read_b32 {v(E)}, {v(E+7)} offset:{RED}
    ds_read_b32 {v(E+1)}, {v(E+7)} offset:{RED+256}
    ds_read_b32 {v(E+2)}, {v(E+7)} offset:{RED+64}
    ds_read_b32 {v(E+3)}, {v(E+7)} offset:{RED+64+256}
    s_waitcnt lgkmcnt(2)
    v_add_f32 {v(E)}, {v(E)}, {v(E+1)}''')
    rb1(k, E, E)
    k(f'''v_mul_f32 {v(E+1)}, 0xbfb8aa3b, {v(E)}
    v_exp_f32 {v(E+1)}, {v(E+1)}
    s_waitcnt lgkmcnt(0)
    v_add_f32 {v(E+2)}, {v(E+2)}, {v(E+3)}
    v_add_f32 {v(E+1)}, 1.0, {v(E+1)}
    v_rcp_f32 {v(E+1)}, {v(E+1)}''')
    rb1(k, E + 2, E + 2)
    k(f'v_mul_f32 {v(E)}, {v(E)}, {v(E+1)}')
    rb1(k, E, E)
    k(f'''v_mul_f32 {v(E)}, {v(E)}, {v(E+2)}
    v_mov_b32_dpp {v(E+1)}, {v(E)} quad_perm:[1,0,3,2] row_mask:0xf bank_mask:0xf
    v_cvt_pk_bf16_f32 {v(E+4)}, {v(E)}, {v(E+1)}
    ds_bpermute_b32 {v(E+4)}, {v(va2)}, {v(E+4)}
    s_waitcnt lgkmcnt(0)
    buffer_store_dwordx2 {v(E+4,2)}, {v(va1)}, {s(rws,4)}, {s(sact)} offen sc1
    buffer_store_dwordx2 {v(E+4,2)}, {v(va1)}, {s(rws,4)}, {s(sact2)} offen sc1''')
    k.stamp(7)
    k(f's_branch {Lend}')
    sro = sprev
    k(f'{LD}:\ns_waitcnt lgkmcnt(0)')
    if OPT['MDELAY'] & 2: nonce(); k('s_waitcnt lgkmcnt(0)'); modtouch()
    else: modtouch(); nonce()
    k.srd(rws, pws, WSB); wtouch(); wtrig()
    k(f's_lshl_b32 {s(sg)}, {s(sb)}, 2\ns_add_u32 {s(sg)}, {s(sg)}, {s(sa)}\ns_sub_u32 {s(sg)}, {s(sg)}, 23')
    k.srd(r3, pw + 6, 1792 * 896); k.srd(r4, pout, 1835008)
    k(f'''v_lshrrev_b32 {v(vt)}, 1, {v(vl)}
    v_mul_u32_u24 {v(vo)}, 896, {v(vt)}
    v_and_b32 {v(vt)}, 1, {v(vl)}
    v_lshl_add_u32 {v(vo)}, {v(vt)}, 4, {v(vo)}
    s_lshl_b32 {s(st)}, {s(sg)}, 1
    s_add_u32 {s(ss2)}, {s(sw)}, {s(st)}
    s_and_b32 {s(ss2)}, {s(ss2)}, 7
    s_mul_i32 {s(so)}, {s(ss2)}, {224*896}
    s_lshl_b32 {s(st2)}, {s(sg)}, 5
    s_add_u32 {s(so)}, {s(so)}, {s(st2)}
    s_mul_i32 {s(st)}, {s(sw)}, 7168
    v_lshlrev_b32 {v(E+4)}, 1, {v(vn)}
    s_mov_b32 {s(sro)}, {HUGE}''')
    slowstart(896)
    k('s_waitcnt vmcnt(0) lgkmcnt(0)\ns_barrier')
    for i in range(7):
        k(f's_mov_b32 m0, {s(st)}\ns_add_u32 {s(st)}, {s(st)}, 1024')
        k(f'buffer_load_dwordx4 {v(vo)}, {s(r3,4)}, {s(so)} offen lds\ns_add_u32 {s(so)}, {s(so)}, {32*896}')
    if not OPT['WTRIG']: tagcalc()
    k(f'''v_lshlrev_b32 {v(vt)}, 8, {v(vg)}
    v_lshl_add_u32 {v(vt)}, {v(vn)}, 3, {v(vt)}
    s_mul_i32 {s(st)}, {s(sw)}, 7168
    v_add_u32 {v(vt)}, {s(st)}, {v(vt)}
    s_mul_i32 {s(sact)}, {s(ss2)}, 896
    s_add_u32 {s(sact)}, {s(sact)}, {ACT}
    s_mul_i32 {s(st)}, {s(sb)}, {ARS}
    s_add_u32 {s(sact)}, {s(sact)}, {s(st)}
    s_lshl_b32 {s(st)}, {s(sw)}, 6
    s_add_u32 {s(st)}, {s(st)}, {RED}
    v_lshl_add_u32 {v(vp)}, {v(vg)}, 4, {s(st)}
    v_lshlrev_b32 {v(va2)}, 2, {v(vn)}
    s_waitcnt vmcnt(0)''')
    for i in range(7):
        for hh in range(2): k(f'ds_read_b64_tr_b16 {v(AFR+4*i+2*hh,2)}, {v(vt)} offset:{1024*i+128*hh}')
    Ld1 = k.label('d1')
    k(f's_cmp_lg_u32 {s(sw)}, 0\ns_cbranch_scc1 {Ld1}')
    k.stamp(5)
    keysetup()
    poll(keyloads(GR), [GR+1, GR+3], name='pk')
    keymax(GR); key2slot(ss2)
    k(f'''s_lshl_b32 {s(st)}, {s(sg)}, 6
    s_add_u32 {s(so)}, {s(st)}, {MODV+5*1792}
    v_mov_b32 {v(E+7)}, 0
    buffer_load_dword {v(E+6)}, {v(va2)}, {s(rws,4)}, {s(so)} offen sc1
    s_and_b32 {s(st)}, {s(skey)}, 0xfffff800
    s_or_b32 {s(st)}, {s(st)}, 0x400
    s_ashr_i32 {s(st2)}, {s(st)}, 31
    s_not_b32 {s(st2)}, {s(st2)}
    s_or_b32 {s(st2)}, {s(st2)}, 0x80000000
    s_xor_b32 {s(st)}, {s(st)}, {s(st2)}
    v_mov_b32 {v(E+2)}, {s(st)}''')
    rb1(k, E + 2, E + 2)
    k(f'''v_mul_f32 {v(E+2)}, 0xbfb8aa3b, {v(E+2)}
    v_exp_f32 {v(E+2)}, {v(E+2)}
    v_add_f32 {v(E+2)}, 1.0, {v(E+2)}
    v_rcp_f32 {v(E+2)}, {v(E+2)}''')
    rb1(k, E + 2, E + 2)
    k(f's_add_u32 {s(sflag)}, {s(ss2)}, 2048')
    poll(f'buffer_load_dword {v(E+3)}, {v(E+7)}, {s(rws,4)}, {s(sflag)} offen sc1', [E+3], name='pf')
    k(f'''s_mul_i32 {s(sro)}, {s(sj)}, 896
    s_lshl_b32 {s(st)}, {s(sg)}, 5
    s_add_u32 {s(sro)}, {s(sro)}, {s(st)}
    buffer_load_ushort {v(E)}, {v(E+4)}, {s(r4,4)}, {s(sro)} offen sc1
    {Ld1}:''')
    k.stamp(6)
    k(f'v_lshlrev_b32 {v(vt)}, 4, {v(vl)}\ns_lshl_b32 {s(st)}, {s(sw)}, 9\ns_add_u32 {s(st)}, {s(st)}, {SCR}\nv_lshl_add_u32 {v(vo)}, {v(vl)}, 3, {s(st)}\nv_lshl_add_u32 {v(GR+6)}, {v(vg)}, 4, {s(st)}')
    poll(f'buffer_load_dwordx4 {v(GR,4)}, {v(vt)}, {s(rws,4)}, {s(sact)} offen sc1', [GR+1, GR+3], 56, name='pg')
    k.stamp(7)
    k(f'v_mov_b32 {v(GR+1)}, {v(GR+2)}\nds_write_b64 {v(vo)}, {v(GR,2)}\ns_waitcnt lgkmcnt(0)')
    for i in range(7): k(f'ds_read_b128 {v(GR+8+4*i,4)}, {v(GR+6)} offset:{64*i}')
    for i in range(7):
        k(f's_waitcnt lgkmcnt({6-i})')
        k(f'v_mfma_f32_16x16x32_bf16 {v(ACC,4)}, {v(AFR+4*i,4)}, {v(GR+8+4*i,4)}, {"0" if i == 0 else v(ACC,4)}')
    partials(ACC, vp)
    k(f'''s_waitcnt lgkmcnt(0)
    s_barrier
    s_cmp_lg_u32 {s(sw)}, 0
    s_cbranch_scc1 {Lend}''')
    for i in range(8): k(f'ds_read_b32 {v(GR+i)}, {v(va2)} offset:{RED+64*i}')
    k(f'v_lshlrev_b32 {v(E)}, 16, {v(E)}')
    for i in (1, 3, 5, 7): k(f's_waitcnt lgkmcnt({7-i})\nv_add_f32 {v(GR+i-1)}, {v(GR+i-1)}, {v(GR+i)}')
    k(f'v_add_f32 {v(GR)}, {v(GR)}, {v(GR+2)}\nv_add_f32 {v(GR+4)}, {v(GR+4)}, {v(GR+6)}\nv_add_f32 {v(GR)}, {v(GR)}, {v(GR+4)}')
    rb1(k, GR, GR); k(f'v_mul_f32 {v(GR)}, {v(GR)}, {v(E+2)}'); rb1(k, GR, GR)
    k(f'''v_fma_f32 {v(GR)}, {v(GR)}, {v(E+6)}, {v(E)}
    v_cvt_pk_bf16_f32 {v(GR)}, {v(GR)}, {v(GR)}
    s_bfm_b64 exec, 16, 0
    buffer_store_short {v(GR)}, {v(E+4)}, {s(r4,4)}, {s(sro)} offen sc1
    s_cmp_lg_u32 {s(sg)}, 0
    s_cbranch_scc1 {Lend}
    s_mov_b64 exec, 1
    v_mov_b32 {v(vt)}, {NONCE}
    buffer_store_dword {v(vtag)}, {v(vt)}, {s(rws,4)}, 0 offen sc1''')
    k(f'{Lend}:'); k.dump(); k('s_endpgm')
    return k
if __name__ == '__main__':
    K.diag = '--diag' in sys.argv
    for a in sys.argv[2:]:
        if '=' in a:
            kk, vv = a.split('='); assert kk in OPT; OPT[kk] = int(vv) if vv.lstrip('-').isdigit() else vv
    k = gen()
    k.lines, n = hazard.fix(k.lines); print(k.name, 'vgpr', k.vmax, 'sgpr', k.ns, 'nops', n, 'lines', len(k.lines), 'lds', LDS)
    open(sys.argv[1], 'w').write(emit([k], [(NAME, 256, 512, LDS)]))
```

```python
class K:
    def __init__(self, name):
        self.name = name; self.lines = []; self.nv = 0; self.ns = 0; self.vmax = 0; self.lab = 0
    def __call__(self, s):
        for l in s.strip('\n').split('\n'):
            if not l.strip(): continue
            self.lines.append('    ' + l.strip() if not l.strip().endswith(':') else l.strip())
    def c(self, s): self.lines.append('    ; ' + s)
    def valloc(self, n=1, align=1):
        if n > 1 and align == 1: align = 2
        self.nv = (self.nv + align - 1) // align * align
        r = self.nv; self.nv += n; self.vmax = max(self.vmax, self.nv); return r
    def salloc(self, n=1, align=1):
        if n == 2 and align == 1: align = 2
        if n >= 4 and align == 1: align = 4
        self.ns = (self.ns + align - 1) // align * align
        r = self.ns; self.ns += n; assert self.ns <= 100, 'sgpr overflow'; return r
    def label(self, p='L'):
        self.lab += 1; return f'{self.name}_{p}{self.lab}'
    def srd(self, s, ptr, nbytes, add=0):
        if add:
            self(f's_add_u32 s{s}, s{ptr}, {add:#x}\ns_addc_u32 s{s+1}, s{ptr+1}, 0')
        else:
            self(f's_mov_b32 s{s}, s{ptr}\ns_mov_b32 s{s+1}, s{ptr+1}')
        self(f's_mov_b32 s{s+2}, {nbytes:#x}\ns_mov_b32 s{s+3}, 0x00020000')
    diag = False; DIAG = 0x300000; kid = 0
    dbg = False
    def dstamp(self, i):
        if K.dbg: self(f's_memrealtime s[{84+2*i}:{85+2*i}]')
    def ddump(self, words):
        if not K.dbg: return
        self(f"""s_memrealtime s[100:101]
        s_load_dwordx2 s[4:5], s[0:1], 104
        s_mov_b64 exec, 1
        v_mov_b32 v1, 0
        s_waitcnt lgkmcnt(0)
        s_mov_b32 s6, 256
        s_mov_b32 s7, 0x00020000
        s_not_b32 s8, s84
        v_mov_b32 v2, s8
        buffer_atomic_umax v2, v1, s[4:7], 0 offen""")
        for i in range(9):
            self(f'v_mov_b32 v2, s{84+2*i}\ns_lshl_b32 s8, s{words}, 2\ns_add_u32 s8, s8, {4*i}\nbuffer_atomic_umax v2, v1, s[4:7], s8 offen' if i in (1,2,3,4) else (f'v_mov_b32 v2, s{84+2*i}\nbuffer_atomic_umax v2, v1, s[4:7], 0 offen offset:{4 if i == 0 else 8}' if i in (0, 8) else ''))
    def stamp(self, i, real=False):
        if not K.diag: return
        assert i < 9
        self(f's_{"memrealtime" if real else "memtime"} s[{84+2*i}:{85+2*i}]')
    def dump(self):
        if not K.diag: return
        self(f"""s_memtime s[100:101]
        s_load_dwordx2 s[4:5], s[0:1], 112
        s_mov_b64 exec, -1
        v_lshrrev_b32 v1, 6, v0
        s_waitcnt lgkmcnt(0)
        s_add_u32 s4, s4, {K.DIAG + self.kid * 0x40000}
        s_addc_u32 s5, s5, 0
        s_mov_b32 s6, 0x40000
        s_mov_b32 s7, 0x00020000
        s_lshl_b32 s8, s2, 9
        v_lshlrev_b32 v1, 6, v1
        v_add_u32 v1, s8, v1
        s_getreg_b32 s9, hwreg(HW_REG_XCC_ID)
        s_getreg_b32 s10, hwreg(HW_REG_HW_ID)
        s_mov_b64 exec, 1""")
        for i in range(9):
            self(f'v_mov_b32 v2, s{84+2*i}\nbuffer_store_dword v2, v1, s[4:7], 0 offen offset:{4*i}')
        self('v_mov_b32 v2, s9\nbuffer_store_dword v2, v1, s[4:7], 0 offen offset:36\nv_mov_b32 v2, s10\nbuffer_store_dword v2, v1, s[4:7], 0 offen offset:40')
    def text(self):
        return (f'.globl {self.name}\n.p2align 8\n.type {self.name},@function\n{self.name}:\n' + '\n'.join(self.lines) + '\n')
    def desc(self, sgpr=None):
        nv = max(8, (self.vmax + 7) // 8 * 8)
        return f'''.amdhsa_kernel {self.name}
  .amdhsa_next_free_vgpr {nv}
  .amdhsa_next_free_sgpr {102 if (K.diag or K.dbg) else (sgpr or max(self.ns, 16))}
  .amdhsa_accum_offset {(nv + 3) // 4 * 4}
  .amdhsa_group_segment_fixed_size 0
  .amdhsa_kernarg_size 120
  .amdhsa_user_sgpr_count 2
  .amdhsa_user_sgpr_kernarg_segment_ptr 1
  .amdhsa_system_sgpr_workgroup_id_x 1
  .amdhsa_float_denorm_mode_32 3
.end_amdhsa_kernel
'''
def v(a, n=1): return f'v{a}' if n == 1 else f'v[{a}:{a+n-1}]'
def s(a, n=1): return f's{a}' if n == 1 else f's[{a}:{a+n-1}]'
HEADER = open('adaLN_cond__spectral_fnet__moe_arch_mod__prompt.s.ref').read().split('; Override launch')[0]
def emit(kernels, launches):
    o = HEADER
    if len(launches) == 1 and launches[0][0] == 'adaLN_cond__spectral_fnet__moe_arch_mod__prompt_kernel':
        n, g, b, l = launches[0]
        o += f'; @launch grid=({g},1,1) block=({b},1,1) lds={l}\n'
    else:
        for n, g, b, l in launches:
            o += f'; @launch kernel={n} grid=({g},1,1) block=({b},1,1) lds={l}\n'
    o += '.amdgcn_target "amdgcn-amd-amdhsa--gfx950"\n.text\n'
    for k in kernels: o += k.text()
    o += '.section .rodata,"a"\n'
    for k in kernels: o += '.p2align 6\n' + k.desc()
    return o
```

```python
import sys, struct
from asmlib import *
import hazard
NAME = 'adaLN_cond__spectral_fnet__moe_arch_mod__prompt_kernel'
MODV = 0x1C0000; NONCE = 0x1C8000; FLAG1 = 0x280000; FRS = 0x6000; KEYS = 0x2B0000; KRS = 0x4000; ACT = 0x1F0000; ARS = 0x2000; SLOT = 0x200000; SLS = 4096
WSB = 0x300000
HUGE = 0x3ff00000
OPT = dict(ST=0, FS=32, KS=32, SLEEP=1, HELP=1, EARLY=3, LATE=4, WTRIG=0, MDELAY=3, PD=1, TOUCHW=0, PREP=0, FW=0, DAFIRST=1, SLOW=2, NPW=4, OUT='plain', MFIRST=0)
ZS = 928
UB = 64 * ZS; CB_ = UB + 32768; CAB = CB_ + 5 * 2048; MISC = CAB + 3584; XB = MISC + 64
LDS = XB + 16 * 896 + 128
XS = 288
def fl(x): return '0x%08x' % struct.unpack('<I', struct.pack('<f', x))[0]
def rb1(k, dst, src): k(f'v_cvt_pk_bf16_f32 {v(dst)}, {v(src)}, {v(src)}\nv_and_b32 {v(dst)}, 0xffff0000, {v(dst)}')
def ln_scalars(k, vm, vr):
    k(f'''v_mul_f32 {v(vm)}, {fl(1/448)}, {v(vm)}
    v_mul_f32 {v(vr)}, {fl(1/448)}, {v(vr)}
    v_fma_f32 {v(vr)}, -{v(vm)}, {v(vm)}, {v(vr)}
    v_max_f32 {v(vr)}, 0, {v(vr)}
    v_add_f32 {v(vr)}, 0x3727c5ac, {v(vr)}
    v_rsq_f32 {v(vr)}, {v(vr)}
    v_mul_f32 {v(vm)}, {v(vm)}, {v(vr)}''')

def gen():
    FS = OPT['FS']; KS = OPT['KS']; SLEEP = OPT['SLEEP']
    k = K(NAME); k.ns = 3; k.nv = 1
    def stamp(i, mode):
        if OPT['ST'] in mode: k.stamp(i)
    Lend = k.label('end'); Lmod = k.label('mod'); LG = k.label('G'); LD = k.label('D'); Lsp = k.label('sp')
    k.stamp(0, True); k.stamp(1)
    if K.dbg:
        k.dstamp(0)
        for i in range(1, 5): k(f's_mov_b32 s{84+2*i}, 0')
        k('s_lshr_b32 s83, s2, 3\ns_cmp_lt_u32 s83, 27\ns_cselect_b32 s82, 10, 14\ns_cmp_lt_u32 s83, 23\ns_cselect_b32 s82, 6, s82\ns_cmp_lt_u32 s83, 16\ns_cselect_b32 s82, 2, s82')
    px = k.salloc(2); pws = k.salloc(2); pw = k.salloc(8); pc = k.salloc(4); pout = k.salloc(2)
    stag = k.salloc(); sw = k.salloc(); sa = k.salloc(); sb = k.salloc(); st = k.salloc(); st2 = k.salloc(); so = k.salloc(); scnt = k.salloc()
    sj = k.salloc(); ss2 = k.salloc(); sones = k.salloc(); sflag = k.salloc()
    rx = k.salloc(4); rws = k.salloc(4); r3 = k.salloc(4); r4 = k.salloc(4)
    vl = k.valloc(); vg = k.valloc(); vn = k.valloc(); vt = k.valloc(); vt2 = k.valloc(); vo = k.valloc(); vtag = k.valloc(); vt3 = k.valloc()
    VBASE = k.nv
    k(f'''s_load_dwordx2 {s(px,2)}, s[0:1], 0
    s_load_dwordx4 {s(pc,4)}, s[0:1], 80
    s_load_dwordx2 {s(pws,2)}, s[0:1], 112
    s_load_dwordx8 {s(pw,8)}, s[0:1], 48
    s_load_dwordx2 {s(pout,2)}, s[0:1], 96
    v_lshrrev_b32 {v(vt)}, 6, v0
    v_and_b32 {v(vl)}, 63, v0
    v_readfirstlane_b32 {s(sw)}, {v(vt)}
    v_lshrrev_b32 {v(vg)}, 4, {v(vl)}
    v_and_b32 {v(vn)}, 15, {v(vl)}
    s_lshr_b32 {s(sa)}, s2, 3
    s_and_b32 {s(sb)}, s2, 7
    s_cmp_lt_u32 {s(sa)}, 16
    s_cbranch_scc1 {k.name}_S1
    s_cmp_ge_u32 s2, 256
    s_cbranch_scc1 {Lend}
    s_cmp_lt_u32 {s(sa)}, 23
    s_cbranch_scc1 {LG}
    s_sub_u32 {s(ss2)}, s2, 216
    s_cmp_ge_u32 {s(sa)}, 27
    s_cbranch_scc1 {Lmod}
    s_cmp_lg_u32 {s(sb)}, 7
    s_cbranch_scc1 {LD}
    s_add_u32 {s(ss2)}, {s(sa)}, 17
    s_cmp_ge_u32 {s(sa)}, 25
    s_cbranch_scc1 {Lsp}''')
    def check(check_regs):
        r0 = check_regs[0]
        if len(check_regs) == 1: k(f'v_cmp_ne_u32 vcc, {s(stag)}, {v(r0)}')
        else:
            k(f'v_xor_b32 {v(vt3)}, {s(stag)}, {v(r0)}')
            for r in check_regs[1:]: k(f'v_xor_b32 {v(vt2)}, {s(stag)}, {v(r)}\nv_or_b32 {v(vt3)}, {v(vt3)}, {v(vt2)}')
            k(f'v_cmp_ne_u32 vcc, 0, {v(vt3)}')
    def poll(load, check_regs, nlanes=64, name='poll', wait='vmcnt(0)'):
        Lp = k.label(name); Ld = k.label(name + 'd')
        k(f's_mov_b32 {s(scnt)}, 0')
        if nlanes < 64: k(f's_bfm_b64 exec, {nlanes}, 0')
        k(f'{Lp}:'); k(load); k(f's_add_u32 {s(scnt)}, {s(scnt)}, 1\ns_waitcnt {wait}')
        check(check_regs)
        k(f's_cbranch_vccz {Ld}')
        if SLEEP: k(f's_sleep {SLEEP}')
        k(f's_cmp_lt_u32 {s(scnt)}, 0x200000\ns_cbranch_scc1 {Lp}\n{Ld}:')
        if nlanes < 64: k('s_mov_b64 exec, -1')
    def ppoll(loadf, nld, regsf, depth, nlanes=64, name='pp'):
        if depth == 1: return poll(loadf(0), regsf(0), nlanes, name)
        Lp = k.label(name); Ld = k.label(name + 'd')
        k(f's_mov_b32 {s(scnt)}, 0')
        if nlanes < 64: k(f's_bfm_b64 exec, {nlanes}, 0')
        for i in range(depth - 1): k(loadf(i)); k('s_sleep 1')
        k(f'{Lp}:')
        for i in range(depth):
            k(loadf((i + depth - 1) % depth)); k(f's_waitcnt vmcnt({nld*(depth-1)})'); check(regsf(i)); k(f's_cbranch_vccz {Ld}\ns_sleep 1')
        k(f's_add_u32 {s(scnt)}, {s(scnt)}, 1\ns_cmp_lt_u32 {s(scnt)}, 0x100000\ns_cbranch_scc1 {Lp}\n{Ld}:')
        if nlanes < 64: k('s_mov_b64 exec, -1')
    assert st2 == st + 1 and st % 2 == 0
    def nonce(): k(f's_add_u32 {s(st)}, {s(pws)}, {NONCE}\ns_addc_u32 {s(st2)}, {s(pws+1)}, 0\ns_load_dword {s(stag)}, {s(st,2)}, 0')
    def tagcalc(): k(f's_mul_i32 {s(stag)}, {s(stag)}, 0x9E3779B1\ns_add_u32 {s(stag)}, {s(stag)}, 0x7F4A7C15\nv_mov_b32 {v(vtag)}, {s(stag)}')
    def flagprep(vf): k(f's_mul_i32 {s(sflag)}, {s(sflag)}, {FS}\ns_add_u32 {s(sflag)}, {s(sflag)}, {FLAG1}\nv_mul_u32_u24 {v(vf)}, {FRS}, {v(vl)}')
    def sendflag(vf): k(f's_mov_b64 exec, 0xff\nbuffer_store_dword {v(vtag)}, {v(vf)}, {s(rws,4)}, {s(sflag)} offen sc1\ns_mov_b64 exec, -1')
    X = k.valloc(28, 4); C = k.valloc(8); T = k.valloc(8); A = k.valloc(8); aM = k.valloc(); vf = k.valloc()
    sm_ = ss2; sadd = sj; smul = sones
    k(f'{Lmod}:')
    k(f'''s_mul_i32 {s(st)}, {s(sw)}, 56
    v_lshrrev_b32 {v(vt)}, 3, {v(vl)}
    v_add_u32 {v(vt2)}, {s(st)}, {v(vt)}
    v_mul_u32_u24 {v(vo)}, 5376, {v(vt2)}
    v_and_b32 {v(vt2)}, 7, v0
    v_lshl_add_u32 {v(vo)}, {v(vt2)}, 4, {v(vo)}
    v_add_u32 {v(vt3)}, {s(st)}, {v(vl)}
    v_lshlrev_b32 {v(vt3)}, 1, {v(vt3)}
    s_lshl_b32 {s(so)}, {s(sm_)}, 7
    s_waitcnt lgkmcnt(0)''')
    k.srd(r3, pc, 896); k.srd(r4, pc + 2, 448 * 5376)
    if OPT['MDELAY'] & 1: nonce(); k('s_waitcnt lgkmcnt(0)')
    k(f'buffer_load_ushort {v(C+7)}, {v(vt3)}, {s(r3,4)}, 0 offen')
    for i in range(7):
        k(f'buffer_load_dwordx4 {v(X+4*i,4)}, {v(vo)}, {s(r4,4)}, {s(so)} offen')
        if i < 6: k(f's_add_u32 {s(so)}, {s(so)}, {8*5376}')
    if not OPT['MDELAY'] & 1: nonce()
    k.srd(rws, pws, WSB)
    k.stamp(2)
    k(f'''v_lshlrev_b32 {v(vt3)}, 2, {v(vt)}
    v_lshrrev_b32 {v(vt)}, 6, v0
    v_lshlrev_b32 {v(aM)}, 8, {v(vt)}
    v_lshl_add_u32 {v(aM)}, {v(vt2)}, 5, {v(aM)}
    v_bfe_u32 {v(vt2)}, v0, 4, 1
    v_lshl_add_u32 {v(aM)}, {v(vt2)}, 3, {v(aM)}
    v_bfe_u32 {v(vt2)}, v0, 5, 1
    v_lshl_add_u32 {v(aM)}, {v(vt2)}, 2, {v(aM)}
    s_mul_i32 {s(st2)}, {s(sm_)}, 37
    s_lshr_b32 {s(st2)}, {s(st2)}, 8
    s_cmp_eq_u32 {s(st2)}, 0
    s_cselect_b32 {s(smul)}, 0x45000000, 1.0
    s_cmp_eq_u32 {s(st2)}, 1
    s_cselect_b32 {s(sadd)}, 1.0, 0
    s_cmp_eq_u32 {s(st2)}, 4
    s_cselect_b32 {s(sadd)}, 1.0, {s(sadd)}
    s_lshl_b32 {s(so)}, {s(sm_)}, 8
    s_add_u32 {s(so)}, {s(so)}, {MODV}
    s_add_u32 {s(sflag)}, {s(sm_)}, 128
    v_lshlrev_b32 {v(vo)}, 2, v0''')
    flagprep(vf)
    k(f'''s_waitcnt vmcnt(7)
    v_lshlrev_b32 {v(C+7)}, 16, {v(C+7)}
    v_mul_f32 {v(T)}, 0xbfb8aa3b, {v(C+7)}
    v_exp_f32 {v(T)}, {v(T)}
    v_add_f32 {v(T)}, 1.0, {v(T)}
    v_rcp_f32 {v(T)}, {v(T)}
    v_mul_f32 {v(C+7)}, {v(C+7)}, {v(T)}''')
    rb1(k, C + 7, C + 7)
    for i in range(7): k(f'ds_bpermute_b32 {v(C+i)}, {v(vt3)}, {v(C+7)} offset:{32*i}')
    k('s_waitcnt lgkmcnt(0)'); tagcalc()
    for i in range(7):
        k(f's_waitcnt vmcnt({6-i})')
        for q in range(4):
            k(f'v_lshlrev_b32 {v(T+2*(q&1))}, 16, {v(X+4*i+q)}\nv_and_b32 {v(T+2*(q&1)+1)}, 0xffff0000, {v(X+4*i+q)}')
            if i == 0: k(f'v_mul_f32 {v(A+2*q)}, {v(T+2*(q&1))}, {v(C)}\nv_mul_f32 {v(A+2*q+1)}, {v(T+2*(q&1)+1)}, {v(C)}')
            else: k(f'v_fmac_f32 {v(A+2*q)}, {v(T+2*(q&1))}, {v(C+i)}\nv_fmac_f32 {v(A+2*q+1)}, {v(T+2*(q&1)+1)}, {v(C+i)}')
    k.stamp(4)
    for q in range(4): k(f'v_permlane32_swap_b32 {v(A+2*q)}, {v(A+2*q+1)}')
    for q in range(4): k(f'v_add_f32 {v(A+2*q)}, {v(A+2*q)}, {v(A+2*q+1)}')
    for p in range(2): k(f'v_permlane16_swap_b32 {v(A+4*p)}, {v(A+4*p+2)}')
    for p in range(2): k(f'v_add_f32 {v(A+4*p)}, {v(A+4*p)}, {v(A+4*p+2)}')
    for p in range(2): k(f'v_add_f32_dpp {v(A+4*p)}, {v(A+4*p)}, {v(A+4*p)} row_ror:8 row_mask:0xf bank_mask:0xf')
    k(f'''ds_write_b32 {v(aM)}, {v(A)}
    ds_write_b32 {v(aM)}, {v(A+4)} offset:16
    s_waitcnt lgkmcnt(0)
    s_barrier
    s_cmp_lg_u32 {s(sw)}, 0
    s_cbranch_scc1 {Lend}''')
    for i in range(8): k(f'ds_read_b32 {v(T+i)}, {v(vo)} offset:{256*i}')
    for i in (1, 3, 5, 7): k(f's_waitcnt lgkmcnt({7-i})\nv_add_f32 {v(T+i-1)}, {v(T+i-1)}, {v(T+i)}')
    k(f'v_add_f32 {v(T)}, {v(T)}, {v(T+2)}\nv_add_f32 {v(T+4)}, {v(T+4)}, {v(T+6)}\nv_add_f32 {v(T)}, {v(T)}, {v(T+4)}')
    rb1(k, T, T); k(f'v_add_f32 {v(T)}, {s(sadd)}, {v(T)}'); rb1(k, T, T)
    k(f'''v_mul_f32 {v(T)}, {s(smul)}, {v(T)}
    buffer_store_dword {v(T)}, {v(vo)}, {s(rws,4)}, {s(so)} offen sc1
    s_waitcnt vmcnt(0)''')
    sendflag(vf); k.dstamp(1)
    k(f's_branch {Lend}')
    k.nv = VBASE
    F0 = k.valloc(16, 4); FB = k.valloc(16, 4); AD = k.valloc(24, 4); XF = k.valloc(16, 4)
    vstep = k.valloc(); vbase = k.valloc(); aU = k.valloc(4); aV = k.valloc(2); aT = k.valloc(); vx0 = k.valloc(); vx1 = k.valloc(); aC = k.valloc(); aK = k.valloc()
    vh0 = k.valloc(); vh1 = k.valloc(); vki = k.valloc(); vkm = k.valloc(); vsb = k.valloc(); vf = k.valloc()
    AZ = k.valloc(32, 4); PR = k.valloc(16, 4); PI = k.valloc(16, 4); CA = k.valloc(16, 4); CK = k.valloc(40, 4); BP = k.valloc(16, 4)
    XR = BP
    Fre0 = F0; Fim0 = F0 + 4; Fre1 = F0 + 8; Fim1 = F0 + 12
    X = AZ; T = PR; BF = CA; a1 = CA + 8; a2 = CA + 10; vs1 = CA + 12; aW = CA + 13; aR = CA + 14; aZ = CA + 15; aT1 = CK; aT2 = CK + 1; TG = PI
    soff = k.salloc(7); sslot = k.salloc(); st0 = k.salloc(); smir = k.salloc(); sxl = k.salloc(); sxo = k.salloc(); sz1 = k.salloc(); sz2 = k.salloc()
    k(f'''{k.name}_S1:
    s_lshr_b32 {s(ss2)}, {s(sa)}, 2
    s_lshl_b32 {s(st)}, {s(sb)}, 2
    s_add_u32 {s(ss2)}, {s(ss2)}, {s(st)}
    s_and_b32 {s(sj)}, {s(sa)}, 3
    s_lshl_b32 {s(sj)}, {s(sj)}, 1
    s_mul_i32 {s(so)}, {s(ss2)}, 896
    s_lshl_b32 {s(st)}, {s(sj)}, 7
    s_add_u32 {s(soff)}, {s(so)}, {s(st)}
    s_add_u32 {s(st2)}, {s(so)}, 896''')
    for i in range(1, 7):
        k(f's_add_u32 {s(soff+i)}, {s(soff+i-1)}, 128\ns_cmp_ge_u32 {s(soff+i)}, {s(st2)}\ns_cselect_b32 {s(soff+i)}, {s(so)}, {s(soff+i)}')
    k(f'''s_add_u32 {s(st)}, {s(sw)}, {s(sj)}
    s_and_b32 {s(st)}, {s(st)}, 7
    s_lshl_b32 {s(st)}, {s(st)}, 3
    v_lshrrev_b32 {v(vs1)}, 3, {v(vl)}
    v_add_u32 {v(vs1)}, {s(st)}, {v(vs1)}
    v_mul_u32_u24 {v(vt)}, 28672, {v(vs1)}
    v_and_b32 {v(vt2)}, 7, v0
    v_lshl_add_u32 {v(vo)}, {v(vt2)}, 4, {v(vt)}
    s_waitcnt lgkmcnt(0)''')
    k.srd(rx, px, 1835008)
    def xloads():
        for i in range(7): k(f'buffer_load_dwordx4 {v(X+4*i,4)}, {v(vo)}, {s(rx,4)}, {s(soff+i)} offen')
    Lx1 = k.label('x1'); Lx2 = k.label('x2')
    k(f"s_cmp_ge_u32 {s(sw)}, {OPT['LATE']}\ns_cbranch_scc1 {Lx1}"); xloads(); k(f'{Lx1}:')
    nonce(); k.srd(rws, pws, WSB)
    stamp(2, {1})
    k(f'''s_lshl_b32 {s(sflag)}, {s(ss2)}, 2
    s_lshr_b32 {s(st)}, {s(sj)}, 1
    s_add_u32 {s(sflag)}, {s(sflag)}, {s(st)}
    s_mov_b32 {s(sones)}, 0x3f803f80
    s_and_b32 {s(st)}, {s(sw)}, 1
    s_lshl_b32 {s(st)}, {s(st)}, 4
    v_add_u32 {v(vt3)}, {s(st)}, {v(vn)}
    v_cvt_f32_u32 {v(vstep)}, {v(vt3)}
    s_bitcmp1_b32 {s(sw)}, 1
    s_cselect_b32 {s(st)}, {fl(0.25)}, 0
    s_cselect_b32 {s(st2)}, {fl(32.0)}, 0
    v_mov_b32 {v(vbase)}, {s(st)}
    v_mov_b32 {v(vt)}, {s(st2)}
    v_cmp_eq_u32 vcc, 0, {v(vt3)}
    v_cndmask_b32 {v(vstep)}, {v(vstep)}, {v(vt)}, vcc
    v_cndmask_b32 {v(vbase)}, {v(vbase)}, 0, vcc
    v_mul_f32 {v(vstep)}, {fl(1/64)}, {v(vstep)}
    v_lshlrev_b32 {v(vt)}, 2, {v(vg)}
    v_cvt_f32_u32 {v(vt)}, {v(vt)}
    v_fmac_f32 {v(vbase)}, {v(vstep)}, {v(vt)}''')
    for e in range(16):
        o = 32 * (e >> 3) + 16 * ((e >> 2) & 1) + (e & 3)
        k(f'v_fmamk_f32 {v(T+e)}, {v(vstep)}, {fl(o)}, {v(vbase)}')
    for e in range(16): k(f'v_cos_f32 {v(T+e)}, {v(T+e)}')
    for e in range(8): k(f'v_cvt_pk_bf16_f32 {v(BF+e)}, {v(T+2*e)}, {v(T+2*e+1)}')
    flagprep(vf)
    k(f'''v_mov_b32 {v(a1)}, 0
    v_mov_b32 {v(a1+1)}, 0
    v_mov_b32 {v(a2)}, 0
    v_mov_b32 {v(a2+1)}, 0
    v_mov_b32 {v(vt)}, {MISC}
    ds_write_b128 {v(vt)}, {v(a1,4)}
    v_mul_u32_u24 {v(aW)}, {XS}, {v(vs1)}
    v_and_b32 {v(vt2)}, 7, v0
    v_lshl_add_u32 {v(aW)}, {v(vt2)}, 4, {v(aW)}
    v_lshrrev_b32 {v(vt)}, 2, {v(vl)}
    v_mul_u32_u24 {v(aR)}, {XS}, {v(vt)}
    v_and_b32 {v(vt3)}, 3, {v(vl)}
    v_lshl_add_u32 {v(aR)}, {v(vt3)}, 3, {v(aR)}
    s_lshr_b32 {s(st)}, {s(sw)}, 2
    s_lshl_b32 {s(st)}, {s(st)}, 7
    v_add_u32 {v(aR)}, {s(st)}, {v(aR)}
    v_lshrrev_b32 {v(vt)}, 3, {v(vl)}
    v_mul_u32_u24 {v(aZ)}, 57344, {v(vt)}
    v_lshl_add_u32 {v(aZ)}, {v(vt2)}, 4, {v(aZ)}
    s_mul_i32 {s(scnt)}, {s(sw)}, 2304
    s_add_u32 {s(scnt)}, {s(scnt)}, {64*XS}
    v_mul_u32_u24 {v(aT1)}, 144, {v(vn)}
    v_lshl_add_u32 {v(aT1)}, {v(vg)}, 3, {v(aT1)}
    v_add_u32 {v(aT1)}, {s(scnt)}, {v(aT1)}
    v_mul_u32_u24 {v(aT2)}, 144, {v(vt)}
    v_lshl_add_u32 {v(aT2)}, {v(vt2)}, 4, {v(aT2)}
    v_add_u32 {v(aT2)}, {s(scnt)}, {v(aT2)}
    s_bfe_u32 {s(st2)}, {s(sw)}, 0x10001
    s_mul_i32 {s(st2)}, {s(st2)}, 28672
    s_add_u32 {s(sz1)}, {s(soff)}, {s(st2)}
    s_add_u32 {s(sz1)}, {s(sz1)}, {s(st)}
    s_and_b32 {s(st2)}, {s(sw)}, 1
    s_mul_i32 {s(st2)}, {s(st2)}, {16*57344}
    s_add_u32 {s(sz1)}, {s(sz1)}, {s(st2)}
    s_lshr_b32 {s(st)}, {s(sw)}, 2
    s_add_u32 {s(st)}, {s(st)}, {s(sj)}
    s_cmp_eq_u32 {s(st)}, 7
    s_cselect_b32 {s(sz1)}, {HUGE}, {s(sz1)}
    s_add_u32 {s(sz2)}, {s(sz1)}, {8*57344}''')
    assert a2 == a1 + 2 and a1 % 4 == 0
    k(f'''s_lshr_b32 {s(st)}, {s(sa)}, 2
    s_lshl_b32 {s(st)}, {s(st)}, 3
    s_add_u32 {s(sslot)}, {s(sb)}, {s(st)}
    s_bfe_u32 {s(smir)}, {s(sa)}, 0x10001
    s_sub_u32 {s(st)}, 64, {s(sslot)}
    s_cmp_eq_u32 {s(sslot)}, 0
    s_cselect_b32 {s(st)}, 32, {s(st)}
    s_cmp_eq_u32 {s(smir)}, 1
    s_cselect_b32 {s(st0)}, {s(st)}, {s(sslot)}
    s_and_b32 {s(st)}, {s(sa)}, 1
    s_lshl_b32 {s(st)}, {s(st)}, 10
    s_add_u32 {s(st0)}, {s(st0)}, {s(st)}
    s_lshl_b32 {s(st)}, {s(sw)}, 7
    s_add_u32 {s(st)}, {s(st)}, {s(st0)}
    s_mul_i32 {s(sxo)}, {s(st)}, 896
    s_sub_u32 {s(st)}, 2047, {s(st)}
    v_and_b32 {v(vki)}, 32, {v(vl)}
    v_lshlrev_b32 {v(vki)}, 1, {v(vki)}
    v_sub_u32 {v(vki)}, {s(st)}, {v(vki)}
    v_mov_b32 {v(vkm)}, 0xfffff800
    v_lshlrev_b32 {v(vt)}, 5, {v(vn)}
    v_lshl_add_u32 {v(vt)}, {v(vg)}, 3, {v(vt)}
    s_mul_i32 {s(sxl)}, {s(sw)}, 1792
    s_add_u32 {s(sxl)}, {s(sxl)}, {XB}
    v_add_u32 {v(vx0)}, {s(sxl)}, {v(vt)}
    v_lshlrev_b32 {v(vh0)}, 4, {v(vl)}
    v_add_u32 {v(vx1)}, {s(sxl)}, {v(vh0)}
    v_add_u32 {v(aK)}, {CB_}, {v(vh0)}
    v_mov_b32 {v(vt2)}, {HUGE}
    s_lshr_b32 {s(st)}, {s(sw)}, 1
    v_lshlrev_b32 {v(vt)}, 2, {v(vg)}
    v_xor_b32 {v(vt)}, {v(vt)}, {v(vn)}
    v_and_b32 {v(vt)}, 7, {v(vt)}
    v_xor_b32 {v(vt)}, {s(st)}, {v(vt)}
    v_lshlrev_b32 {v(aU)}, 4, {v(vt)}
    v_lshl_add_u32 {v(aU)}, {v(vn)}, 11, {v(aU)}
    v_lshl_add_u32 {v(aU)}, {v(vg)}, 9, {v(aU)}
    s_and_b32 {s(st)}, {s(sw)}, 1
    s_lshl_b32 {s(st)}, {s(st)}, 3
    s_add_u32 {s(st)}, {s(st)}, {UB}
    v_add_u32 {v(aU)}, {s(st)}, {v(aU)}
    v_xor_b32 {v(aU+1)}, 16, {v(aU)}
    v_xor_b32 {v(aU+2)}, 32, {v(aU)}
    v_xor_b32 {v(aU+3)}, 48, {v(aU)}
    s_lshl_b32 {s(st)}, {s(sw)}, 1
    v_xor_b32 {v(vt)}, {v(vg)}, {v(vn)}
    v_xor_b32 {v(vt)}, {s(st)}, {v(vt)}
    v_and_b32 {v(vt)}, 7, {v(vt)}
    v_lshlrev_b32 {v(aV)}, 4, {v(vt)}
    v_lshl_add_u32 {v(aV)}, {v(vn)}, 7, {v(aV)}
    s_lshl_b32 {s(st)}, {s(sw)}, 12
    s_add_u32 {s(st)}, {s(st)}, {UB}
    v_add_u32 {v(aV)}, {s(st)}, {v(aV)}
    v_xor_b32 {v(aV+1)}, 16, {v(aV)}
    v_lshrrev_b32 {v(vt)}, 2, {v(vl)}
    v_mul_u32_u24 {v(aT)}, {ZS}, {v(vt)}
    v_mul_u32_u24 {v(vt)}, 56, {v(vt3)}
    s_lshl_b32 {s(st)}, {s(sw)}, 3
    v_add3_u32 {v(aT)}, {v(aT)}, {v(vt)}, {s(st)}
    v_mul_u32_u24 {v(aC)}, 112, {v(vg)}
    s_lshl_b32 {s(st)}, {s(sw)}, 4
    s_add_u32 {s(st)}, {s(st)}, {CAB}
    v_add_u32 {v(aC)}, {s(st)}, {v(aC)}''')
    v7a = vsb; v7b = k.valloc(); v7c = PI + 10
    k.srd(r4, pw, 896)
    k(f'''s_cmp_eq_u32 {s(sw)}, 7
    s_cselect_b32 {s(r4+2)}, {s(r4+2)}, 0
    v_lshlrev_b32 {v(v7a)}, 3, {v(vl)}
    v_add_u32 {v(v7b)}, 512, {v(v7a)}
    v_cmp_gt_u32 vcc, 48, {v(vl)}
    v_cndmask_b32 {v(v7b)}, {v(vt2)}, {v(v7b)}, vcc''')
    def gen_f28():
        k(f'''v_cvt_f32_u32 {v(vstep)}, {v(vn)}
        v_mul_f32 {v(vstep)}, {fl(1/28)}, {v(vstep)}
        v_lshlrev_b32 {v(vt)}, 3, {v(vg)}
        v_cvt_f32_u32 {v(vt)}, {v(vt)}
        v_cmp_gt_u32 vcc, 12, {v(vn)}''')
        for b in range(2):
            if b == 1: k(f'v_add_f32 {v(vstep)}, {fl(16/28)}, {v(vstep)}')
            k(f'v_mul_f32 {v(vbase)}, {v(vt)}, {v(vstep)}')
            for e in range(8): k(f'v_fmamk_f32 {v(TG+e)}, {v(vstep)}, {fl(e)}, {v(vbase)}')
            for e in range(8): k(f'v_sin_f32 {v(TG+8+e)}, {v(TG+e)}\nv_cos_f32 {v(TG+e)}, {v(TG+e)}')
            for e in range(4): k(f'v_cvt_pk_bf16_f32 {v(FB+8*b+e)}, {v(TG+2*e)}, {v(TG+2*e+1)}\nv_cvt_pk_bf16_f32 {v(FB+8*b+4+e)}, -{v(TG+8+2*e)}, -{v(TG+9+2*e)}')
        for e in range(8): k(f'v_cndmask_b32 {v(FB+8+e)}, 0, {v(FB+8+e)}, vcc')
    sx1 = k.salloc(); sx2 = k.salloc(); sm0 = k.salloc(); sm1 = k.salloc(); ssw = k.salloc(2)
    def gen_w():
        k(f'''v_lshlrev_b32 {v(vt)}, 6, {v(vn)}
        v_add_u32 {v(vt)}, {s(st0)}, {v(vt)}
        v_cvt_f32_u32 {v(vstep)}, {v(vt)}
        v_mul_f32 {v(vstep)}, {fl(1/2048)}, {v(vstep)}
        v_lshlrev_b32 {v(vt)}, 2, {v(vg)}
        v_cvt_f32_u32 {v(vbase)}, {v(vt)}
        v_mul_f32 {v(vbase)}, {v(vbase)}, {v(vstep)}''')
        for e in range(8): k(f'v_fmamk_f32 {v(TG+e)}, {v(vstep)}, {fl(16*(e>>2)+(e&3))}, {v(vbase)}')
        for e in range(8): k(f'v_sin_f32 {v(TG+8+e)}, {v(TG+e)}\nv_cos_f32 {v(TG+e)}, {v(TG+e)}')
        for e in range(4): k(f'v_cvt_pk_bf16_f32 {v(Fre0+e)}, {v(TG+2*e)}, {v(TG+2*e+1)}\nv_cvt_pk_bf16_f32 {v(Fim0+e)}, -{v(TG+8+2*e)}, -{v(TG+9+2*e)}')
        Lns = k.label('ns'); Lnx = k.label('nx')
        k(f'''s_cmp_eq_u32 {s(smir)}, 1
        s_cselect_b32 {s(sx1)}, 0, 0x80008000
        s_cselect_b32 {s(sx2)}, 0x80008000, 0
        s_cmp_eq_u32 {s(sslot)}, 0
        s_cbranch_scc1 {Lns}''')
        for q in range(4): k(f'v_xor_b32 {v(Fre1+q)}, {s(sx1)}, {v(Fim0+q)}\nv_xor_b32 {v(Fim1+q)}, {s(sx2)}, {v(Fre0+q)}')
        k(f's_branch {Lnx}\n{Lns}:\ns_cmp_eq_u32 {s(smir)}, 1\ns_cselect_b32 {s(sm0)}, 0, -1\ns_cselect_b32 {s(sm1)}, -1, 0')
        for q in range(4):
            k(f'''v_and_b32 {v(Fre1+q)}, {s(sm1)}, {v(Fre0+q)}
            v_and_b32 {v(Fim1+q)}, {s(sm1)}, {v(Fim0+q)}
            v_and_b32 {v(Fre0+q)}, {s(sm0)}, {v(Fre0+q)}
            v_and_b32 {v(Fim0+q)}, {s(sm0)}, {v(Fim0+q)}''')
        k(f'{Lnx}:')
    def gen_da(TT):
        k(f'''v_cvt_f32_u32 {v(vstep)}, {v(vn)}
        v_mul_f32 {v(vstep)}, {fl(1/448)}, {v(vstep)}
        v_mul_u32_u24 {v(vt)}, 28, {v(vg)}
        s_lshl_b32 {s(st)}, {s(sw)}, 2
        v_add_u32 {v(vt)}, {s(st)}, {v(vt)}
        v_cvt_f32_u32 {v(vbase)}, {v(vt)}
        v_mul_f32 {v(vbase)}, {v(vbase)}, {v(vstep)}''')
        for q in range(4):
            for T_ in range(4): k(f'v_fmamk_f32 {v(TT+4*q+T_)}, {v(vstep)}, {fl(112*T_+q)}, {v(vbase)}')
        for e in range(16): k(f'v_sin_f32 {v(TT+16+e)}, {v(TT+e)}\nv_cos_f32 {v(TT+e)}, {v(TT+e)}')
        for q in range(4):
            A_ = AD + 6 * q
            k(f'''v_cvt_pk_bf16_f32 {v(A_)}, {v(TT+4*q)}, {v(TT+4*q+1)}
            v_cvt_pk_bf16_f32 {v(A_+1)}, {v(TT+4*q+2)}, {v(TT+4*q+3)}
            v_cvt_pk_bf16_f32 {v(A_+2)}, {v(TT+16+4*q)}, {v(TT+16+4*q+1)}
            v_cvt_pk_bf16_f32 {v(A_+3)}, {v(TT+16+4*q+2)}, {v(TT+16+4*q+3)}
            v_xor_b32 {v(A_+4)}, 0x80008000, {v(A_)}
            v_xor_b32 {v(A_+5)}, 0x80008000, {v(A_+1)}''')
    if OPT['EARLY'] & 1: gen_w()
    k(f"s_cmp_lt_u32 {s(sw)}, {OPT['LATE']}\ns_cbranch_scc1 {Lx2}"); xloads(); k(f'{Lx2}:')
    if OPT['EARLY'] & 2: gen_f28()
    stamp(5, {1})
    for i in range(7):
        k(f's_waitcnt vmcnt({6-i})')
        if i < 2:
            for q in range(4): k(f'v_lshlrev_b32 {v(T+8*i+2*q)}, 16, {v(X+4*i+q)}\nv_and_b32 {v(T+8*i+2*q+1)}, 0xffff0000, {v(X+4*i+q)}')
        for q in range(4):
            k(f'v_dot2c_f32_bf16 {v(a1+(q&1))}, {s(sones)}, {v(X+4*i+q)}')
            k(f'v_dot2c_f32_bf16 {v(a2+(q&1))}, {v(X+4*i+q)}, {v(X+4*i+q)}')
    stamp(3, {1}); k.dstamp(1)
    k(f'''s_mov_b32 m0, {s(sxl)}
    s_add_u32 {s(st)}, {s(sxo)}, {57344-896}
    s_bfm_b64 exec, 56, 0
    buffer_load_dwordx4 {v(vh0)}, {s(rx,4)}, {s(sxo)} offen lds
    buffer_load_dwordx4 {v(vh0)}, {s(rx,4)}, {s(st)} offen offset:896 lds
    s_mov_b64 exec, -1
    buffer_load_dwordx2 {v(XF,2)}, {v(v7a)}, {s(r4,4)}, 0 offen
    buffer_load_dwordx2 {v(XF+2,2)}, {v(v7b)}, {s(r4,4)}, 0 offen''')
    if OPT['PREP']:
        Lpp = k.label('prep')
        k(f'''s_cmp_lt_u32 {s(sw)}, 5
        s_cbranch_scc1 {Lpp}
        s_mul_i32 {s(st)}, {s(sb)}, {FRS}
        s_sub_u32 {s(st2)}, {s(sw)}, 5
        s_mul_i32 {s(st2)}, {s(st2)}, {64*FS}
        s_add_u32 {s(st)}, {s(st)}, {s(st2)}
        s_add_u32 {s(st)}, {s(st)}, {FLAG1}
        v_mul_u32_u24 {v(XF+5)}, {FS}, {v(vl)}
        buffer_load_dword {v(XF+4)}, {v(XF+5)}, {s(rws,4)}, {s(st)} offen sc1
        {Lpp}:''')
    k(f'v_add_f32 {v(a1)}, {v(a1)}, {v(a1+1)}\nv_add_f32 {v(a2)}, {v(a2)}, {v(a2+1)}')
    for dp in ('quad_perm:[1,0,3,2]', 'quad_perm:[2,3,0,1]', 'row_half_mirror'):
        k(f'v_add_f32_dpp {v(a1)}, {v(a1)}, {v(a1)} {dp} row_mask:0xf bank_mask:0xf')
        k(f'v_add_f32_dpp {v(a2)}, {v(a2)}, {v(a2)} {dp} row_mask:0xf bank_mask:0xf')
    ln_scalars(k, a1, a2)
    for h in range(2):
        for q in range(8): k(f'v_fma_f32 {v(T+8*h+q)}, {v(T+8*h+q)}, {v(a2)}, -{v(a1)}')
        for q in range(4): k(f'v_cvt_pk_bf16_f32 {v(X+4*h+q)}, {v(T+8*h+2*q)}, {v(T+8*h+2*q+1)}')
        k(f'ds_write_b128 {v(aW)}, {v(X+4*h,4)} offset:{128*h}')
    k(f's_waitcnt lgkmcnt(0)\ns_barrier')
    stamp(6, {1})
    AF = X
    for tau in range(4):
        for ks in range(2):
            for hh in range(2):
                k(f'ds_read_b64_tr_b16 {v(AF+8*tau+4*ks+2*hh,2)}, {v(aR)} offset:{(32*ks+16*hh)*XS+32*tau}')
    tagcalc()
    for tau in range(4):
        k(f's_waitcnt lgkmcnt({12-4*tau})')
        k(f'v_mfma_f32_16x16x32_bf16 {v(T+4*tau,4)}, {v(AF+8*tau,4)}, {v(BF,4)}, 0')
        k(f'v_mfma_f32_16x16x32_bf16 {v(T+4*tau,4)}, {v(AF+8*tau+4,4)}, {v(BF+4,4)}, {v(T+4*tau,4)}')
    for tau in range(4):
        k(f'v_cvt_pk_bf16_f32 {v(PI+2*tau)}, {v(T+4*tau)}, {v(T+4*tau+1)}\nv_cvt_pk_bf16_f32 {v(PI+2*tau+1)}, {v(T+4*tau+2)}, {v(T+4*tau+3)}')
        k(f'ds_write_b64 {v(aT1)}, {v(PI+2*tau,2)} offset:{32*tau}')
    k(f's_waitcnt lgkmcnt(0)\nds_read_b128 {v(X,4)}, {v(aT2)}\nds_read_b128 {v(X+4,4)}, {v(aT2)} offset:{8*144}')
    for h in range(2):
        k(f's_waitcnt lgkmcnt({1-h})\nbuffer_store_dwordx4 {v(X+4*h,4)}, {v(aZ)}, {s(rws,4)}, {s(sz1 if h == 0 else sz2)} offen sc1')
    stamp(4, {1})
    k.srd(r3, pout, 1835008)
    k(f'''s_and_b32 {s(sj)}, {s(sb)}, 7
    s_mul_i32 {s(sj)}, {s(sj)}, {FRS}
    s_add_u32 {s(sj)}, {s(sj)}, {FLAG1}
    v_mul_u32_u24 {v(vo)}, {FS}, {v(vl)}
    s_waitcnt vmcnt(0)
    s_barrier''')
    stamp(7, {1}); k.dstamp(2)
    Lnf = k.label('nf')
    k(f"s_cmp_lg_u32 {s(sw)}, {OPT['FW']}\ns_cbranch_scc1 {Lnf}"); sendflag(vf)
    if OPT['ST'] == 2: k('s_waitcnt vmcnt(0)'); k.stamp(2)
    k(f'{Lnf}:')
    T = AZ
    Lp7 = k.label('p7'); LA = k.label('A')
    k(f'''s_lshl_b32 {s(st)}, {s(sa)}, 1
    s_add_u32 {s(st)}, {s(st)}, {s(sw)}
    s_and_b32 {s(st)}, {s(st)}, 7
    s_mul_i32 {s(sz1)}, {s(st)}, {4*ZS}
    s_mul_i32 {s(sz2)}, {s(sslot)}, 57344
    s_mul_i32 {s(st2)}, {s(st)}, {4*896}
    s_add_u32 {s(sz2)}, {s(sz2)}, {s(st2)}
    s_mul_i32 {s(st)}, {s(st)}, {16*FS}
    v_add_u32 {v(vt)}, {112*FS}, {v(vo)}
    v_add_u32 {v(vo)}, {s(st)}, {v(vo)}
    v_cmp_gt_u32 vcc, 16, {v(vl)}
    v_cndmask_b32 {v(vo)}, {v(vt)}, {v(vo)}, vcc
    s_cmp_eq_u32 {s(sw)}, 7
    s_cbranch_scc1 {Lp7}''')
    def zdma():
        k('s_bfm_b64 exec, 56, 0')
        for c in range(2):
            for j in range(4):
                k(f's_add_u32 {s(st)}, {s(sz1)}, {(32*c+j)*ZS}\ns_add_u32 {s(st2)}, {s(sz2)}, {(32*c+j)*896}\ns_mov_b32 m0, {s(st)}\ns_nop 0')
                k(f'buffer_load_dwordx4 {v(vh0)}, {s(rws,4)}, {s(st2)} offen sc1 lds')
        k('s_mov_b64 exec, -1')
    if not OPT['EARLY'] & 1: gen_w()
    if OPT['DAFIRST']: gen_da(AZ)
    poll(f'buffer_load_dword {v(CK)}, {v(vo)}, {s(rws,4)}, {s(sj)} offen sc1', [CK], 16, name='pz')
    stamp(5, {0})
    zdma()
    if not OPT['DAFIRST']: gen_da(AZ)
    k(f's_branch {LA}\n{Lp7}:')
    sdz = sx1; sdm = sx2
    L7 = k.label('l7'); L7a = k.label('l7a'); L7b = k.label('l7b'); L7c = k.label('l7c')
    k(f'''v_lshlrev_b32 {v(v7b)}, 1, {v(v7b)}
    v_and_b32 {v(v7c)}, 3, {v(vl)}
    v_lshlrev_b32 {v(v7c)}, 8, {v(v7c)}
    v_lshrrev_b32 {v(vt)}, 2, {v(vl)}
    v_lshl_add_u32 {v(v7c)}, {v(vt)}, 4, {v(v7c)}
    v_add_u32 {v(v7c)}, {CB_}, {v(v7c)}
    s_mov_b32 {s(sdz)}, 0
    s_mov_b32 {s(sdm)}, 0
    s_mov_b32 {s(scnt)}, 0''')
    for i in range(16): k(f'v_mov_b32 {v(PR+i)}, 0')
    for q in range(4): k(f'v_lshlrev_b32 {v(T+2*q)}, 16, {v(XF+q)}\nv_and_b32 {v(T+2*q+1)}, 0xffff0000, {v(XF+q)}')
    k(f'''{L7}:
    s_bfm_b64 exec, 58, 0
    buffer_load_dword {v(BP)}, {v(vo)}, {s(rws,4)}, {s(sj)} offen sc1
    s_add_u32 {s(scnt)}, {s(scnt)}, 1
    s_waitcnt vmcnt(0)
    v_cmp_ne_u32 vcc, {s(stag)}, {v(BP)}
    s_mov_b64 exec, -1
    s_cmp_ge_u32 {s(scnt)}, 0x200000
    s_cselect_b64 vcc, 0, vcc
    s_and_b32 {s(st)}, vcc_lo, 0xffff
    s_or_b32 {s(st)}, {s(st)}, {s(sdz)}
    {"s_xor_b32 %s, %s, 1" % (s(st2), s(sdm)) if OPT['MFIRST'] else ""}
    {"s_or_b32 %s, %s, %s" % (s(st), s(st), s(st2)) if OPT['MFIRST'] else ""}
    s_lshr_b64 {s(ssw,2)}, vcc, 16
    s_cmp_lg_u32 {s(st)}, 0
    s_cbranch_scc1 {L7a}
    s_mov_b32 {s(sdz)}, 1''')
    zdma()
    k(f'''{L7a}:
    s_cmp_eq_u32 {s(sdm)}, 1
    s_cbranch_scc1 {L7c}
    s_cmp_lg_u64 {s(ssw,2)}, 0
    s_cbranch_scc1 {L7}
    s_mov_b32 {s(sdm)}, 1''')
    stamp(5, {0})
    k(f's_mov_b32 m0, {CAB}\ns_mov_b32 {s(st2)}, {MODV}')
    for i in range(4):
        if i == 3: k('s_bfm_b64 exec, 32, 0')
        k(f'buffer_load_dwordx4 {v(vh0)}, {s(rws,4)}, {s(st2)} offen offset:{1024*i} sc1 lds')
    k('s_mov_b64 exec, -1')
    for (slot_, sec) in ((2, 4), (3, 3), (0, 2), (4, 5)):
        k(f's_mov_b32 {s(st2)}, {MODV+sec*1792}')
        k(f'buffer_load_dwordx4 {v(CK+8*slot_,4)}, {v(vh0)}, {s(rws,4)}, {s(st2)} offen sc1\nbuffer_load_dwordx4 {v(CK+8*slot_+4,4)}, {v(v7b)}, {s(rws,4)}, {s(st2)} offen sc1')
    k(f'{L7c}:\ns_cmp_eq_u32 {s(sdz)}, 0\ns_cbranch_scc1 {L7}')
    k(f'{LA}:')
    if not OPT['EARLY'] & 2: gen_f28()
    stamp(3, {0})
    for r in range(2): k(f'ds_read_b64 {v(XR+4*r,2)}, {v(vx0)} offset:{896*r}\nds_read_b64 {v(XR+4*r+2,2)}, {v(vx0)} offset:{896*r+512}')
    k(f'v_cmp_gt_u32 vcc, 12, {v(vn)}\ns_waitcnt lgkmcnt(0)')
    for r in range(2):
        for q in (2, 3): k(f'v_cndmask_b32 {v(XR+4*r+q)}, 0, {v(XR+4*r+q)}, vcc')
    for q in range(8): k(f'v_lshlrev_b32 {v(XF+2*q)}, 16, {v(XR+q)}\nv_and_b32 {v(XF+2*q+1)}, 0xffff0000, {v(XR+q)}')
    k(f's_waitcnt vmcnt(0)\ns_barrier')
    stamp(6, {0, 2}); k.dstamp(3)
    def kreads():
        for c in range(5): k(f'ds_read_b128 {v(CK+8*c,4)}, {v(aK)} offset:{2048*c}\nds_read_b128 {v(CK+8*c+4,4)}, {v(aK)} offset:{2048*c+1024}')
        k(f'v_mov_b32 {v(vt2)}, {MISC}\nds_read_b32 {v(vsb)}, {v(vt2)} offset:4')
    Lw7 = k.label('w7'); Ljoin = k.label('join')
    k(f's_cmp_eq_u32 {s(sw)}, 7\ns_cbranch_scc1 {Lw7}')
    for T_ in range(4):
        for ks in range(2):
            for hh in range(2):
                k(f'ds_read_b64_tr_b16 {v(AZ+8*T_+4*ks+2*hh,2)}, {v(aT)} offset:{(32*ks+16*hh)*ZS+224*T_}')
    for T_ in range(4):
        k(f's_waitcnt lgkmcnt({12 if T_ == 0 else 16-4*T_})')
        k(f'''v_mfma_f32_16x16x32_bf16 {v(PR+4*T_,4)}, {v(AZ+8*T_,4)}, {v(Fre0,4)}, 0
        v_mfma_f32_16x16x32_bf16 {v(PR+4*T_,4)}, {v(AZ+8*T_+4,4)}, {v(Fre1,4)}, {v(PR+4*T_,4)}''')
        if T_ == 0:
            for t2 in range(4): k(f'ds_read_b128 {v(CA+4*t2,4)}, {v(aC)} offset:{1792+448*t2}')
    k('s_waitcnt lgkmcnt(0)')
    Lsa = k.label('sa'); Lsab = k.label('sab')
    for T_ in range(4):
        k(f'''v_mfma_f32_16x16x32_bf16 {v(PI+4*T_,4)}, {v(AZ+8*T_,4)}, {v(Fim0,4)}, 0
        v_mfma_f32_16x16x32_bf16 {v(PI+4*T_,4)}, {v(AZ+8*T_+4,4)}, {v(Fim1,4)}, {v(PI+4*T_,4)}''')
        for i in range(4): k(f'v_mul_f32 {v(PR+4*T_+i)}, {v(PR+4*T_+i)}, {v(CA+4*T_+i)}')
    k(f's_cmp_eq_u32 {s(st0)}, 0\ns_cbranch_scc1 {Lsa}\n{Lsab}:')
    for i in range(4):
        k(f'v_cvt_pk_bf16_f32 {v(BP+4*i)}, {v(PR+i)}, {v(PR+4+i)}\nv_cvt_pk_bf16_f32 {v(BP+4*i+1)}, {v(PR+8+i)}, {v(PR+12+i)}')
    UR = AZ; VV = AZ + 16
    for i in range(4):
        B = BP + 4 * i
        for T_ in range(4): k(f'v_mul_f32 {v(PI+4*T_+i)}, {v(PI+4*T_+i)}, {v(CA+4*T_+i)}')
        k(f'''v_cvt_pk_bf16_f32 {v(B+2)}, {v(PI+i)}, {v(PI+4+i)}
        v_cvt_pk_bf16_f32 {v(B+3)}, {v(PI+8+i)}, {v(PI+12+i)}''')
        if i > 0:
            k(f'''v_mfma_f32_16x16x32_bf16 {v(UR+4*(i-1),4)}, {v(AD+6*(i-1),4)}, {v(B-4,4)}, 0
            v_mfma_f32_16x16x32_bf16 {v(VV+4*(i-1),4)}, {v(AD+6*(i-1)+2,4)}, {v(B-4,4)}, 0''')
    k(f'''v_mfma_f32_16x16x32_bf16 {v(UR+12,4)}, {v(AD+18,4)}, {v(BP+12,4)}, 0
    v_mfma_f32_16x16x32_bf16 {v(VV+12,4)}, {v(AD+20,4)}, {v(BP+12,4)}, 0''')
    UP = PR
    for i in range(4): k(f'v_cvt_pk_bf16_f32 {v(UP+2*i)}, {v(UR+i)}, {v(UR+4+i)}\nv_cvt_pk_bf16_f32 {v(UP+8+2*i)}, {v(VV+i)}, {v(VV+4+i)}')
    for i in range(4):
        k(f'v_cvt_pk_bf16_f32 {v(UP+2*i+1)}, {v(UR+8+i)}, {v(UR+12+i)}\nds_write_b64 {v(aU+i)}, {v(UP+2*i,2)} offset:{128*i}\nv_xor_b32 {v(aU+i)}, 64, {v(aU+i)}')
    for i in range(4):
        k(f'v_cvt_pk_bf16_f32 {v(UP+8+2*i+1)}, {v(VV+8+i)}, {v(VV+12+i)}\nds_write_b64 {v(aU+i)}, {v(UP+8+2*i,2)} offset:{128*i}')
    k(f's_branch {Ljoin}')
    k(f'{Lsa}:')
    for t2 in range(4): k(f'ds_read_b128 {v(BP+4*t2,4)}, {v(aC)} offset:{448*t2}')
    k(f's_mov_b32 exec_lo, 0x00010001\ns_mov_b32 exec_hi, 0x00010001\ns_waitcnt lgkmcnt(0)')
    for e in range(16): k(f'v_add_f32 {v(PR+e)}, {v(PR+e)}, {v(BP+e)}')
    k(f's_mov_b64 exec, -1\ns_nop 1\ns_branch {Lsab}')
    k(f'{Lw7}:')
    for e in range(8): k(f'v_mul_f32 {v(CK+8+e)}, {v(T+e)}, {v(CK+16+e)}')
    k(f'v_add_f32 {v(T+8)}, {v(CK+8)}, {v(CK+9)}\nv_mul_f32 {v(T+9)}, {v(T)}, {v(CK+24)}')
    for e in range(2, 8): k(f'v_add_f32 {v(T+8)}, {v(T+8)}, {v(CK+8+e)}\nv_fmac_f32 {v(T+9)}, {v(T+e-1)}, {v(CK+24+e-1)}')
    k(f'v_fmac_f32 {v(T+9)}, {v(T+7)}, {v(CK+31)}')
    for c in (2, 3, 0, 4): k(f'ds_write_b128 {v(v7c)}, {v(CK+8*c,4)} offset:{2048*c}\nds_write_b128 {v(v7c)}, {v(CK+8*c+4,4)} offset:{2048*c+1024}')
    k(f'v_permlane32_swap_b32 {v(T+8)}, {v(T+9)}\nv_add_f32 {v(T+8)}, {v(T+8)}, {v(T+9)}\nv_mov_b32 {v(T+9)}, {v(T+8)}\nv_permlane16_swap_b32 {v(T+8)}, {v(T+9)}\nv_add_f32 {v(T+8)}, {v(T+8)}, {v(T+9)}')
    for r in (8, 4, 2, 1): k(f'v_add_f32_dpp {v(T+8)}, {v(T+8)}, {v(T+8)} row_ror:{r} row_mask:0xf bank_mask:0xf')
    k(f'''v_readlane_b32 {s(st)}, {v(T+8)}, 0
    v_readlane_b32 {s(st2)}, {v(T+8)}, 32
    v_mov_b32 {v(T+9)}, {fl(-1/448)}
    v_mul_f32 {v(T+9)}, {s(st)}, {v(T+9)}
    v_cmp_gt_u32 vcc, 48, {v(vl)}
    v_cndmask_b32 {v(T+11)}, 0, {v(T+9)}, vcc
    v_mov_b32 {v(T+10)}, {s(st2)}
    v_mov_b32 {v(vt2)}, {MISC}
    ds_write_b32 {v(vt2)}, {v(T+10)} offset:4''')
    for e in range(8): k(f'v_add_f32 {v(CK+8+e)}, {v(CK+8+e)}, {v(T+9 if e < 4 else T+11)}')
    k(f'ds_write_b128 {v(v7c)}, {v(CK+8,4)} offset:2048\nds_write_b128 {v(v7c)}, {v(CK+12,4)} offset:{2048+1024}')
    for i in range(4): k(f'ds_write_b64 {v(aU+i)}, {v(PR,2)} offset:{128*i}\nv_xor_b32 {v(aU+i)}, 64, {v(aU+i)}')
    for i in range(4): k(f'ds_write_b64 {v(aU+i)}, {v(PR,2)} offset:{128*i}')
    k(f'{Ljoin}:')
    k(f'''v_xor_b32 {v(vt)}, 64, {v(aV)}
    v_xor_b32 {v(vt2)}, 64, {v(aV+1)}
    v_mov_b32 {v(CA+1)}, {v(vtag)}
    v_mov_b32 {v(CA+3)}, {v(vtag)}
    v_mov_b32 {v(CA+5)}, {v(vtag)}
    v_mov_b32 {v(CA+7)}, {v(vtag)}
    s_waitcnt lgkmcnt(0)
    s_barrier''')
    stamp(7, {0})
    BD = AZ; Y = PI
    k(f'''ds_read_b128 {v(BD,4)}, {v(aV)}
    ds_read_b128 {v(BD+4,4)}, {v(vt)}
    ds_read_b128 {v(BD+8,4)}, {v(aV+1)} offset:2048
    ds_read_b128 {v(BD+12,4)}, {v(vt2)} offset:2048
    s_mul_i32 {s(so)}, s2, {SLS}
    s_add_u32 {s(so)}, {s(so)}, {SLOT}
    s_mul_i32 {s(sj)}, s2, {KS}
    s_add_u32 {s(sj)}, {s(sj)}, {KEYS}
    v_mul_u32_u24 {v(vo)}, {KRS}, {v(vl)}''')
    kreads()
    for r in range(2):
        k(f's_waitcnt lgkmcnt({11+3-2*r})')
        for b in range(2): k(f'v_mfma_f32_16x16x32_bf16 {v(Y+8*r+4*b,4)}, {v(BD+8*r,4)}, {v(FB+8*b,4)}, 0')
        k(f's_waitcnt lgkmcnt({11+2-2*r})')
        for b in range(2): k(f'v_mfma_f32_16x16x32_bf16 {v(Y+8*r+4*b,4)}, {v(BD+8*r+4,4)}, {v(FB+8*b+4,4)}, {v(Y+8*r+4*b,4)}')
    S = PR
    k('s_waitcnt lgkmcnt(7)')
    for r in range(2):
        for e in range(8):
            x1 = XF + 8 * r + e
            k(f'v_fmac_f32 {v(x1)}, {v(CK+e)}, {v(Y+8*r+e)}')
            if e == 0: k(f'v_mul_f32 {v(S+2+r)}, {v(x1)}, {v(x1)}\nv_mul_f32 {v(S+4+r)}, {v(x1)}, {v(CK+8)}')
            else: k(f'v_fmac_f32 {v(S+2+r)}, {v(x1)}, {v(x1)}\nv_fmac_f32 {v(S+4+r)}, {v(x1)}, {v(CK+8+e)}')
            if e == 1: k(f'v_add_f32 {v(S+r)}, {v(x1-1)}, {v(x1)}')
            elif e > 1: k(f'v_add_f32 {v(S+r)}, {v(S+r)}, {v(x1)}')
    k(f'''v_permlane32_swap_b32 {v(S+4)}, {v(S+5)}
    v_permlane32_swap_b32 {v(S+2)}, {v(S+3)}
    v_permlane32_swap_b32 {v(S)}, {v(S+1)}
    v_add_f32 {v(S+4)}, {v(S+4)}, {v(S+5)}
    v_add_f32 {v(S+2)}, {v(S+2)}, {v(S+3)}
    v_add_f32 {v(S)}, {v(S)}, {v(S+1)}
    v_mov_b32 {v(S+5)}, {v(S+4)}
    v_permlane16_swap_b32 {v(S)}, {v(S+2)}
    v_permlane16_swap_b32 {v(S+4)}, {v(S+5)}
    v_add_f32 {v(S)}, {v(S)}, {v(S+2)}
    v_add_f32 {v(S+4)}, {v(S+4)}, {v(S+5)}''')
    for r in (8, 4, 2, 1):
        k(f'v_add_f32_dpp {v(S)}, {v(S)}, {v(S)} row_ror:{r} row_mask:0xf bank_mask:0xf\nv_add_f32_dpp {v(S+4)}, {v(S+4)}, {v(S+4)} row_ror:{r} row_mask:0xf bank_mask:0xf')
    k(f'v_mov_b32 {v(S+2)}, {v(S)}\nv_permlane16_swap_b32 {v(S)}, {v(S+2)}')
    k('s_waitcnt lgkmcnt(0)')
    ln_scalars(k, S, S + 2)
    sr = k.salloc(2); sm = k.salloc(2); sk = k.salloc(2); swin = k.salloc()
    k(f'''v_fma_f32 {v(S+4)}, {v(S+4)}, {v(S+2)}, {v(vsb)}
    v_readlane_b32 {s(sr)}, {v(S+2)}, 0
    v_ashrrev_i32 {v(vt)}, 31, {v(S+4)}
    v_readlane_b32 {s(sr+1)}, {v(S+2)}, 32
    v_or_b32 {v(vt)}, 0x80000000, {v(vt)}
    v_readlane_b32 {s(sm)}, {v(S)}, 0
    v_xor_b32 {v(vt)}, {v(vt)}, {v(S+4)}
    v_readlane_b32 {s(sm+1)}, {v(S)}, 32
    v_and_or_b32 {v(vt)}, {v(vt)}, {v(vkm)}, {v(vki)}
    s_mov_b32 exec_lo, 1
    s_mov_b32 exec_hi, 1
    ds_max_u32 {v(vt2)}, {v(vt)}
    s_mov_b64 exec, -1
    v_readlane_b32 {s(sk)}, {v(vt)}, 0
    v_readlane_b32 {s(sk+1)}, {v(vt)}, 32''')
    H = AZ; O = AZ + 16
    def hcalc(r, dst):
        for e in range(8):
            k(f'''v_mul_f32 {v(PI+e)}, {s(sr+r)}, {v(CK+16+e)}
            v_fma_f32 {v(PI+8+e)}, -{s(sm+r)}, {v(CK+16+e)}, {v(CK+24+e)}''')
        for e in range(8): k(f'v_fma_f32 {v(dst+e)}, {v(XF+8*r+e)}, {v(PI+e)}, {v(PI+8+e)}')
    Lb = k.label('rb'); Lc = k.label('rc'); Lnw = k.label('nw')
    k(f'v_mov_b32 {v(S+7)}, {v(vtag)}\ns_waitcnt lgkmcnt(0)\ns_barrier\nds_read_b32 {v(S+6)}, {v(vt2)}')
    stamp(2, {0}); k.dstamp(4)
    Lk0 = k.label('k0')
    k(f'''s_cmp_lg_u32 {s(sw)}, 0
    s_cbranch_scc1 {Lk0}
    s_mov_b64 exec, 0xff
    s_waitcnt lgkmcnt(0)
    buffer_store_dwordx2 {v(S+6,2)}, {v(vo)}, {s(rws,4)}, {s(sj)} offen sc1
    s_mov_b64 exec, -1
    {Lk0}:''')
    k(f's_max_u32 {s(st2)}, {s(sk)}, {s(sk+1)}\ns_cmp_gt_u32 {s(sk+1)}, {s(sk)}\ns_cbranch_scc1 {Lb}')
    hcalc(0, H)
    for q in range(4): k(f'v_cvt_pk_bf16_f32 {v(CA+2*q)}, {v(H+2*q)}, {v(H+2*q+1)}')
    k(f's_branch {Lc}\n{Lb}:')
    hcalc(1, H + 8)
    for q in range(4): k(f'v_cvt_pk_bf16_f32 {v(CA+2*q)}, {v(H+8+2*q)}, {v(H+8+2*q+1)}')
    k(f'''{Lc}:
    s_waitcnt lgkmcnt(0)
    v_readfirstlane_b32 {s(swin)}, {v(S+6)}
    s_cmp_lg_u32 {s(swin)}, {s(st2)}
    s_cbranch_scc1 {Lnw}
    buffer_store_dwordx4 {v(CA,4)}, {v(vh0)}, {s(rws,4)}, {s(so)} offen sc1
    buffer_store_dwordx4 {v(CA+4,4)}, {v(vh0)}, {s(rws,4)}, {s(so)} offen offset:1024 sc1
    {Lnw}:''')
    stamp(4, {0})
    Ld_ = k.label('rd'); Le_ = k.label('re')
    k(f's_cmp_gt_u32 {s(sk+1)}, {s(sk)}\ns_cbranch_scc1 {Ld_}')
    hcalc(1, H + 8)
    k(f's_branch {Le_}\n{Ld_}:')
    hcalc(0, H)
    k(f'{Le_}:')
    for e in range(16): k(f'v_fma_f32 {v(O+e)}, {v(CK+32+(e&7))}, {v(H+e)}, {v(XF+e)}')
    for q in range(8): k(f'v_cvt_pk_bf16_f32 {v(H+q)}, {v(O+2*q)}, {v(O+2*q+1)}')
    k(f'''ds_write_b64 {v(vx0)}, {v(H,2)}
    ds_write_b64 {v(vx0)}, {v(H+4,2)} offset:896
    s_mov_b32 exec_lo, 0x0fff0fff
    s_mov_b32 exec_hi, 0x0fff0fff
    ds_write_b64 {v(vx0)}, {v(H+2,2)} offset:512
    ds_write_b64 {v(vx0)}, {v(H+6,2)} offset:{896+512}
    s_bfm_b64 exec, 56, 0
    s_waitcnt lgkmcnt(0)
    ds_read_b128 {v(H,4)}, {v(vx1)}
    ds_read_b128 {v(H+4,4)}, {v(vx1)} offset:896
    s_add_u32 {s(st)}, {s(sxo)}, 57344
    s_waitcnt lgkmcnt(0)
    s_cmp_eq_u32 {s(swin)}, {s(st2)}
    s_cbranch_scc1 {Lend}w''')
    osc = {'plain': '', 'none': None}.get(OPT['OUT'], OPT['OUT'])
    if osc is not None:
        k(f'''buffer_store_dwordx4 {v(H,4)}, {v(vh0)}, {s(r3,4)}, {s(sxo)} offen {osc}
        buffer_store_dwordx4 {v(H+4,4)}, {v(vh0)}, {s(r3,4)}, {s(st)} offen {osc}''')
    k(f'''s_branch {Lend}
    {Lend}w:
    buffer_store_dwordx4 {v(H,4)}, {v(vh0)}, {s(r3,4)}, {s(sxo)} offen sc1
    buffer_store_dwordx4 {v(H+4,4)}, {v(vh0)}, {s(r3,4)}, {s(st)} offen sc1
    s_waitcnt vmcnt(0)
    v_lshlrev_b32 {v(vt)}, 2, {v(vl)}
    s_bfm_b64 exec, 32, 0
    buffer_store_dword {v(vtag)}, {v(vt)}, {s(rws,4)}, {s(so)} offen offset:2048 sc1
    s_branch {Lend}''')
    sg = smir; skey = sones
    def modtouch():
        k.srd(r4, pc + 2, 448 * 5376)
        k(f'''s_sub_u32 {s(st)}, {s(sa)}, 16
        s_lshl_b32 {s(st)}, {s(st)}, 1
        s_add_u32 {s(st)}, {s(st)}, {s(sw)}
        s_cmp_eq_u32 {s(sb)}, 7
        s_cselect_b32 {s(st2)}, 37, 52
        s_cselect_b32 {s(scnt)}, 7, 5
        s_mul_i32 {s(st2)}, {s(st2)}, {s(st)}
        s_lshr_b32 {s(st2)}, {s(st2)}, 8
        s_mul_i32 {s(scnt)}, {s(scnt)}, {s(st2)}
        s_sub_u32 {s(st)}, {s(st)}, {s(scnt)}
        s_lshl_b32 {s(scnt)}, {s(st)}, 3
        s_add_u32 {s(scnt)}, {s(scnt)}, {s(sb)}
        s_add_u32 {s(so)}, {s(st)}, 35
        s_cmp_lt_u32 {s(st)}, 5
        s_cselect_b32 {s(scnt)}, {s(scnt)}, {s(so)}
        s_lshl_b32 {s(scnt)}, {s(scnt)}, 7
        s_sub_u32 {s(st2)}, 6, {s(st2)}
        s_mul_i32 {s(st2)}, {s(st2)}, {64*5376}
        s_add_u32 {s(scnt)}, {s(scnt)}, {s(st2)}
        s_cmp_lt_u32 {s(sw)}, {2 if OPT['HELP'] else 0}
        s_cselect_b32 {s(r4+2)}, {s(r4+2)}, 0
        v_mul_u32_u24 {v(vt)}, 5376, {v(vl)}
        buffer_load_dword {v(vt2)}, {v(vt)}, {s(r4,4)}, {s(scnt)} offen''')
    def keymax(KR):
        k(f'v_max_u32 {v(vt2)}, {v(KR)}, {v(KR+2)}')
        for r in (8, 4, 2, 1): k(f'v_max_u32_dpp {v(vt2)}, {v(vt2)}, {v(vt2)} row_ror:{r} row_mask:0xf bank_mask:0xf')
        k(f'''v_readlane_b32 {s(skey)}, {v(vt2)}, 0
        v_readlane_b32 {s(st)}, {v(vt2)}, 16
        v_readlane_b32 {s(st2)}, {v(vt2)}, 32
        v_readlane_b32 {s(sj)}, {v(vt2)}, 48
        s_max_u32 {s(skey)}, {s(skey)}, {s(st)}
        s_max_u32 {s(st2)}, {s(st2)}, {s(sj)}
        s_max_u32 {s(skey)}, {s(skey)}, {s(st2)}''')
    def key2slot(dst):
        k(f'''s_and_b32 {s(sj)}, {s(skey)}, 2047
        s_sub_u32 {s(sj)}, 2047, {s(sj)}
        s_and_b32 {s(st)}, {s(sj)}, 63
        s_sub_u32 {s(st2)}, 64, {s(st)}
        s_and_b32 {s(st2)}, {s(st2)}, 31
        s_cmp_ge_u32 {s(st)}, 32
        s_cselect_b32 {s(st)}, {s(st2)}, {s(st)}
        s_cselect_b32 {s(st2)}, 16, 0
        s_and_b32 {s(dst)}, {s(st)}, 7
        s_add_u32 {s(dst)}, {s(dst)}, {s(st2)}
        s_lshr_b32 {s(st)}, {s(st)}, 3
        s_lshl_b32 {s(st)}, {s(st)}, 5
        s_add_u32 {s(dst)}, {s(dst)}, {s(st)}
        s_lshr_b32 {s(st)}, {s(sj)}, 10
        s_lshl_b32 {s(st)}, {s(st)}, 3
        s_add_u32 {s(dst)}, {s(dst)}, {s(st)}
        s_mul_i32 {s(dst)}, {s(dst)}, {SLS}
        s_add_u32 {s(dst)}, {s(dst)}, {SLOT}''')
    keyloads = lambda KR: f'''buffer_load_dwordx2 {v(KR,2)}, {v(vt)}, {s(rws,4)}, {s(sflag)} offen sc1
        buffer_load_dwordx2 {v(KR+2,2)}, {v(vt)}, {s(rws,4)}, {s(so)} offen sc1'''
    def keysetup(): k(f"v_mul_u32_u24 {v(vt)}, {KS}, {v(vl)}\ns_mul_i32 {s(sflag)}, {s(sb)}, {KRS}\ns_add_u32 {s(sflag)}, {s(sflag)}, {KEYS}\ns_add_u32 {s(so)}, {s(sflag)}, {64*KS}")
    def partials(ACC, va):
        k(f's_mov_b32 exec_lo, 0x00010001\ns_mov_b32 exec_hi, 0x00010001\nds_write_b128 {v(va)}, {v(ACC,4)}\ns_mov_b64 exec, -1')
    k(f'{Lsp}:\ns_waitcnt lgkmcnt(0)'); modtouch(); k(f's_branch {Lend}')
    k.nv = VBASE
    AFR = k.valloc(28, 4); GR = k.valloc(40, 4); ACC = k.valloc(4, 4); E = k.valloc(8, 4); vp = k.valloc(); va1 = k.valloc(); va2 = k.valloc(2)
    def wtouch():
        if not OPT['TOUCHW']: return
        k(f"""s_sub_u32 {s(st)}, {s(sa)}, 16
        s_lshl_b32 {s(st)}, {s(st)}, 3
        s_add_u32 {s(st)}, {s(st)}, {s(sw)}
        s_cmp_ge_u32 {s(st)}, 28
        s_cselect_b32 {s(r3)}, {s(pw+4)}, {s(pw+2)}
        s_cselect_b32 {s(r3+1)}, {s(pw+5)}, {s(pw+3)}
        s_cselect_b32 {s(st2)}, 28, 0
        s_cmp_ge_u32 {s(st)}, 56
        s_cselect_b32 {s(r3)}, {s(pw+6)}, {s(r3)}
        s_cselect_b32 {s(r3+1)}, {s(pw+7)}, {s(r3+1)}
        s_cselect_b32 {s(st2)}, 56, {s(st2)}
        s_cselect_b64 vcc, -1, 0
        s_cselect_b32 {s(scnt)}, 2, 7
        s_mov_b32 {s(r3+2)}, {448*3584}
        s_mov_b32 {s(r3+3)}, 0x00020000
        s_sub_u32 {s(st)}, {s(st)}, {s(st2)}
        s_mul_i32 {s(st)}, {s(st)}, 57344
        s_mul_i32 {s(scnt)}, {s(scnt)}, {s(sb)}
        s_lshr_b32 {s(scnt)}, {s(scnt)}, 1
        s_lshl_b32 {s(scnt)}, {s(scnt)}, 7
        s_add_u32 {s(st)}, {s(st)}, {s(scnt)}
        v_lshrrev_b32 {v(vt)}, 2, {v(vl)}
        v_mul_u32_u24 {v(vt)}, 3584, {v(vt)}
        v_and_b32 {v(vt3)}, 3, {v(vl)}
        v_lshl_add_u32 {v(vt)}, {v(vt3)}, 7, {v(vt)}
        v_mul_u32_u24 {v(vt3)}, 896, {v(vl)}
        v_cndmask_b32 {v(vt)}, {v(vt)}, {v(vt3)}, vcc
        s_waitcnt vmcnt(0)
        s_barrier
        buffer_load_dword {v(vt2)}, {v(vt)}, {s(r3,4)}, {s(st)} offen""")
    def slowstart(stride):
        if not OPT['SLOW']: return
        L = k.label('ss')
        k(f's_cmp_lg_u32 {s(sw)}, 7\ns_cbranch_scc1 {L}\nv_mul_u32_u24 {v(vt)}, {stride}, {v(vl)}\ns_mov_b32 {s(scnt)}, {s(so)}\ns_waitcnt vmcnt(0)')
        for r in range(OPT['SLOW']):
            k(f'buffer_load_dword {v(vt2)}, {v(vt)}, {s(r3,4)}, {s(scnt)} offen\ns_add_u32 {s(scnt)}, {s(scnt)}, {32*stride}\ns_waitcnt vmcnt(0)')
        k(f'{L}:')
    def wtrig():
        if not OPT['WTRIG']: return
        L = k.label('wt')
        k(f's_waitcnt lgkmcnt(0)'); tagcalc()
        k(f"""s_cmp_lg_u32 {s(sw)}, 0
        s_cbranch_scc1 {L}
        s_mul_i32 {s(sflag)}, {s(sb)}, {FRS}
        s_add_u32 {s(sflag)}, {s(sflag)}, {FLAG1 + (128 if OPT['WTRIG'] == 1 else 0)*FS}
        v_mul_u32_u24 {v(vt)}, {FS}, {v(vl)}""")
        if OPT['WTRIG'] == 3:
            k(f's_add_u32 {s(so)}, {s(sflag)}, {64*FS}')
            poll(f'buffer_load_dword {v(E)}, {v(vt)}, {s(rws,4)}, {s(sflag)} offen sc1\nbuffer_load_dword {v(E+1)}, {v(vt)}, {s(rws,4)}, {s(so)} offen sc1', [E, E+1], name='pw')
        else: poll(f'buffer_load_dword {v(E)}, {v(vt)}, {s(rws,4)}, {s(sflag)} offen sc1', [E], 42 if OPT['WTRIG'] == 1 else 64, name='pw')
        k.stamp(2)
        k(f'{L}:')
    SCR = 57344; RED = SCR + 4096
    k(f'{LG}:\ns_waitcnt lgkmcnt(0)')
    if OPT['MDELAY'] & 2: nonce(); k('s_waitcnt lgkmcnt(0)'); modtouch()
    else: modtouch(); nonce()
    k.srd(rws, pws, WSB); wtouch(); wtrig()
    k(f'''s_mul_i32 {s(sg)}, {s(sb)}, 7
    s_add_u32 {s(sg)}, {s(sg)}, {s(sa)}
    s_sub_u32 {s(sg)}, {s(sg)}, 16
    s_lshl_b32 {s(st)}, {s(sg)}, 2
    s_xor_b32 {s(sj)}, {s(sw)}, {s(st)}
    s_and_b32 {s(sj)}, {s(sj)}, 7
    s_bitcmp1_b32 {s(sj)}, 2
    s_cselect_b32 {s(r3)}, {s(pw+4)}, {s(pw+2)}
    s_cselect_b32 {s(r3+1)}, {s(pw+5)}, {s(pw+3)}
    s_mov_b32 {s(r3+2)}, {448*3584}
    s_mov_b32 {s(r3+3)}, 0x00020000
    v_lshrrev_b32 {v(vt)}, 2, {v(vl)}
    v_mul_u32_u24 {v(vo)}, 3584, {v(vt)}
    v_and_b32 {v(vt)}, 3, {v(vl)}
    v_lshl_add_u32 {v(vo)}, {v(vt)}, 4, {v(vo)}
    s_and_b32 {s(st)}, {s(sw)}, 3
    s_mul_i32 {s(so)}, {s(st)}, {112*3584}
    s_lshl_b32 {s(st2)}, {s(sg)}, 6
    s_add_u32 {s(so)}, {s(so)}, {s(st2)}
    s_mul_i32 {s(st)}, {s(sj)}, 7168''')
    slowstart(3584)
    k('s_waitcnt vmcnt(0) lgkmcnt(0)\ns_barrier')
    for i in range(7):
        k(f's_mov_b32 m0, {s(st)}\ns_add_u32 {s(st)}, {s(st)}, 1024')
        k(f'buffer_load_dwordx4 {v(vo)}, {s(r3,4)}, {s(so)} offen lds\ns_add_u32 {s(so)}, {s(so)}, {16*3584}')
    if not OPT['WTRIG']: tagcalc()
    sact = k.salloc(); sact2 = k.salloc()
    k(f'''v_lshlrev_b32 {v(vt)}, 9, {v(vg)}
    v_bfe_u32 {v(vt2)}, {v(vl)}, 2, 2
    v_lshl_add_u32 {v(vt)}, {v(vt2)}, 6, {v(vt)}
    v_and_b32 {v(vt2)}, 3, {v(vl)}
    v_lshl_add_u32 {v(vt)}, {v(vt2)}, 3, {v(vt)}
    s_and_b32 {s(st)}, {s(sw)}, 1
    s_mul_i32 {s(st)}, {s(st)}, 28672
    s_bfe_u32 {s(st2)}, {s(sw)}, 0x10001
    s_lshl_b32 {s(st2)}, {s(st2)}, 5
    s_add_u32 {s(st)}, {s(st)}, {s(st2)}
    s_lshr_b32 {s(st2)}, {s(sw)}, 2
    s_mul_i32 {s(scnt)}, {s(st2)}, 448
    s_mul_i32 {s(st2)}, {s(st2)}, {224*64}
    s_add_u32 {s(st)}, {s(st)}, {s(st2)}
    v_add_u32 {v(vt)}, {s(st)}, {v(vt)}
    s_add_u32 {s(scnt)}, {s(scnt)}, {SCR}
    v_lshl_add_u32 {v(E+6)}, {v(vg)}, 4, {s(scnt)}
    v_bfe_u32 {v(E+7)}, {v(vl)}, 4, 1
    v_lshlrev_b32 {v(E+7)}, 7, {v(E+7)}
    v_lshl_add_u32 {v(E+7)}, {v(vn)}, 2, {v(E+7)}
    s_lshl_b32 {s(st)}, {s(sw)}, 6
    s_add_u32 {s(st)}, {s(st)}, {RED}
    v_lshl_add_u32 {v(vp)}, {v(vg)}, 4, {s(st)}
    v_mul_u32_u24 {v(va1)}, {ARS}, {v(vg)}
    v_lshl_add_u32 {v(va1)}, {v(vn)}, 3, {v(va1)}
    v_lshlrev_b32 {v(va2)}, 3, {v(vn)}
    s_lshl_b32 {s(sact)}, {s(sg)}, 7
    s_add_u32 {s(sact)}, {s(sact)}, {ACT}
    s_add_u32 {s(sact2)}, {s(sact)}, {4*ARS}
    v_mov_b32 {v(E+5)}, {v(vtag)}
    v_mov_b32 {v(E)}, 0
    v_mov_b32 {v(E+1)}, 0
    v_mov_b32 {v(E+2)}, {RED+1024}
    ds_write_b64 {v(E+2)}, {v(E,2)}
    s_waitcnt vmcnt(0) lgkmcnt(0)
    s_barrier''')
    for i in range(7):
        for hh in range(2): k(f'ds_read_b64_tr_b16 {v(AFR+4*i+2*hh,2)}, {v(vt)} offset:{2048*i+256*hh}')
    Lg1 = k.label('g1'); Lgp = k.label('gp'); Lw1 = k.label('w1'); Lr = k.label('r'); Lrs = k.label('rs')
    sprev = k.salloc()
    CTL = RED + 1024
    NPW = OPT['NPW']; KPW = 128 // NPW
    k(f'''v_mov_b32 {v(va2+1)}, {CTL}
    s_cmp_eq_u32 {s(sw)}, 7
    s_cbranch_scc1 {Lw1}
    s_cmp_ge_u32 {s(sw)}, {NPW}
    s_cbranch_scc1 {Lg1}''')
    k.stamp(5); k.dstamp(1)
    k(f'''v_mul_u32_u24 {v(vt)}, {KS}, {v(vl)}
    s_mul_i32 {s(sflag)}, {s(sb)}, {KRS}
    s_mul_i32 {s(st)}, {s(sw)}, {KPW*KS}
    s_add_u32 {s(sflag)}, {s(sflag)}, {s(st)}
    s_add_u32 {s(sflag)}, {s(sflag)}, {KEYS}
    s_bfm_b64 {s(sr,2)}, {KPW}, 0
    s_mov_b32 {s(scnt)}, 0
    v_mov_b32 {v(GR+2)}, 1
    {Lgp}:
    s_mov_b64 exec, {s(sr,2)}
    buffer_load_dwordx2 {v(GR,2)}, {v(vt)}, {s(rws,4)}, {s(sflag)} offen sc1
    s_add_u32 {s(scnt)}, {s(scnt)}, 1
    s_waitcnt vmcnt(0)
    v_cmp_eq_u32 vcc, {s(stag)}, {v(GR+1)}
    s_andn2_b64 {s(sr,2)}, {s(sr,2)}, vcc
    s_mov_b64 exec, vcc
    ds_max_u32 {v(va2+1)}, {v(GR)}
    s_cmp_ge_u32 {s(scnt)}, 0x200000
    s_cselect_b64 {s(sr,2)}, 0, {s(sr,2)}
    s_cmp_lg_u64 {s(sr,2)}, 0
    s_cbranch_scc1 {Lgp}
    s_mov_b64 exec, 1
    ds_add_u32 {v(va2+1)}, {v(GR+2)} offset:4
    s_mov_b64 exec, -1''')
    k.stamp(3); k.dstamp(2)
    k(f'''s_branch {Lg1}
    {Lw1}:
    v_lshlrev_b32 {v(vo)}, 4, {v(vl)}
    v_lshlrev_b32 {v(E+1)}, 5, {v(vn)}
    v_lshl_add_u32 {v(E+1)}, {v(vg)}, 3, {v(E+1)}
    v_add_u32 {v(E+1)}, {SCR}, {v(E+1)}
    s_mov_b32 {s(sprev)}, 0
    s_mov_b32 {s(scnt)}, 0
    {Lr}:
    ds_read_b64 {v(GR,2)}, {v(va2+1)}
    s_add_u32 {s(scnt)}, {s(scnt)}, 1
    s_cmp_ge_u32 {s(scnt)}, 0x2000000
    s_cbranch_scc1 {Lg1}
    s_waitcnt lgkmcnt(0)
    v_readfirstlane_b32 {s(skey)}, {v(GR)}
    v_readfirstlane_b32 {s(st)}, {v(GR+1)}
    s_cmp_lg_u32 {s(skey)}, {s(sprev)}
    s_cbranch_scc1 {Lrs}
    s_cmp_lg_u32 {s(st)}, {NPW}
    s_cbranch_scc1 {Lr}
    s_branch {Lg1}
    {Lrs}:''')
    key2slot(ss2)
    k(f'''buffer_load_dwordx4 {v(GR+4,4)}, {v(vo)}, {s(rws,4)}, {s(ss2)} offen sc1
    buffer_load_dwordx4 {v(GR+8,4)}, {v(vo)}, {s(rws,4)}, {s(ss2)} offen offset:1024 sc1''')
    k.stamp(2)
    k('s_waitcnt vmcnt(0)')
    k.stamp(3)
    check([GR+5, GR+7, GR+9, GR+11])
    k(f'''s_cbranch_vccnz {Lr}
    s_mov_b32 {s(sprev)}, {s(skey)}
    v_mov_b32 {v(GR+5)}, {v(GR+6)}
    v_mov_b32 {v(GR+9)}, {v(GR+10)}
    ds_write_b64 {v(E+1)}, {v(GR+4,2)}
    ds_write_b64 {v(E+1)}, {v(GR+8,2)} offset:512
    s_branch {Lr}
    {Lg1}:
    s_waitcnt lgkmcnt(0)
    s_barrier''')
    k.stamp(6); k.dstamp(3)
    for i in range(7): k(f'ds_read_b128 {v(GR+12+4*i,4)}, {v(E+6)} offset:{64*i}')
    for i in range(7):
        k(f's_waitcnt lgkmcnt({6-i})')
        k(f'v_mfma_f32_16x16x32_bf16 {v(ACC,4)}, {v(AFR+4*i,4)}, {v(GR+12+4*i,4)}, {"0" if i == 0 else v(ACC,4)}')
    partials(ACC, vp)
    k(f'''s_waitcnt lgkmcnt(0)
    s_barrier
    s_cmp_lg_u32 {s(sw)}, 0
    s_cbranch_scc1 {Lend}
    ds_read_b32 {v(E)}, {v(E+7)} offset:{RED}
    ds_read_b32 {v(E+1)}, {v(E+7)} offset:{RED+256}
    ds_read_b32 {v(E+2)}, {v(E+7)} offset:{RED+64}
    ds_read_b32 {v(E+3)}, {v(E+7)} offset:{RED+64+256}
    s_waitcnt lgkmcnt(2)
    v_add_f32 {v(E)}, {v(E)}, {v(E+1)}''')
    rb1(k, E, E)
    k(f'''v_mul_f32 {v(E+1)}, 0xbfb8aa3b, {v(E)}
    v_exp_f32 {v(E+1)}, {v(E+1)}
    s_waitcnt lgkmcnt(0)
    v_add_f32 {v(E+2)}, {v(E+2)}, {v(E+3)}
    v_add_f32 {v(E+1)}, 1.0, {v(E+1)}
    v_rcp_f32 {v(E+1)}, {v(E+1)}''')
    rb1(k, E + 2, E + 2)
    k(f'v_mul_f32 {v(E)}, {v(E)}, {v(E+1)}')
    rb1(k, E, E)
    k(f'''v_mul_f32 {v(E)}, {v(E)}, {v(E+2)}
    v_mov_b32_dpp {v(E+1)}, {v(E)} quad_perm:[1,0,3,2] row_mask:0xf bank_mask:0xf
    v_cvt_pk_bf16_f32 {v(E+4)}, {v(E)}, {v(E+1)}
    ds_bpermute_b32 {v(E+4)}, {v(va2)}, {v(E+4)}
    s_waitcnt lgkmcnt(0)
    buffer_store_dwordx2 {v(E+4,2)}, {v(va1)}, {s(rws,4)}, {s(sact)} offen sc1
    buffer_store_dwordx2 {v(E+4,2)}, {v(va1)}, {s(rws,4)}, {s(sact2)} offen sc1''')
    k.stamp(7); k.dstamp(4)
    k(f's_branch {Lend}')
    sro = sprev
    k(f'{LD}:\ns_waitcnt lgkmcnt(0)')
    if OPT['MDELAY'] & 2: nonce(); k('s_waitcnt lgkmcnt(0)'); modtouch()
    else: modtouch(); nonce()
    k.srd(rws, pws, WSB); wtouch(); wtrig()
    k(f's_lshl_b32 {s(sg)}, {s(sb)}, 2\ns_add_u32 {s(sg)}, {s(sg)}, {s(sa)}\ns_sub_u32 {s(sg)}, {s(sg)}, 23')
    k.srd(r3, pw + 6, 1792 * 896); k.srd(r4, pout, 1835008)
    k(f'''v_lshrrev_b32 {v(vt)}, 1, {v(vl)}
    v_mul_u32_u24 {v(vo)}, 896, {v(vt)}
    v_and_b32 {v(vt)}, 1, {v(vl)}
    v_lshl_add_u32 {v(vo)}, {v(vt)}, 4, {v(vo)}
    s_lshl_b32 {s(st)}, {s(sg)}, 1
    s_add_u32 {s(ss2)}, {s(sw)}, {s(st)}
    s_and_b32 {s(ss2)}, {s(ss2)}, 7
    s_mul_i32 {s(so)}, {s(ss2)}, {224*896}
    s_lshl_b32 {s(st2)}, {s(sg)}, 5
    s_add_u32 {s(so)}, {s(so)}, {s(st2)}
    s_mul_i32 {s(st)}, {s(sw)}, 7168
    v_lshlrev_b32 {v(E+4)}, 1, {v(vn)}
    s_mov_b32 {s(sro)}, {HUGE}''')
    slowstart(896)
    k('s_waitcnt vmcnt(0) lgkmcnt(0)\ns_barrier')
    for i in range(7):
        k(f's_mov_b32 m0, {s(st)}\ns_add_u32 {s(st)}, {s(st)}, 1024')
        k(f'buffer_load_dwordx4 {v(vo)}, {s(r3,4)}, {s(so)} offen lds\ns_add_u32 {s(so)}, {s(so)}, {32*896}')
    if not OPT['WTRIG']: tagcalc()
    k(f'''v_lshlrev_b32 {v(vt)}, 8, {v(vg)}
    v_lshl_add_u32 {v(vt)}, {v(vn)}, 3, {v(vt)}
    s_mul_i32 {s(st)}, {s(sw)}, 7168
    v_add_u32 {v(vt)}, {s(st)}, {v(vt)}
    s_mul_i32 {s(sact)}, {s(ss2)}, 896
    s_add_u32 {s(sact)}, {s(sact)}, {ACT}
    s_mul_i32 {s(st)}, {s(sb)}, {ARS}
    s_add_u32 {s(sact)}, {s(sact)}, {s(st)}
    s_lshl_b32 {s(st)}, {s(sw)}, 6
    s_add_u32 {s(st)}, {s(st)}, {RED}
    v_lshl_add_u32 {v(vp)}, {v(vg)}, 4, {s(st)}
    v_lshlrev_b32 {v(va2)}, 2, {v(vn)}
    s_waitcnt vmcnt(0)''')
    for i in range(7):
        for hh in range(2): k(f'ds_read_b64_tr_b16 {v(AFR+4*i+2*hh,2)}, {v(vt)} offset:{1024*i+128*hh}')
    Ld1 = k.label('d1')
    k(f's_cmp_lg_u32 {s(sw)}, 0\ns_cbranch_scc1 {Ld1}')
    k.stamp(5); k.dstamp(1)
    keysetup()
    poll(keyloads(GR), [GR+1, GR+3], name='pk')
    keymax(GR); key2slot(ss2)
    k(f'''s_lshl_b32 {s(st)}, {s(sg)}, 6
    s_add_u32 {s(so)}, {s(st)}, {MODV+5*1792}
    v_mov_b32 {v(E+7)}, 0
    buffer_load_dword {v(E+6)}, {v(va2)}, {s(rws,4)}, {s(so)} offen sc1
    s_and_b32 {s(st)}, {s(skey)}, 0xfffff800
    s_or_b32 {s(st)}, {s(st)}, 0x400
    s_ashr_i32 {s(st2)}, {s(st)}, 31
    s_not_b32 {s(st2)}, {s(st2)}
    s_or_b32 {s(st2)}, {s(st2)}, 0x80000000
    s_xor_b32 {s(st)}, {s(st)}, {s(st2)}
    v_mov_b32 {v(E+2)}, {s(st)}''')
    rb1(k, E + 2, E + 2)
    k(f'''v_mul_f32 {v(E+2)}, 0xbfb8aa3b, {v(E+2)}
    v_exp_f32 {v(E+2)}, {v(E+2)}
    v_add_f32 {v(E+2)}, 1.0, {v(E+2)}
    v_rcp_f32 {v(E+2)}, {v(E+2)}''')
    rb1(k, E + 2, E + 2)
    k(f's_add_u32 {s(sflag)}, {s(ss2)}, 2048')
    poll(f'buffer_load_dword {v(E+3)}, {v(E+7)}, {s(rws,4)}, {s(sflag)} offen sc1', [E+3], name='pf')
    k(f'''s_mul_i32 {s(sro)}, {s(sj)}, 896
    s_lshl_b32 {s(st)}, {s(sg)}, 5
    s_add_u32 {s(sro)}, {s(sro)}, {s(st)}
    buffer_load_ushort {v(E)}, {v(E+4)}, {s(r4,4)}, {s(sro)} offen sc1
    {Ld1}:''')
    k.stamp(6); k.dstamp(2)
    k(f'v_lshlrev_b32 {v(vt)}, 4, {v(vl)}\ns_lshl_b32 {s(st)}, {s(sw)}, 9\ns_add_u32 {s(st)}, {s(st)}, {SCR}\nv_lshl_add_u32 {v(vo)}, {v(vl)}, 3, {s(st)}\nv_lshl_add_u32 {v(GR+6)}, {v(vg)}, 4, {s(st)}')
    poll(f'buffer_load_dwordx4 {v(GR,4)}, {v(vt)}, {s(rws,4)}, {s(sact)} offen sc1', [GR+1, GR+3], 56, name='pg')
    k.stamp(7); k.dstamp(3)
    k(f'v_mov_b32 {v(GR+1)}, {v(GR+2)}\nds_write_b64 {v(vo)}, {v(GR,2)}\ns_waitcnt lgkmcnt(0)')
    for i in range(7): k(f'ds_read_b128 {v(GR+8+4*i,4)}, {v(GR+6)} offset:{64*i}')
    for i in range(7):
        k(f's_waitcnt lgkmcnt({6-i})')
        k(f'v_mfma_f32_16x16x32_bf16 {v(ACC,4)}, {v(AFR+4*i,4)}, {v(GR+8+4*i,4)}, {"0" if i == 0 else v(ACC,4)}')
    partials(ACC, vp)
    k(f'''s_waitcnt lgkmcnt(0)
    s_barrier
    s_cmp_lg_u32 {s(sw)}, 0
    s_cbranch_scc1 {Lend}''')
    for i in range(8): k(f'ds_read_b32 {v(GR+i)}, {v(va2)} offset:{RED+64*i}')
    k(f'v_lshlrev_b32 {v(E)}, 16, {v(E)}')
    for i in (1, 3, 5, 7): k(f's_waitcnt lgkmcnt({7-i})\nv_add_f32 {v(GR+i-1)}, {v(GR+i-1)}, {v(GR+i)}')
    k(f'v_add_f32 {v(GR)}, {v(GR)}, {v(GR+2)}\nv_add_f32 {v(GR+4)}, {v(GR+4)}, {v(GR+6)}\nv_add_f32 {v(GR)}, {v(GR)}, {v(GR+4)}')
    rb1(k, GR, GR); k(f'v_mul_f32 {v(GR)}, {v(GR)}, {v(E+2)}'); rb1(k, GR, GR)
    k(f'''v_fma_f32 {v(GR)}, {v(GR)}, {v(E+6)}, {v(E)}
    v_cvt_pk_bf16_f32 {v(GR)}, {v(GR)}, {v(GR)}
    s_bfm_b64 exec, 16, 0
    buffer_store_short {v(GR)}, {v(E+4)}, {s(r4,4)}, {s(sro)} offen sc1
    s_cmp_lg_u32 {s(sg)}, 0
    s_cbranch_scc1 {Lend}
    s_mov_b64 exec, 1
    v_mov_b32 {v(vt)}, {NONCE}
    buffer_store_dword {v(vtag)}, {v(vt)}, {s(rws,4)}, 0 offen sc1''')
    k(f'{Lend}:'); k.dump(); k.ddump(82, sw, 184); k('s_endpgm')
    return k
if __name__ == '__main__':
    K.diag = '--diag' in sys.argv; K.dbg = '--dbg' in sys.argv
    for a in sys.argv[2:]:
        if '=' in a:
            kk, vv = a.split('='); assert kk in OPT; OPT[kk] = int(vv) if vv.lstrip('-').isdigit() else vv
    k = gen()
    k.lines, n = hazard.fix(k.lines); print(k.name, 'vgpr', k.vmax, 'sgpr', k.ns, 'nops', n, 'lines', len(k.lines), 'lds', LDS)
    open(sys.argv[1], 'w').write(emit([k], [(NAME, 256, 512, LDS)]))
```

```python
class K:
    def __init__(self, name):
        self.name = name; self.lines = []; self.nv = 0; self.ns = 0; self.vmax = 0; self.lab = 0
    def __call__(self, s):
        for l in s.strip('\n').split('\n'):
            if not l.strip(): continue
            self.lines.append('    ' + l.strip() if not l.strip().endswith(':') else l.strip())
    def c(self, s): self.lines.append('    ; ' + s)
    def valloc(self, n=1, align=1):
        if n > 1 and align == 1: align = 2
        self.nv = (self.nv + align - 1) // align * align
        r = self.nv; self.nv += n; self.vmax = max(self.vmax, self.nv); return r
    def salloc(self, n=1, align=1):
        if n == 2 and align == 1: align = 2
        if n >= 4 and align == 1: align = 4
        self.ns = (self.ns + align - 1) // align * align
        r = self.ns; self.ns += n; assert self.ns <= 100, 'sgpr overflow'; return r
    def label(self, p='L'):
        self.lab += 1; return f'{self.name}_{p}{self.lab}'
    def srd(self, s, ptr, nbytes, add=0):
        if add:
            self(f's_add_u32 s{s}, s{ptr}, {add:#x}\ns_addc_u32 s{s+1}, s{ptr+1}, 0')
        else:
            self(f's_mov_b32 s{s}, s{ptr}\ns_mov_b32 s{s+1}, s{ptr+1}')
        self(f's_mov_b32 s{s+2}, {nbytes:#x}\ns_mov_b32 s{s+3}, 0x00020000')
    diag = False; DIAG = 0x300000; kid = 0
    dbg = False
    def dstamp(self, i):
        if K.dbg: self(f's_memrealtime s[{84+2*i}:{85+2*i}]')
    def ddump(self, words, swave, sagg):
        if not K.dbg: return
        L = self.label('dd'); L2 = self.label('de')
        self(f"""s_memrealtime s[100:101]
        s_cmp_eq_u32 s{words}, 2
        s_cselect_b32 s8, 7, 0
        s_cmp_lg_u32 s{swave}, s8
        s_cbranch_scc1 {L2}
        s_load_dwordx2 s[4:5], s[0:1], 112
        s_load_dwordx2 s[12:13], s[0:1], 104
        s_mov_b64 exec, 1
        s_lshl_b32 s9, s2, 5
        v_mov_b32 v1, s9
        s_waitcnt lgkmcnt(0)
        s_add_u32 s4, s4, {K.DIAG}
        s_addc_u32 s5, s5, 0
        s_mov_b32 s6, 0x10000
        s_mov_b32 s7, 0x00020000
        s_mov_b32 s14, 256
        s_mov_b32 s15, 0x00020000
        s_not_b32 s8, s84
        v_mov_b32 v4, s84
        v_mov_b32 v5, s86
        v_mov_b32 v6, s88
        v_mov_b32 v7, s90
        v_mov_b32 v8, s92
        v_mov_b32 v9, s100
        v_mov_b32 v10, s8
        v_mov_b32 v11, s{words}
        buffer_store_dwordx4 v[4:7], v1, s[4:7], 0 offen sc1
        buffer_store_dwordx4 v[8:11], v1, s[4:7], 0 offen offset:16 sc1
        s_cmp_lg_u32 s2, {sagg}
        s_cbranch_scc1 {L2}
        s_mov_b64 exec, -1
        s_waitcnt vmcnt(0)
        s_sleep 127
        s_sleep 127
        v_and_b32 v1, 63, v0
        v_lshlrev_b32 v2, 2, v1
        v_mov_b32 v3, 0
        ds_write_b32 v2, v3
        v_lshlrev_b32 v1, 5, v1""")
        for it in range(4):
            self(f"""buffer_load_dwordx4 v[4:7], v1, s[4:7], 0 offen offset:{2048*(it&1)} sc1
            buffer_load_dwordx4 v[8:11], v1, s[4:7], 0 offen offset:{2048*(it&1)+16} sc1
            s_waitcnt vmcnt(0) lgkmcnt(0)
            v_lshlrev_b32 v11, 2, v11
            ds_max_u32 v3, v10
            ds_max_u32 v3, v4 offset:4
            ds_max_u32 v3, v9 offset:8
            ds_max_u32 v11, v5 offset:4
            ds_max_u32 v11, v6 offset:8
            ds_max_u32 v11, v7 offset:12
            ds_max_u32 v11, v8 offset:16""")
            if it == 1: self('v_add_u32 v1, 4096, v1')
        self(f"""s_waitcnt lgkmcnt(0)
        ds_read_b32 v4, v2
        s_waitcnt lgkmcnt(0)
        buffer_store_dword v4, v2, s[12:15], 0 offen
        {L2}:""")
    def stamp(self, i, real=False):
        if not K.diag: return
        assert i < 9
        self(f's_{"memrealtime" if real else "memtime"} s[{84+2*i}:{85+2*i}]')
    def dump(self):
        if not K.diag: return
        self(f"""s_memtime s[100:101]
        s_load_dwordx2 s[4:5], s[0:1], 112
        s_mov_b64 exec, -1
        v_lshrrev_b32 v1, 6, v0
        s_waitcnt lgkmcnt(0)
        s_add_u32 s4, s4, {K.DIAG + self.kid * 0x40000}
        s_addc_u32 s5, s5, 0
        s_mov_b32 s6, 0x40000
        s_mov_b32 s7, 0x00020000
        s_lshl_b32 s8, s2, 9
        v_lshlrev_b32 v1, 6, v1
        v_add_u32 v1, s8, v1
        s_getreg_b32 s9, hwreg(HW_REG_XCC_ID)
        s_getreg_b32 s10, hwreg(HW_REG_HW_ID)
        s_mov_b64 exec, 1""")
        for i in range(9):
            self(f'v_mov_b32 v2, s{84+2*i}\nbuffer_store_dword v2, v1, s[4:7], 0 offen offset:{4*i}')
        self('v_mov_b32 v2, s9\nbuffer_store_dword v2, v1, s[4:7], 0 offen offset:36\nv_mov_b32 v2, s10\nbuffer_store_dword v2, v1, s[4:7], 0 offen offset:40')
    def text(self):
        return (f'.globl {self.name}\n.p2align 8\n.type {self.name},@function\n{self.name}:\n' + '\n'.join(self.lines) + '\n')
    def desc(self, sgpr=None):
        nv = max(8, (self.vmax + 7) // 8 * 8)
        return f'''.amdhsa_kernel {self.name}
  .amdhsa_next_free_vgpr {nv}
  .amdhsa_next_free_sgpr {102 if (K.diag or K.dbg) else (sgpr or max(self.ns, 16))}
  .amdhsa_accum_offset {(nv + 3) // 4 * 4}
  .amdhsa_group_segment_fixed_size 0
  .amdhsa_kernarg_size 120
  .amdhsa_user_sgpr_count 2
  .amdhsa_user_sgpr_kernarg_segment_ptr 1
  .amdhsa_system_sgpr_workgroup_id_x 1
  .amdhsa_float_denorm_mode_32 3
.end_amdhsa_kernel
'''
def v(a, n=1): return f'v{a}' if n == 1 else f'v[{a}:{a+n-1}]'
def s(a, n=1): return f's{a}' if n == 1 else f's[{a}:{a+n-1}]'
HEADER = open('adaLN_cond__spectral_fnet__moe_arch_mod__prompt.s.ref').read().split('; Override launch')[0]
def emit(kernels, launches):
    o = HEADER
    if len(launches) == 1 and launches[0][0] == 'adaLN_cond__spectral_fnet__moe_arch_mod__prompt_kernel':
        n, g, b, l = launches[0]
        o += f'; @launch grid=({g},1,1) block=({b},1,1) lds={l}\n'
    else:
        for n, g, b, l in launches:
            o += f'; @launch kernel={n} grid=({g},1,1) block=({b},1,1) lds={l}\n'
    o += '.amdgcn_target "amdgcn-amd-amdhsa--gfx950"\n.text\n'
    for k in kernels: o += k.text()
    o += '.section .rodata,"a"\n'
    for k in kernels: o += '.p2align 6\n' + k.desc()
    return o
```

```python
import sys, struct
from asmlib import *
import hazard
NAME = 'adaLN_cond__spectral_fnet__moe_arch_mod__prompt_kernel'
MODV = 0x1C0000; NONCE = 0x1C8000; DRDY = 0x1C9000; FLAG1 = 0x280000; FRS = 0x6000; KEYS = 0x2B0000; KRS = 0x4000; ACT = 0x1F0000; ARS = 0x2000; SLOT = 0x200000; SLS = 4096
WSB = 0x300000
HUGE = 0x3ff00000
OPT = dict(ST=0, FS=32, KS=32, SLEEP=1, HELP=1, EARLY=4, LATE=4, WTRIG=0, MDELAY=3, PD=1, TOUCHW=0, PREP=0, FW=0, DAFIRST=1, SLOW=1, NPW=4, OUT='sc1', MFIRST=0, PRIO=1, A2=1)
ZS = 928
UB = 64 * ZS; CB_ = UB + 32768; CAB = CB_ + 5 * 2048; MISC = CAB + 3584; XB = MISC + 64
LDS = XB + 16 * 896 + 128
XS = 288
def fl(x): return '0x%08x' % struct.unpack('<I', struct.pack('<f', x))[0]
def rb1(k, dst, src): k(f'v_cvt_pk_bf16_f32 {v(dst)}, {v(src)}, {v(src)}\nv_and_b32 {v(dst)}, 0xffff0000, {v(dst)}')
def ln_scalars(k, vm, vr):
    k(f'''v_mul_f32 {v(vm)}, {fl(1/448)}, {v(vm)}
    v_mul_f32 {v(vr)}, {fl(1/448)}, {v(vr)}
    v_fma_f32 {v(vr)}, -{v(vm)}, {v(vm)}, {v(vr)}
    v_max_f32 {v(vr)}, 0, {v(vr)}
    v_add_f32 {v(vr)}, 0x3727c5ac, {v(vr)}
    v_rsq_f32 {v(vr)}, {v(vr)}
    v_mul_f32 {v(vm)}, {v(vm)}, {v(vr)}''')

def gen():
    FS = OPT['FS']; KS = OPT['KS']; SLEEP = OPT['SLEEP']
    k = K(NAME); k.ns = 3; k.nv = 1
    def stamp(i, mode):
        if OPT['ST'] in mode: k.stamp(i)
    Lend = k.label('end'); Lmod = k.label('mod'); LG = k.label('G'); LD = k.label('D'); Lsp = k.label('sp')
    k.stamp(0, True); k.stamp(1)
    if K.dbg:
        k.dstamp(0)
        for i in range(1, 5): k(f's_mov_b32 s{84+2*i}, 0')
        k('s_lshr_b32 s83, s2, 3\ns_cmp_lt_u32 s83, 27\ns_cselect_b32 s82, 10, 14\ns_cmp_lt_u32 s83, 23\ns_cselect_b32 s82, 6, s82\ns_cmp_lt_u32 s83, 16\ns_cselect_b32 s82, 2, s82')
    px = k.salloc(2); pws = k.salloc(2); pw = k.salloc(8); pc = k.salloc(4); pout = k.salloc(2)
    stag = k.salloc(); sw = k.salloc(); sa = k.salloc(); sb = k.salloc(); st = k.salloc(); st2 = k.salloc(); so = k.salloc(); scnt = k.salloc()
    sj = k.salloc(); ss2 = k.salloc(); sones = k.salloc(); sflag = k.salloc()
    rx = k.salloc(4); rws = k.salloc(4); r3 = k.salloc(4); r4 = k.salloc(4)
    vl = k.valloc(); vg = k.valloc(); vn = k.valloc(); vt = k.valloc(); vt2 = k.valloc(); vo = k.valloc(); vtag = k.valloc(); vt3 = k.valloc()
    VBASE = k.nv
    k(f'''s_load_dwordx2 {s(px,2)}, s[0:1], 0
    s_load_dwordx4 {s(pc,4)}, s[0:1], 80
    s_load_dwordx2 {s(pws,2)}, s[0:1], 112
    s_load_dwordx8 {s(pw,8)}, s[0:1], 48
    s_load_dwordx2 {s(pout,2)}, s[0:1], 96
    v_lshrrev_b32 {v(vt)}, 6, v0
    v_and_b32 {v(vl)}, 63, v0
    v_readfirstlane_b32 {s(sw)}, {v(vt)}
    v_lshrrev_b32 {v(vg)}, 4, {v(vl)}
    v_and_b32 {v(vn)}, 15, {v(vl)}
    s_lshr_b32 {s(sa)}, s2, 3
    s_and_b32 {s(sb)}, s2, 7
    s_cmp_lt_u32 {s(sa)}, 16
    s_cbranch_scc1 {k.name}_S1
    s_cmp_ge_u32 s2, 256
    s_cbranch_scc1 {Lend}
    s_cmp_lt_u32 {s(sa)}, 23
    s_cbranch_scc1 {LG}
    s_sub_u32 {s(ss2)}, s2, 216
    s_cmp_ge_u32 {s(sa)}, 27
    s_cbranch_scc1 {Lmod}
    s_cmp_lg_u32 {s(sb)}, 7
    s_cbranch_scc1 {LD}
    s_add_u32 {s(ss2)}, {s(sa)}, 17
    s_cmp_ge_u32 {s(sa)}, 25
    s_cbranch_scc1 {Lsp}''')
    def check(check_regs):
        r0 = check_regs[0]
        if len(check_regs) == 1: k(f'v_cmp_ne_u32 vcc, {s(stag)}, {v(r0)}')
        else:
            k(f'v_xor_b32 {v(vt3)}, {s(stag)}, {v(r0)}')
            for r in check_regs[1:]: k(f'v_xor_b32 {v(vt2)}, {s(stag)}, {v(r)}\nv_or_b32 {v(vt3)}, {v(vt3)}, {v(vt2)}')
            k(f'v_cmp_ne_u32 vcc, 0, {v(vt3)}')
    def poll(load, check_regs, nlanes=64, name='poll', wait='vmcnt(0)'):
        Lp = k.label(name); Ld = k.label(name + 'd')
        k(f's_mov_b32 {s(scnt)}, 0')
        if nlanes < 64: k(f's_bfm_b64 exec, {nlanes}, 0')
        k(f'{Lp}:'); k(load); k(f's_add_u32 {s(scnt)}, {s(scnt)}, 1\ns_waitcnt {wait}')
        check(check_regs)
        k(f's_cbranch_vccz {Ld}')
        if SLEEP: k(f's_sleep {SLEEP}')
        k(f's_cmp_lt_u32 {s(scnt)}, 0x200000\ns_cbranch_scc1 {Lp}\n{Ld}:')
        if nlanes < 64: k('s_mov_b64 exec, -1')
    def ppoll(loadf, nld, regsf, depth, nlanes=64, name='pp'):
        if depth == 1: return poll(loadf(0), regsf(0), nlanes, name)
        Lp = k.label(name); Ld = k.label(name + 'd')
        k(f's_mov_b32 {s(scnt)}, 0')
        if nlanes < 64: k(f's_bfm_b64 exec, {nlanes}, 0')
        for i in range(depth - 1): k(loadf(i)); k('s_sleep 1')
        k(f'{Lp}:')
        for i in range(depth):
            k(loadf((i + depth - 1) % depth)); k(f's_waitcnt vmcnt({nld*(depth-1)})'); check(regsf(i)); k(f's_cbranch_vccz {Ld}\ns_sleep 1')
        k(f's_add_u32 {s(scnt)}, {s(scnt)}, 1\ns_cmp_lt_u32 {s(scnt)}, 0x100000\ns_cbranch_scc1 {Lp}\n{Ld}:')
        if nlanes < 64: k('s_mov_b64 exec, -1')
    assert st2 == st + 1 and st % 2 == 0
    def nonce(): k(f's_add_u32 {s(st)}, {s(pws)}, {NONCE}\ns_addc_u32 {s(st2)}, {s(pws+1)}, 0\ns_load_dword {s(stag)}, {s(st,2)}, 0')
    def tagcalc(): k(f's_mul_i32 {s(stag)}, {s(stag)}, 0x9E3779B1\ns_add_u32 {s(stag)}, {s(stag)}, 0x7F4A7C15\nv_mov_b32 {v(vtag)}, {s(stag)}')
    def flagprep(vf): k(f's_mul_i32 {s(sflag)}, {s(sflag)}, {FS}\ns_add_u32 {s(sflag)}, {s(sflag)}, {FLAG1}\nv_mul_u32_u24 {v(vf)}, {FRS}, {v(vl)}')
    def sendflag(vf): k(f's_mov_b64 exec, 0xff\nbuffer_store_dword {v(vtag)}, {v(vf)}, {s(rws,4)}, {s(sflag)} offen sc1\ns_mov_b64 exec, -1')
    X = k.valloc(28, 4); C = k.valloc(8); T = k.valloc(8); A = k.valloc(8); aM = k.valloc(); vf = k.valloc()
    sm_ = ss2; sadd = sj; smul = sones
    k(f'{Lmod}:')
    k(f'''s_mul_i32 {s(st)}, {s(sw)}, 56
    v_lshrrev_b32 {v(vt)}, 3, {v(vl)}
    v_add_u32 {v(vt2)}, {s(st)}, {v(vt)}
    v_mul_u32_u24 {v(vo)}, 5376, {v(vt2)}
    v_and_b32 {v(vt2)}, 7, v0
    v_lshl_add_u32 {v(vo)}, {v(vt2)}, 4, {v(vo)}
    v_add_u32 {v(vt3)}, {s(st)}, {v(vl)}
    v_lshlrev_b32 {v(vt3)}, 1, {v(vt3)}
    s_lshl_b32 {s(so)}, {s(sm_)}, 7
    s_waitcnt lgkmcnt(0)''')
    k.srd(r3, pc, 896); k.srd(r4, pc + 2, 448 * 5376)
    if OPT['MDELAY'] & 1: nonce(); k('s_waitcnt lgkmcnt(0)')
    k(f'buffer_load_ushort {v(C+7)}, {v(vt3)}, {s(r3,4)}, 0 offen')
    if OPT['MDELAY'] & 4: k('s_waitcnt vmcnt(0)')
    for i in range(7):
        k(f'buffer_load_dwordx4 {v(X+4*i,4)}, {v(vo)}, {s(r4,4)}, {s(so)} offen')
        if i < 6: k(f's_add_u32 {s(so)}, {s(so)}, {8*5376}')
    if not OPT['MDELAY'] & 1: nonce()
    k.srd(rws, pws, WSB)
    k.stamp(2)
    k(f'''v_lshlrev_b32 {v(vt3)}, 2, {v(vt)}
    v_lshrrev_b32 {v(vt)}, 6, v0
    v_lshlrev_b32 {v(aM)}, 8, {v(vt)}
    v_lshl_add_u32 {v(aM)}, {v(vt2)}, 5, {v(aM)}
    v_bfe_u32 {v(vt2)}, v0, 4, 1
    v_lshl_add_u32 {v(aM)}, {v(vt2)}, 3, {v(aM)}
    v_bfe_u32 {v(vt2)}, v0, 5, 1
    v_lshl_add_u32 {v(aM)}, {v(vt2)}, 2, {v(aM)}
    s_mul_i32 {s(st2)}, {s(sm_)}, 37
    s_lshr_b32 {s(st2)}, {s(st2)}, 8
    s_cmp_eq_u32 {s(st2)}, 0
    s_cselect_b32 {s(smul)}, 0x45000000, 1.0
    s_cmp_eq_u32 {s(st2)}, 1
    s_cselect_b32 {s(sadd)}, 1.0, 0
    s_cmp_eq_u32 {s(st2)}, 4
    s_cselect_b32 {s(sadd)}, 1.0, {s(sadd)}
    s_lshl_b32 {s(so)}, {s(sm_)}, 8
    s_add_u32 {s(so)}, {s(so)}, {MODV}
    s_add_u32 {s(sflag)}, {s(sm_)}, 128
    v_lshlrev_b32 {v(vo)}, 2, v0''')
    flagprep(vf)
    k(f'''s_waitcnt vmcnt(7)
    v_lshlrev_b32 {v(C+7)}, 16, {v(C+7)}
    v_mul_f32 {v(T)}, 0xbfb8aa3b, {v(C+7)}
    v_exp_f32 {v(T)}, {v(T)}
    v_add_f32 {v(T)}, 1.0, {v(T)}
    v_rcp_f32 {v(T)}, {v(T)}
    v_mul_f32 {v(C+7)}, {v(C+7)}, {v(T)}''')
    rb1(k, C + 7, C + 7)
    for i in range(7): k(f'ds_bpermute_b32 {v(C+i)}, {v(vt3)}, {v(C+7)} offset:{32*i}')
    k('s_waitcnt lgkmcnt(0)'); tagcalc()
    for i in range(7):
        k(f's_waitcnt vmcnt({6-i})')
        for q in range(4):
            k(f'v_lshlrev_b32 {v(T+2*(q&1))}, 16, {v(X+4*i+q)}\nv_and_b32 {v(T+2*(q&1)+1)}, 0xffff0000, {v(X+4*i+q)}')
            if i == 0: k(f'v_mul_f32 {v(A+2*q)}, {v(T+2*(q&1))}, {v(C)}\nv_mul_f32 {v(A+2*q+1)}, {v(T+2*(q&1)+1)}, {v(C)}')
            else: k(f'v_fmac_f32 {v(A+2*q)}, {v(T+2*(q&1))}, {v(C+i)}\nv_fmac_f32 {v(A+2*q+1)}, {v(T+2*(q&1)+1)}, {v(C+i)}')
    k.stamp(4)
    for q in range(4): k(f'v_permlane32_swap_b32 {v(A+2*q)}, {v(A+2*q+1)}')
    for q in range(4): k(f'v_add_f32 {v(A+2*q)}, {v(A+2*q)}, {v(A+2*q+1)}')
    for p in range(2): k(f'v_permlane16_swap_b32 {v(A+4*p)}, {v(A+4*p+2)}')
    for p in range(2): k(f'v_add_f32 {v(A+4*p)}, {v(A+4*p)}, {v(A+4*p+2)}')
    for p in range(2): k(f'v_add_f32_dpp {v(A+4*p)}, {v(A+4*p)}, {v(A+4*p)} row_ror:8 row_mask:0xf bank_mask:0xf')
    k(f'''ds_write_b32 {v(aM)}, {v(A)}
    ds_write_b32 {v(aM)}, {v(A+4)} offset:16
    s_waitcnt lgkmcnt(0)
    s_barrier
    s_cmp_lg_u32 {s(sw)}, 0
    s_cbranch_scc1 {Lend}''')
    for i in range(8): k(f'ds_read_b32 {v(T+i)}, {v(vo)} offset:{256*i}')
    for i in (1, 3, 5, 7): k(f's_waitcnt lgkmcnt({7-i})\nv_add_f32 {v(T+i-1)}, {v(T+i-1)}, {v(T+i)}')
    k(f'v_add_f32 {v(T)}, {v(T)}, {v(T+2)}\nv_add_f32 {v(T+4)}, {v(T+4)}, {v(T+6)}\nv_add_f32 {v(T)}, {v(T)}, {v(T+4)}')
    rb1(k, T, T); k(f'v_add_f32 {v(T)}, {s(sadd)}, {v(T)}'); rb1(k, T, T)
    k(f'''v_mul_f32 {v(T)}, {s(smul)}, {v(T)}
    buffer_store_dword {v(T)}, {v(vo)}, {s(rws,4)}, {s(so)} offen sc1
    s_waitcnt vmcnt(0)''')
    sendflag(vf); k.dstamp(1)
    k(f's_branch {Lend}')
    k.nv = VBASE
    F0 = k.valloc(16, 4); FB = k.valloc(16, 4); AD = k.valloc(24, 4); XF = k.valloc(16, 4)
    vstep = k.valloc(); vbase = k.valloc(); aU = k.valloc(4); aV = k.valloc(2); aT = k.valloc(); vx0 = k.valloc(); vx1 = k.valloc(); aC = k.valloc(); aK = k.valloc()
    vh0 = k.valloc(); vh1 = k.valloc(); vki = k.valloc(); vkm = k.valloc(); vsb = k.valloc(); vf = k.valloc()
    AZ = k.valloc(32, 4); PR = k.valloc(16, 4); PI = k.valloc(16, 4); CA = k.valloc(16, 4); CK = k.valloc(40, 4); BP = k.valloc(16, 4)
    XR = BP
    Fre0 = F0; Fim0 = F0 + 4; Fre1 = F0 + 8; Fim1 = F0 + 12
    X = AZ; T = PR; BF = CA; a1 = CA + 8; a2 = CA + 10; vs1 = CA + 12; aW = CA + 13; aR = CA + 14; aZ = CA + 15; aT1 = CK; aT2 = CK + 1; TG = PI
    soff = k.salloc(7); sslot = k.salloc(); st0 = k.salloc(); smir = k.salloc(); sxl = k.salloc(); sxo = k.salloc(); sz1 = k.salloc(); sz2 = k.salloc(); skx = k.salloc()
    k(f'''{k.name}_S1:
    s_lshr_b32 {s(ss2)}, {s(sa)}, 2
    s_lshl_b32 {s(st)}, {s(sb)}, 2
    s_add_u32 {s(ss2)}, {s(ss2)}, {s(st)}
    s_and_b32 {s(sj)}, {s(sa)}, 3
    s_lshl_b32 {s(sj)}, {s(sj)}, 1
    s_mul_i32 {s(so)}, {s(ss2)}, 896
    s_lshl_b32 {s(st)}, {s(sj)}, 7
    s_add_u32 {s(soff)}, {s(so)}, {s(st)}
    s_add_u32 {s(st2)}, {s(so)}, 896''')
    for i in range(1, 7):
        k(f's_add_u32 {s(soff+i)}, {s(soff+i-1)}, 128\ns_cmp_ge_u32 {s(soff+i)}, {s(st2)}\ns_cselect_b32 {s(soff+i)}, {s(so)}, {s(soff+i)}')
    k(f'''s_add_u32 {s(st)}, {s(sw)}, {s(sj)}
    s_and_b32 {s(st)}, {s(st)}, 7
    s_lshl_b32 {s(st)}, {s(st)}, 3
    v_lshrrev_b32 {v(vs1)}, 3, {v(vl)}
    v_add_u32 {v(vs1)}, {s(st)}, {v(vs1)}
    v_mul_u32_u24 {v(vt)}, 28672, {v(vs1)}
    v_and_b32 {v(vt2)}, 7, v0
    v_lshl_add_u32 {v(vo)}, {v(vt2)}, 4, {v(vt)}
    s_waitcnt lgkmcnt(0)''')
    k.srd(rx, px, 1835008)
    def xloads():
        for i in range(7): k(f'buffer_load_dwordx4 {v(X+4*i,4)}, {v(vo)}, {s(rx,4)}, {s(soff+i)} offen')
    Lx1 = k.label('x1'); Lx2 = k.label('x2')
    k(f"s_cmp_ge_u32 {s(sw)}, {OPT['LATE']}\ns_cbranch_scc1 {Lx1}"); xloads(); k(f'{Lx1}:')
    nonce(); k.srd(rws, pws, WSB)
    stamp(2, {1})
    k(f'''s_lshl_b32 {s(sflag)}, {s(ss2)}, 2
    s_lshr_b32 {s(st)}, {s(sj)}, 1
    s_add_u32 {s(sflag)}, {s(sflag)}, {s(st)}
    s_mov_b32 {s(sones)}, 0x3f803f80
    s_and_b32 {s(st)}, {s(sw)}, 1
    s_lshl_b32 {s(st)}, {s(st)}, 4
    v_add_u32 {v(vt3)}, {s(st)}, {v(vn)}
    v_cvt_f32_u32 {v(vstep)}, {v(vt3)}
    s_bitcmp1_b32 {s(sw)}, 1
    s_cselect_b32 {s(st)}, {fl(0.25)}, 0
    s_cselect_b32 {s(st2)}, {fl(32.0)}, 0
    v_mov_b32 {v(vbase)}, {s(st)}
    v_mov_b32 {v(vt)}, {s(st2)}
    v_cmp_eq_u32 vcc, 0, {v(vt3)}
    v_cndmask_b32 {v(vstep)}, {v(vstep)}, {v(vt)}, vcc
    v_cndmask_b32 {v(vbase)}, {v(vbase)}, 0, vcc
    v_mul_f32 {v(vstep)}, {fl(1/64)}, {v(vstep)}
    v_lshlrev_b32 {v(vt)}, 2, {v(vg)}
    v_cvt_f32_u32 {v(vt)}, {v(vt)}
    v_fmac_f32 {v(vbase)}, {v(vstep)}, {v(vt)}''')
    for e in range(16):
        o = 32 * (e >> 3) + 16 * ((e >> 2) & 1) + (e & 3)
        k(f'v_fmamk_f32 {v(T+e)}, {v(vstep)}, {fl(o)}, {v(vbase)}')
    for e in range(16): k(f'v_cos_f32 {v(T+e)}, {v(T+e)}')
    for e in range(8): k(f'v_cvt_pk_bf16_f32 {v(BF+e)}, {v(T+2*e)}, {v(T+2*e+1)}')
    flagprep(vf)
    k(f'''v_mov_b32 {v(a1)}, 0
    v_mov_b32 {v(a1+1)}, 0
    v_mov_b32 {v(a2)}, 0
    v_mov_b32 {v(a2+1)}, 0
    v_mov_b32 {v(vt)}, {MISC}
    ds_write_b128 {v(vt)}, {v(a1,4)}
    v_mul_u32_u24 {v(aW)}, {XS}, {v(vs1)}
    v_and_b32 {v(vt2)}, 7, v0
    v_lshl_add_u32 {v(aW)}, {v(vt2)}, 4, {v(aW)}
    v_lshrrev_b32 {v(vt)}, 2, {v(vl)}
    v_mul_u32_u24 {v(aR)}, {XS}, {v(vt)}
    v_and_b32 {v(vt3)}, 3, {v(vl)}
    v_lshl_add_u32 {v(aR)}, {v(vt3)}, 3, {v(aR)}
    s_lshr_b32 {s(st)}, {s(sw)}, 2
    s_lshl_b32 {s(st)}, {s(st)}, 7
    v_add_u32 {v(aR)}, {s(st)}, {v(aR)}
    v_lshrrev_b32 {v(vt)}, 3, {v(vl)}
    v_mul_u32_u24 {v(aZ)}, 57344, {v(vt)}
    v_lshl_add_u32 {v(aZ)}, {v(vt2)}, 4, {v(aZ)}
    s_mul_i32 {s(scnt)}, {s(sw)}, 2304
    s_add_u32 {s(scnt)}, {s(scnt)}, {64*XS}
    v_mul_u32_u24 {v(aT1)}, 144, {v(vn)}
    v_lshl_add_u32 {v(aT1)}, {v(vg)}, 3, {v(aT1)}
    v_add_u32 {v(aT1)}, {s(scnt)}, {v(aT1)}
    v_mul_u32_u24 {v(aT2)}, 144, {v(vt)}
    v_lshl_add_u32 {v(aT2)}, {v(vt2)}, 4, {v(aT2)}
    v_add_u32 {v(aT2)}, {s(scnt)}, {v(aT2)}
    s_bfe_u32 {s(st2)}, {s(sw)}, 0x10001
    s_mul_i32 {s(st2)}, {s(st2)}, 28672
    s_add_u32 {s(sz1)}, {s(soff)}, {s(st2)}
    s_add_u32 {s(sz1)}, {s(sz1)}, {s(st)}
    s_and_b32 {s(st2)}, {s(sw)}, 1
    s_mul_i32 {s(st2)}, {s(st2)}, {16*57344}
    s_add_u32 {s(sz1)}, {s(sz1)}, {s(st2)}
    s_lshr_b32 {s(st)}, {s(sw)}, 2
    s_add_u32 {s(st)}, {s(st)}, {s(sj)}
    s_cmp_eq_u32 {s(st)}, 7
    s_cselect_b32 {s(sz1)}, {HUGE}, {s(sz1)}
    s_add_u32 {s(sz2)}, {s(sz1)}, {8*57344}''')
    assert a2 == a1 + 2 and a1 % 4 == 0
    k(f'''s_lshr_b32 {s(st)}, {s(sa)}, 2
    s_lshl_b32 {s(st)}, {s(st)}, 3
    s_add_u32 {s(sslot)}, {s(sb)}, {s(st)}
    s_bfe_u32 {s(smir)}, {s(sa)}, 0x10001
    s_sub_u32 {s(st)}, 64, {s(sslot)}
    s_cmp_eq_u32 {s(sslot)}, 0
    s_cselect_b32 {s(st)}, 32, {s(st)}
    s_cmp_eq_u32 {s(smir)}, 1
    s_cselect_b32 {s(st0)}, {s(st)}, {s(sslot)}
    s_and_b32 {s(st)}, {s(sa)}, 1
    s_lshl_b32 {s(st)}, {s(st)}, 10
    s_add_u32 {s(st0)}, {s(st0)}, {s(st)}
    s_lshl_b32 {s(st)}, {s(sw)}, 7
    s_add_u32 {s(st)}, {s(st)}, {s(st0)}
    s_mul_i32 {s(sxo)}, {s(st)}, 896
    s_sub_u32 {s(skx)}, 2047, {s(st)}
    s_mul_i32 {s(sxl)}, {s(sw)}, 1792
    s_add_u32 {s(sxl)}, {s(sxl)}, {XB}
    v_lshlrev_b32 {v(vh0)}, 4, {v(vl)}
    v_mov_b32 {v(vt2)}, {HUGE}''')
    def psetup():
        k(f'''v_and_b32 {v(vki)}, 32, {v(vl)}
    v_lshlrev_b32 {v(vki)}, 1, {v(vki)}
    v_sub_u32 {v(vki)}, {s(skx)}, {v(vki)}
    v_mov_b32 {v(vkm)}, 0xfffff800
    v_lshlrev_b32 {v(vt)}, 5, {v(vn)}
    v_lshl_add_u32 {v(vt)}, {v(vg)}, 3, {v(vt)}
    v_add_u32 {v(vx0)}, {s(sxl)}, {v(vt)}
    v_add_u32 {v(vx1)}, {s(sxl)}, {v(vh0)}
    v_add_u32 {v(aK)}, {CB_}, {v(vh0)}
    s_lshr_b32 {s(st)}, {s(sw)}, 1
    v_lshlrev_b32 {v(vt)}, 2, {v(vg)}
    v_xor_b32 {v(vt)}, {v(vt)}, {v(vn)}
    v_and_b32 {v(vt)}, 7, {v(vt)}
    v_xor_b32 {v(vt)}, {s(st)}, {v(vt)}
    v_lshlrev_b32 {v(aU)}, 4, {v(vt)}
    v_lshl_add_u32 {v(aU)}, {v(vn)}, 11, {v(aU)}
    v_lshl_add_u32 {v(aU)}, {v(vg)}, 9, {v(aU)}
    s_and_b32 {s(st)}, {s(sw)}, 1
    s_lshl_b32 {s(st)}, {s(st)}, 3
    s_add_u32 {s(st)}, {s(st)}, {UB}
    v_add_u32 {v(aU)}, {s(st)}, {v(aU)}
    v_xor_b32 {v(aU+1)}, 16, {v(aU)}
    v_xor_b32 {v(aU+2)}, 32, {v(aU)}
    v_xor_b32 {v(aU+3)}, 48, {v(aU)}
    s_lshl_b32 {s(st)}, {s(sw)}, 1
    v_xor_b32 {v(vt)}, {v(vg)}, {v(vn)}
    v_xor_b32 {v(vt)}, {s(st)}, {v(vt)}
    v_and_b32 {v(vt)}, 7, {v(vt)}
    v_lshlrev_b32 {v(aV)}, 4, {v(vt)}
    v_lshl_add_u32 {v(aV)}, {v(vn)}, 7, {v(aV)}
    s_lshl_b32 {s(st)}, {s(sw)}, 12
    s_add_u32 {s(st)}, {s(st)}, {UB}
    v_add_u32 {v(aV)}, {s(st)}, {v(aV)}
    v_xor_b32 {v(aV+1)}, 16, {v(aV)}
    v_lshrrev_b32 {v(vt)}, 2, {v(vl)}
    v_mul_u32_u24 {v(aT)}, {ZS}, {v(vt)}
    v_and_b32 {v(vt)}, 3, {v(vl)}
    v_mul_u32_u24 {v(vt)}, 56, {v(vt)}
    s_lshl_b32 {s(st)}, {s(sw)}, 3
    v_add3_u32 {v(aT)}, {v(aT)}, {v(vt)}, {s(st)}
    v_mul_u32_u24 {v(aC)}, 112, {v(vg)}
    s_lshl_b32 {s(st)}, {s(sw)}, 4
    s_add_u32 {s(st)}, {s(st)}, {CAB}
    v_add_u32 {v(aC)}, {s(st)}, {v(aC)}''')
    v7a = vsb; v7b = k.valloc(); v7c = PI + 10
    k.srd(r4, pw, 896)
    k(f'''s_cmp_eq_u32 {s(sw)}, 7
    s_cselect_b32 {s(r4+2)}, {s(r4+2)}, 0
    v_lshlrev_b32 {v(v7a)}, 3, {v(vl)}
    v_add_u32 {v(v7b)}, 512, {v(v7a)}
    v_cmp_gt_u32 vcc, 48, {v(vl)}
    v_cndmask_b32 {v(v7b)}, {v(vt2)}, {v(v7b)}, vcc''')
    def gen_f28():
        k(f'''v_cvt_f32_u32 {v(vstep)}, {v(vn)}
        v_mul_f32 {v(vstep)}, {fl(1/28)}, {v(vstep)}
        v_lshlrev_b32 {v(vt)}, 3, {v(vg)}
        v_cvt_f32_u32 {v(vt)}, {v(vt)}
        v_cmp_gt_u32 vcc, 12, {v(vn)}''')
        for b in range(2):
            if b == 1: k(f'v_add_f32 {v(vstep)}, {fl(16/28)}, {v(vstep)}')
            k(f'v_mul_f32 {v(vbase)}, {v(vt)}, {v(vstep)}')
            for e in range(8): k(f'v_fmamk_f32 {v(TG+e)}, {v(vstep)}, {fl(e)}, {v(vbase)}')
            for e in range(8): k(f'v_sin_f32 {v(TG+8+e)}, {v(TG+e)}\nv_cos_f32 {v(TG+e)}, {v(TG+e)}')
            for e in range(4): k(f'v_cvt_pk_bf16_f32 {v(FB+8*b+e)}, {v(TG+2*e)}, {v(TG+2*e+1)}\nv_cvt_pk_bf16_f32 {v(FB+8*b+4+e)}, -{v(TG+8+2*e)}, -{v(TG+9+2*e)}')
        for e in range(8): k(f'v_cndmask_b32 {v(FB+8+e)}, 0, {v(FB+8+e)}, vcc')
    sx1 = k.salloc(); sx2 = k.salloc(); sm0 = sx1; sm1 = sx2; ssw = k.salloc(2)
    def gen_w():
        k(f'''v_lshlrev_b32 {v(vt)}, 6, {v(vn)}
        v_add_u32 {v(vt)}, {s(st0)}, {v(vt)}
        v_cvt_f32_u32 {v(vstep)}, {v(vt)}
        v_mul_f32 {v(vstep)}, {fl(1/2048)}, {v(vstep)}
        v_lshlrev_b32 {v(vt)}, 2, {v(vg)}
        v_cvt_f32_u32 {v(vbase)}, {v(vt)}
        v_mul_f32 {v(vbase)}, {v(vbase)}, {v(vstep)}''')
        for e in range(8): k(f'v_fmamk_f32 {v(TG+e)}, {v(vstep)}, {fl(16*(e>>2)+(e&3))}, {v(vbase)}')
        for e in range(8): k(f'v_sin_f32 {v(TG+8+e)}, {v(TG+e)}\nv_cos_f32 {v(TG+e)}, {v(TG+e)}')
        for e in range(4): k(f'v_cvt_pk_bf16_f32 {v(Fre0+e)}, {v(TG+2*e)}, {v(TG+2*e+1)}\nv_cvt_pk_bf16_f32 {v(Fim0+e)}, -{v(TG+8+2*e)}, -{v(TG+9+2*e)}')
        Lns = k.label('ns'); Lnx = k.label('nx')
        k(f'''s_cmp_eq_u32 {s(smir)}, 1
        s_cselect_b32 {s(sx1)}, 0, 0x80008000
        s_cselect_b32 {s(sx2)}, 0x80008000, 0
        s_cmp_eq_u32 {s(sslot)}, 0
        s_cbranch_scc1 {Lns}''')
        for q in range(4): k(f'v_xor_b32 {v(Fre1+q)}, {s(sx1)}, {v(Fim0+q)}\nv_xor_b32 {v(Fim1+q)}, {s(sx2)}, {v(Fre0+q)}')
        k(f's_branch {Lnx}\n{Lns}:\ns_cmp_eq_u32 {s(smir)}, 1\ns_cselect_b32 {s(sm0)}, 0, -1\ns_cselect_b32 {s(sm1)}, -1, 0')
        for q in range(4):
            k(f'''v_and_b32 {v(Fre1+q)}, {s(sm1)}, {v(Fre0+q)}
            v_and_b32 {v(Fim1+q)}, {s(sm1)}, {v(Fim0+q)}
            v_and_b32 {v(Fre0+q)}, {s(sm0)}, {v(Fre0+q)}
            v_and_b32 {v(Fim0+q)}, {s(sm0)}, {v(Fim0+q)}''')
        k(f'{Lnx}:')
    def gen_da(TT):
        k(f'''v_cvt_f32_u32 {v(vstep)}, {v(vn)}
        v_mul_f32 {v(vstep)}, {fl(1/448)}, {v(vstep)}
        v_mul_u32_u24 {v(vt)}, 28, {v(vg)}
        s_lshl_b32 {s(st)}, {s(sw)}, 2
        v_add_u32 {v(vt)}, {s(st)}, {v(vt)}
        v_cvt_f32_u32 {v(vbase)}, {v(vt)}
        v_mul_f32 {v(vbase)}, {v(vbase)}, {v(vstep)}''')
        for q in range(4):
            for T_ in range(4): k(f'v_fmamk_f32 {v(TT+4*q+T_)}, {v(vstep)}, {fl(112*T_+q)}, {v(vbase)}')
        for e in range(16): k(f'v_sin_f32 {v(TT+16+e)}, {v(TT+e)}\nv_cos_f32 {v(TT+e)}, {v(TT+e)}')
        for q in range(4):
            A_ = AD + 6 * q
            k(f'''v_cvt_pk_bf16_f32 {v(A_)}, {v(TT+4*q)}, {v(TT+4*q+1)}
            v_cvt_pk_bf16_f32 {v(A_+1)}, {v(TT+4*q+2)}, {v(TT+4*q+3)}
            v_cvt_pk_bf16_f32 {v(A_+2)}, {v(TT+16+4*q)}, {v(TT+16+4*q+1)}
            v_cvt_pk_bf16_f32 {v(A_+3)}, {v(TT+16+4*q+2)}, {v(TT+16+4*q+3)}
            v_xor_b32 {v(A_+4)}, 0x80008000, {v(A_)}
            v_xor_b32 {v(A_+5)}, 0x80008000, {v(A_+1)}''')
    if OPT['EARLY'] & 8: psetup()
    if OPT['EARLY'] & 1: gen_w()
    k(f"s_cmp_lt_u32 {s(sw)}, {OPT['LATE']}\ns_cbranch_scc1 {Lx2}"); xloads(); k(f'{Lx2}:')
    if OPT['EARLY'] & 2: gen_f28()
    stamp(5, {1})
    if OPT['PRIO']: k('s_setprio 2')
    for i in range(7):
        k(f's_waitcnt vmcnt({6-i})')
        if i < 2:
            for q in range(4): k(f'v_lshlrev_b32 {v(T+8*i+2*q)}, 16, {v(X+4*i+q)}\nv_and_b32 {v(T+8*i+2*q+1)}, 0xffff0000, {v(X+4*i+q)}')
        for q in range(4):
            k(f'v_dot2c_f32_bf16 {v(a1+(q&1))}, {s(sones)}, {v(X+4*i+q)}')
            k(f'v_dot2c_f32_bf16 {v(a2+(q&1))}, {v(X+4*i+q)}, {v(X+4*i+q)}')
    stamp(3, {1}); k.dstamp(1)
    k(f'''s_mov_b32 m0, {s(sxl)}
    s_add_u32 {s(st)}, {s(sxo)}, {57344-896}
    s_bfm_b64 exec, 56, 0
    buffer_load_dwordx4 {v(vh0)}, {s(rx,4)}, {s(sxo)} offen lds
    buffer_load_dwordx4 {v(vh0)}, {s(rx,4)}, {s(st)} offen offset:896 lds
    s_mov_b64 exec, -1
    buffer_load_dwordx2 {v(XF,2)}, {v(v7a)}, {s(r4,4)}, 0 offen
    buffer_load_dwordx2 {v(XF+2,2)}, {v(v7b)}, {s(r4,4)}, 0 offen''')
    if OPT['PREP']:
        Lpp = k.label('prep')
        k(f'''s_cmp_lt_u32 {s(sw)}, 5
        s_cbranch_scc1 {Lpp}
        s_mul_i32 {s(st)}, {s(sb)}, {FRS}
        s_sub_u32 {s(st2)}, {s(sw)}, 5
        s_mul_i32 {s(st2)}, {s(st2)}, {64*FS}
        s_add_u32 {s(st)}, {s(st)}, {s(st2)}
        s_add_u32 {s(st)}, {s(st)}, {FLAG1}
        v_mul_u32_u24 {v(XF+5)}, {FS}, {v(vl)}
        buffer_load_dword {v(XF+4)}, {v(XF+5)}, {s(rws,4)}, {s(st)} offen sc1
        {Lpp}:''')
    k(f'v_add_f32 {v(a1)}, {v(a1)}, {v(a1+1)}\nv_add_f32 {v(a2)}, {v(a2)}, {v(a2+1)}')
    for dp in ('quad_perm:[1,0,3,2]', 'quad_perm:[2,3,0,1]', 'row_half_mirror'):
        k(f'v_add_f32_dpp {v(a1)}, {v(a1)}, {v(a1)} {dp} row_mask:0xf bank_mask:0xf')
        k(f'v_add_f32_dpp {v(a2)}, {v(a2)}, {v(a2)} {dp} row_mask:0xf bank_mask:0xf')
    ln_scalars(k, a1, a2)
    for h in range(2):
        for q in range(8): k(f'v_fma_f32 {v(T+8*h+q)}, {v(T+8*h+q)}, {v(a2)}, -{v(a1)}')
        for q in range(4): k(f'v_cvt_pk_bf16_f32 {v(X+4*h+q)}, {v(T+8*h+2*q)}, {v(T+8*h+2*q+1)}')
        k(f'ds_write_b128 {v(aW)}, {v(X+4*h,4)} offset:{128*h}')
    k(f's_waitcnt lgkmcnt(0)\ns_barrier')
    stamp(6, {1})
    AF = X
    for tau in range(4):
        for ks in range(2):
            for hh in range(2):
                k(f'ds_read_b64_tr_b16 {v(AF+8*tau+4*ks+2*hh,2)}, {v(aR)} offset:{(32*ks+16*hh)*XS+32*tau}')
    tagcalc()
    for tau in range(4):
        k(f's_waitcnt lgkmcnt({12-4*tau})')
        k(f'v_mfma_f32_16x16x32_bf16 {v(T+4*tau,4)}, {v(AF+8*tau,4)}, {v(BF,4)}, 0')
        k(f'v_mfma_f32_16x16x32_bf16 {v(T+4*tau,4)}, {v(AF+8*tau+4,4)}, {v(BF+4,4)}, {v(T+4*tau,4)}')
    for tau in range(4):
        k(f'v_cvt_pk_bf16_f32 {v(PI+2*tau)}, {v(T+4*tau)}, {v(T+4*tau+1)}\nv_cvt_pk_bf16_f32 {v(PI+2*tau+1)}, {v(T+4*tau+2)}, {v(T+4*tau+3)}')
        k(f'ds_write_b64 {v(aT1)}, {v(PI+2*tau,2)} offset:{32*tau}')
    k(f's_waitcnt lgkmcnt(0)\nds_read_b128 {v(X,4)}, {v(aT2)}\nds_read_b128 {v(X+4,4)}, {v(aT2)} offset:{8*144}')
    for h in range(2):
        k(f's_waitcnt lgkmcnt({1-h})\nbuffer_store_dwordx4 {v(X+4*h,4)}, {v(aZ)}, {s(rws,4)}, {s(sz1 if h == 0 else sz2)} offen sc1')
    stamp(4, {1})
    if OPT['PRIO']: k('s_setprio 0')
    if OPT['EARLY'] & 4: gen_f28()
    if not OPT['EARLY'] & 8: psetup()
    k.srd(r3, pout, 1835008)
    k(f'''s_and_b32 {s(sj)}, {s(sb)}, 7
    s_mul_i32 {s(sj)}, {s(sj)}, {FRS}
    s_add_u32 {s(sj)}, {s(sj)}, {FLAG1}
    v_mul_u32_u24 {v(vo)}, {FS}, {v(vl)}
    s_waitcnt vmcnt(0)
    s_barrier''')
    stamp(7, {1}); k.dstamp(2)
    Lnf = k.label('nf')
    k(f"s_cmp_lg_u32 {s(sw)}, {OPT['FW']}\ns_cbranch_scc1 {Lnf}"); sendflag(vf)
    if OPT['ST'] == 2: k('s_waitcnt vmcnt(0)'); k.stamp(2)
    k(f'{Lnf}:')
    T = AZ
    Lp7 = k.label('p7'); LA = k.label('A')
    k(f'''s_lshl_b32 {s(st)}, {s(sa)}, 1
    s_add_u32 {s(st)}, {s(st)}, {s(sw)}
    s_and_b32 {s(st)}, {s(st)}, 7
    s_mul_i32 {s(sz1)}, {s(st)}, {4*ZS}
    s_mul_i32 {s(sz2)}, {s(sslot)}, 57344
    s_mul_i32 {s(st2)}, {s(st)}, {4*896}
    s_add_u32 {s(sz2)}, {s(sz2)}, {s(st2)}
    s_mul_i32 {s(st)}, {s(st)}, {16*FS}
    v_add_u32 {v(vt)}, {112*FS}, {v(vo)}
    v_add_u32 {v(vo)}, {s(st)}, {v(vo)}
    v_cmp_gt_u32 vcc, 16, {v(vl)}
    v_cndmask_b32 {v(vo)}, {v(vt)}, {v(vo)}, vcc
    s_cmp_eq_u32 {s(sw)}, 7
    s_cbranch_scc1 {Lp7}''')
    def xunpack():
        for r in range(2): k(f'ds_read_b64 {v(XR+4*r,2)}, {v(vx0)} offset:{896*r}\nds_read_b64 {v(XR+4*r+2,2)}, {v(vx0)} offset:{896*r+512}')
        k(f'v_cmp_gt_u32 vcc, 12, {v(vn)}\ns_waitcnt lgkmcnt(0)')
        for r in range(2):
            for q in (2, 3): k(f'v_cndmask_b32 {v(XR+4*r+q)}, 0, {v(XR+4*r+q)}, vcc')
        for q in range(8): k(f'v_lshlrev_b32 {v(XF+2*q)}, 16, {v(XR+q)}\nv_and_b32 {v(XF+2*q+1)}, 0xffff0000, {v(XR+q)}')
    def zdma():
        k('s_bfm_b64 exec, 56, 0')
        for c in range(2):
            for j in range(4):
                k(f's_add_u32 {s(st)}, {s(sz1)}, {(32*c+j)*ZS}\ns_add_u32 {s(st2)}, {s(sz2)}, {(32*c+j)*896}\ns_mov_b32 m0, {s(st)}\ns_nop 0')
                k(f'buffer_load_dwordx4 {v(vh0)}, {s(rws,4)}, {s(st2)} offen sc1 lds')
        k('s_mov_b64 exec, -1')
    if not OPT['EARLY'] & 1: gen_w()
    if OPT['DAFIRST']: gen_da(AZ)
    xunpack()
    poll(f'buffer_load_dword {v(CK)}, {v(vo)}, {s(rws,4)}, {s(sj)} offen sc1', [CK], 16, name='pz')
    stamp(5, {0})
    zdma()
    if not OPT['DAFIRST']: gen_da(AZ)
    k(f'''v_mov_b32 {v(vt)}, {MISC}
    v_mov_b32 {v(vt2)}, 1
    s_mov_b64 exec, 1
    s_waitcnt vmcnt(0)
    ds_add_u32 {v(vt)}, {v(vt2)} offset:8
    s_mov_b64 exec, -1
    s_branch {LA}
    {Lp7}:''')
    sdz = sx1; sdm = sx2
    L7 = k.label('l7'); L7a = k.label('l7a'); L7b = k.label('l7b'); L7c = k.label('l7c')
    k(f'''v_lshlrev_b32 {v(v7b)}, 1, {v(v7b)}
    v_and_b32 {v(v7c)}, 3, {v(vl)}
    v_lshlrev_b32 {v(v7c)}, 8, {v(v7c)}
    v_lshrrev_b32 {v(vt)}, 2, {v(vl)}
    v_lshl_add_u32 {v(v7c)}, {v(vt)}, 4, {v(v7c)}
    v_add_u32 {v(v7c)}, {CB_}, {v(v7c)}
    s_mov_b32 {s(sdz)}, 0
    s_mov_b32 {s(sdm)}, 0
    s_mov_b32 {s(scnt)}, 0''')
    for i in range(16): k(f'v_mov_b32 {v(PR+i)}, 0')
    for q in range(4): k(f'v_lshlrev_b32 {v(T+2*q)}, 16, {v(XF+q)}\nv_and_b32 {v(T+2*q+1)}, 0xffff0000, {v(XF+q)}')
    xunpack()
    def mjob():
        k(f's_mov_b32 m0, {CAB}\ns_mov_b32 {s(st2)}, {MODV}')
        for i in range(4):
            if i == 3: k('s_bfm_b64 exec, 32, 0')
            k(f'buffer_load_dwordx4 {v(vh0)}, {s(rws,4)}, {s(st2)} offen offset:{1024*i} sc1 lds')
        k('s_mov_b64 exec, -1')
        for (slot_, sec) in ((2, 4), (3, 3), (0, 2), (4, 5)):
            k(f's_mov_b32 {s(st2)}, {MODV+sec*1792}')
            k(f'buffer_load_dwordx4 {v(CK+8*slot_,4)}, {v(vh0)}, {s(rws,4)}, {s(st2)} offen sc1\nbuffer_load_dwordx4 {v(CK+8*slot_+4,4)}, {v(v7b)}, {s(rws,4)}, {s(st2)} offen sc1')
    k(f'''{L7}:
    s_bfm_b64 exec, 58, 0
    buffer_load_dword {v(PI)}, {v(vo)}, {s(rws,4)}, {s(sj)} offen sc1
    s_add_u32 {s(scnt)}, {s(scnt)}, 1
    s_waitcnt vmcnt(0)
    v_cmp_ne_u32 vcc, {s(stag)}, {v(PI)}
    s_mov_b64 exec, -1
    s_cmp_ge_u32 {s(scnt)}, 0x200000
    s_cselect_b64 vcc, 0, vcc
    s_and_b32 {s(sdz)}, vcc_lo, 0xffff
    s_lshr_b64 {s(ssw,2)}, vcc, 16
    s_or_b32 {s(ssw)}, {s(ssw)}, {s(sdm)}
    s_cmp_lg_u64 {s(ssw,2)}, 0
    s_cbranch_scc1 {L7a}
    s_mov_b32 {s(sdm)}, 1''')
    stamp(5, {0})
    mjob()
    k(f'{L7a}:\ns_cmp_lg_u32 {s(sdz)}, 0\ns_cbranch_scc1 {L7}')
    zdma()
    k(f'''s_cmp_eq_u32 {s(sdm)}, 1
    s_cbranch_scc1 {L7c}
    v_mov_b32 {v(vt)}, {MISC}
    {L7b}:
    s_bfm_b64 exec, 58, 0
    buffer_load_dword {v(PI)}, {v(vo)}, {s(rws,4)}, {s(sj)} offen sc1
    s_waitcnt vmcnt(0)
    ds_read_b32 {v(PI+1)}, {v(vt)} offset:8
    v_cmp_ne_u32 vcc, {s(stag)}, {v(PI)}
    s_mov_b64 exec, -1
    s_cbranch_vccz {L7b}m
    s_waitcnt lgkmcnt(0)
    v_readfirstlane_b32 {s(st)}, {v(PI+1)}
    s_cmp_lt_u32 {s(st)}, 7
    s_cbranch_scc1 {L7b}
    s_branch {LA}
    {L7b}m:
    s_mov_b32 {s(sdm)}, 1''')
    stamp(5, {0})
    mjob()
    k(f's_branch {LA}\n{L7c}:\ns_waitcnt vmcnt(0)')
    k(f'{LA}:')
    if not OPT['EARLY'] & 6: gen_f28()
    stamp(3, {0})
    k('s_barrier')
    stamp(6, {0, 2}); k.dstamp(3)
    def kreads():
        for c in range(5): k(f'ds_read_b128 {v(CK+8*c,4)}, {v(aK)} offset:{2048*c}\nds_read_b128 {v(CK+8*c+4,4)}, {v(aK)} offset:{2048*c+1024}')
        k(f'v_mov_b32 {v(vt2)}, {MISC}\nds_read_b32 {v(vsb)}, {v(vt2)} offset:4')
    Lw7 = k.label('w7'); Ljoin = k.label('join')
    k(f's_cmp_eq_u32 {s(sw)}, 7\ns_cbranch_scc1 {Lw7}')
    for T_ in range(4):
        for ks in range(2):
            for hh in range(2):
                k(f'ds_read_b64_tr_b16 {v(AZ+8*T_+4*ks+2*hh,2)}, {v(aT)} offset:{(32*ks+16*hh)*ZS+224*T_}')
    for T_ in range(4):
        k(f's_waitcnt lgkmcnt({12-4*T_})')
        k(f'''v_mfma_f32_16x16x32_bf16 {v(PR+4*T_,4)}, {v(AZ+8*T_,4)}, {v(Fre0,4)}, 0
        v_mfma_f32_16x16x32_bf16 {v(PR+4*T_,4)}, {v(AZ+8*T_+4,4)}, {v(Fre1,4)}, {v(PR+4*T_,4)}''')
    Lsa = k.label('sa'); Lsab = k.label('sab')
    for T_ in range(4):
        k(f'''v_mfma_f32_16x16x32_bf16 {v(PI+4*T_,4)}, {v(AZ+8*T_,4)}, {v(Fim0,4)}, 0
        v_mfma_f32_16x16x32_bf16 {v(PI+4*T_,4)}, {v(AZ+8*T_+4,4)}, {v(Fim1,4)}, {v(PI+4*T_,4)}''')
        if T_ == OPT['A2']:
            k('s_barrier')
            for t2 in range(4): k(f'ds_read_b128 {v(CA+4*t2,4)}, {v(aC)} offset:{1792+448*t2}')
    for T_ in range(4):
        k(f's_waitcnt lgkmcnt({3-T_})')
        for i in range(4): k(f'v_mul_f32 {v(PR+4*T_+i)}, {v(PR+4*T_+i)}, {v(CA+4*T_+i)}')
    k(f's_cmp_eq_u32 {s(st0)}, 0\ns_cbranch_scc1 {Lsa}\n{Lsab}:')
    for i in range(4):
        k(f'v_cvt_pk_bf16_f32 {v(BP+4*i)}, {v(PR+i)}, {v(PR+4+i)}\nv_cvt_pk_bf16_f32 {v(BP+4*i+1)}, {v(PR+8+i)}, {v(PR+12+i)}')
    UR = AZ; VV = AZ + 16
    for i in range(4):
        B = BP + 4 * i
        for T_ in range(4): k(f'v_mul_f32 {v(PI+4*T_+i)}, {v(PI+4*T_+i)}, {v(CA+4*T_+i)}')
        k(f'''v_cvt_pk_bf16_f32 {v(B+2)}, {v(PI+i)}, {v(PI+4+i)}
        v_cvt_pk_bf16_f32 {v(B+3)}, {v(PI+8+i)}, {v(PI+12+i)}''')
        if i > 0:
            k(f'''v_mfma_f32_16x16x32_bf16 {v(UR+4*(i-1),4)}, {v(AD+6*(i-1),4)}, {v(B-4,4)}, 0
            v_mfma_f32_16x16x32_bf16 {v(VV+4*(i-1),4)}, {v(AD+6*(i-1)+2,4)}, {v(B-4,4)}, 0''')
    k(f'''v_mfma_f32_16x16x32_bf16 {v(UR+12,4)}, {v(AD+18,4)}, {v(BP+12,4)}, 0
    v_mfma_f32_16x16x32_bf16 {v(VV+12,4)}, {v(AD+20,4)}, {v(BP+12,4)}, 0''')
    UP = PR
    for i in range(4): k(f'v_cvt_pk_bf16_f32 {v(UP+2*i)}, {v(UR+i)}, {v(UR+4+i)}\nv_cvt_pk_bf16_f32 {v(UP+8+2*i)}, {v(VV+i)}, {v(VV+4+i)}')
    for i in range(4):
        k(f'v_cvt_pk_bf16_f32 {v(UP+2*i+1)}, {v(UR+8+i)}, {v(UR+12+i)}\nds_write_b64 {v(aU+i)}, {v(UP+2*i,2)} offset:{128*i}\nv_xor_b32 {v(aU+i)}, 64, {v(aU+i)}')
    for i in range(4):
        k(f'v_cvt_pk_bf16_f32 {v(UP+8+2*i+1)}, {v(VV+8+i)}, {v(VV+12+i)}\nds_write_b64 {v(aU+i)}, {v(UP+8+2*i,2)} offset:{128*i}')
    k(f's_branch {Ljoin}')
    k(f'{Lsa}:')
    for t2 in range(4): k(f'ds_read_b128 {v(BP+4*t2,4)}, {v(aC)} offset:{448*t2}')
    k(f's_mov_b32 exec_lo, 0x00010001\ns_mov_b32 exec_hi, 0x00010001\ns_waitcnt lgkmcnt(0)')
    for e in range(16): k(f'v_add_f32 {v(PR+e)}, {v(PR+e)}, {v(BP+e)}')
    k(f's_mov_b64 exec, -1\ns_nop 1\ns_branch {Lsab}')
    k(f'{Lw7}:')
    L7m = k.label('l7m')
    k(f's_cmp_eq_u32 {s(sdm)}, 1\ns_cbranch_scc1 {L7m}\nv_mul_u32_u24 {v(vo)}, {FS}, {v(vl)}\ns_add_u32 {s(so)}, {s(sj)}, {128*FS}')
    poll(f'buffer_load_dword {v(PI)}, {v(vo)}, {s(rws,4)}, {s(so)} offen sc1', [PI], 42, name='pm')
    stamp(5, {0})
    mjob()
    k(f'{L7m}:\ns_waitcnt vmcnt(8)\ns_barrier\ns_waitcnt vmcnt(0)')
    for e in range(8): k(f'v_mul_f32 {v(CK+8+e)}, {v(T+e)}, {v(CK+16+e)}')
    k(f'v_add_f32 {v(T+8)}, {v(CK+8)}, {v(CK+9)}\nv_mul_f32 {v(T+9)}, {v(T)}, {v(CK+24)}')
    for e in range(2, 8): k(f'v_add_f32 {v(T+8)}, {v(T+8)}, {v(CK+8+e)}\nv_fmac_f32 {v(T+9)}, {v(T+e-1)}, {v(CK+24+e-1)}')
    k(f'v_fmac_f32 {v(T+9)}, {v(T+7)}, {v(CK+31)}')
    for c in (2, 3, 0, 4): k(f'ds_write_b128 {v(v7c)}, {v(CK+8*c,4)} offset:{2048*c}\nds_write_b128 {v(v7c)}, {v(CK+8*c+4,4)} offset:{2048*c+1024}')
    k(f'v_permlane32_swap_b32 {v(T+8)}, {v(T+9)}\nv_add_f32 {v(T+8)}, {v(T+8)}, {v(T+9)}\nv_mov_b32 {v(T+9)}, {v(T+8)}\nv_permlane16_swap_b32 {v(T+8)}, {v(T+9)}\nv_add_f32 {v(T+8)}, {v(T+8)}, {v(T+9)}')
    for r in (8, 4, 2, 1): k(f'v_add_f32_dpp {v(T+8)}, {v(T+8)}, {v(T+8)} row_ror:{r} row_mask:0xf bank_mask:0xf')
    k(f'''v_readlane_b32 {s(st)}, {v(T+8)}, 0
    v_readlane_b32 {s(st2)}, {v(T+8)}, 32
    v_mov_b32 {v(T+9)}, {fl(-1/448)}
    v_mul_f32 {v(T+9)}, {s(st)}, {v(T+9)}
    v_cmp_gt_u32 vcc, 48, {v(vl)}
    v_cndmask_b32 {v(T+11)}, 0, {v(T+9)}, vcc
    v_mov_b32 {v(T+10)}, {s(st2)}
    v_mov_b32 {v(vt2)}, {MISC}
    ds_write_b32 {v(vt2)}, {v(T+10)} offset:4''')
    for e in range(8): k(f'v_add_f32 {v(CK+8+e)}, {v(CK+8+e)}, {v(T+9 if e < 4 else T+11)}')
    k(f'ds_write_b128 {v(v7c)}, {v(CK+8,4)} offset:2048\nds_write_b128 {v(v7c)}, {v(CK+12,4)} offset:{2048+1024}')
    for i in range(4): k(f'ds_write_b64 {v(aU+i)}, {v(PR,2)} offset:{128*i}\nv_xor_b32 {v(aU+i)}, 64, {v(aU+i)}')
    for i in range(4): k(f'ds_write_b64 {v(aU+i)}, {v(PR,2)} offset:{128*i}')
    k(f'{Ljoin}:')
    k(f'''v_xor_b32 {v(vt)}, 64, {v(aV)}
    v_xor_b32 {v(vt2)}, 64, {v(aV+1)}
    v_mov_b32 {v(CA+1)}, {v(vtag)}
    v_mov_b32 {v(CA+3)}, {v(vtag)}
    v_mov_b32 {v(CA+5)}, {v(vtag)}
    v_mov_b32 {v(CA+7)}, {v(vtag)}
    s_waitcnt lgkmcnt(0)
    s_barrier''')
    stamp(7, {0})
    BD = AZ; Y = PI
    k(f'''ds_read_b128 {v(BD,4)}, {v(aV)}
    ds_read_b128 {v(BD+4,4)}, {v(vt)}
    ds_read_b128 {v(BD+8,4)}, {v(aV+1)} offset:2048
    ds_read_b128 {v(BD+12,4)}, {v(vt2)} offset:2048
    s_mul_i32 {s(so)}, s2, {SLS}
    s_add_u32 {s(so)}, {s(so)}, {SLOT}
    s_mul_i32 {s(sj)}, s2, {KS}
    s_add_u32 {s(sj)}, {s(sj)}, {KEYS}
    v_mul_u32_u24 {v(vo)}, {KRS}, {v(vl)}''')
    kreads()
    for r in range(2):
        k(f's_waitcnt lgkmcnt({11+3-2*r})')
        for b in range(2): k(f'v_mfma_f32_16x16x32_bf16 {v(Y+8*r+4*b,4)}, {v(BD+8*r,4)}, {v(FB+8*b,4)}, 0')
        k(f's_waitcnt lgkmcnt({11+2-2*r})')
        for b in range(2): k(f'v_mfma_f32_16x16x32_bf16 {v(Y+8*r+4*b,4)}, {v(BD+8*r+4,4)}, {v(FB+8*b+4,4)}, {v(Y+8*r+4*b,4)}')
    S = PR
    k('s_waitcnt lgkmcnt(7)')
    for r in range(2):
        for e in range(8):
            x1 = XF + 8 * r + e
            k(f'v_fmac_f32 {v(x1)}, {v(CK+e)}, {v(Y+8*r+e)}')
            if e == 0: k(f'v_mul_f32 {v(S+2+r)}, {v(x1)}, {v(x1)}\nv_mul_f32 {v(S+4+r)}, {v(x1)}, {v(CK+8)}')
            else: k(f'v_fmac_f32 {v(S+2+r)}, {v(x1)}, {v(x1)}\nv_fmac_f32 {v(S+4+r)}, {v(x1)}, {v(CK+8+e)}')
            if e == 1: k(f'v_add_f32 {v(S+r)}, {v(x1-1)}, {v(x1)}')
            elif e > 1: k(f'v_add_f32 {v(S+r)}, {v(S+r)}, {v(x1)}')
    k(f'''v_permlane32_swap_b32 {v(S+4)}, {v(S+5)}
    v_permlane32_swap_b32 {v(S+2)}, {v(S+3)}
    v_permlane32_swap_b32 {v(S)}, {v(S+1)}
    v_add_f32 {v(S+4)}, {v(S+4)}, {v(S+5)}
    v_add_f32 {v(S+2)}, {v(S+2)}, {v(S+3)}
    v_add_f32 {v(S)}, {v(S)}, {v(S+1)}
    v_mov_b32 {v(S+5)}, {v(S+4)}
    v_permlane16_swap_b32 {v(S)}, {v(S+2)}
    v_permlane16_swap_b32 {v(S+4)}, {v(S+5)}
    v_add_f32 {v(S)}, {v(S)}, {v(S+2)}
    v_add_f32 {v(S+4)}, {v(S+4)}, {v(S+5)}''')
    for r in (8, 4, 2, 1):
        k(f'v_add_f32_dpp {v(S)}, {v(S)}, {v(S)} row_ror:{r} row_mask:0xf bank_mask:0xf\nv_add_f32_dpp {v(S+4)}, {v(S+4)}, {v(S+4)} row_ror:{r} row_mask:0xf bank_mask:0xf')
    k(f'v_mov_b32 {v(S+2)}, {v(S)}\nv_permlane16_swap_b32 {v(S)}, {v(S+2)}')
    k('s_waitcnt lgkmcnt(0)')
    ln_scalars(k, S, S + 2)
    sr = k.salloc(2); sm = k.salloc(2); sk = k.salloc(2); swin = k.salloc()
    k(f'''v_fma_f32 {v(S+4)}, {v(S+4)}, {v(S+2)}, {v(vsb)}
    v_readlane_b32 {s(sr)}, {v(S+2)}, 0
    v_ashrrev_i32 {v(vt)}, 31, {v(S+4)}
    v_readlane_b32 {s(sr+1)}, {v(S+2)}, 32
    v_or_b32 {v(vt)}, 0x80000000, {v(vt)}
    v_readlane_b32 {s(sm)}, {v(S)}, 0
    v_xor_b32 {v(vt)}, {v(vt)}, {v(S+4)}
    v_readlane_b32 {s(sm+1)}, {v(S)}, 32
    v_and_or_b32 {v(vt)}, {v(vt)}, {v(vkm)}, {v(vki)}
    s_mov_b32 exec_lo, 1
    s_mov_b32 exec_hi, 1
    ds_max_u32 {v(vt2)}, {v(vt)}
    s_mov_b64 exec, -1
    v_readlane_b32 {s(sk)}, {v(vt)}, 0
    v_readlane_b32 {s(sk+1)}, {v(vt)}, 32''')
    H = AZ; O = AZ + 16
    def hcalc(r, dst):
        for e in range(8):
            k(f'''v_mul_f32 {v(PI+e)}, {s(sr+r)}, {v(CK+16+e)}
            v_fma_f32 {v(PI+8+e)}, -{s(sm+r)}, {v(CK+16+e)}, {v(CK+24+e)}''')
        for e in range(8): k(f'v_fma_f32 {v(dst+e)}, {v(XF+8*r+e)}, {v(PI+e)}, {v(PI+8+e)}')
    Lb = k.label('rb'); Lc = k.label('rc'); Lnw = k.label('nw')
    k(f'v_mov_b32 {v(S+7)}, {v(vtag)}\ns_waitcnt lgkmcnt(0)\ns_barrier\nds_read_b32 {v(S+6)}, {v(vt2)}')
    stamp(2, {0}); k.dstamp(4)
    Lk0 = k.label('k0')
    k(f'''s_cmp_lg_u32 {s(sw)}, 0
    s_cbranch_scc1 {Lk0}
    s_mov_b64 exec, 0xff
    s_waitcnt lgkmcnt(0)
    buffer_store_dwordx2 {v(S+6,2)}, {v(vo)}, {s(rws,4)}, {s(sj)} offen sc1
    s_mov_b64 exec, -1
    {Lk0}:''')
    k(f's_max_u32 {s(st2)}, {s(sk)}, {s(sk+1)}\ns_cmp_gt_u32 {s(sk+1)}, {s(sk)}\ns_cbranch_scc1 {Lb}')
    hcalc(0, H)
    for q in range(4): k(f'v_cvt_pk_bf16_f32 {v(CA+2*q)}, {v(H+2*q)}, {v(H+2*q+1)}')
    k(f's_branch {Lc}\n{Lb}:')
    hcalc(1, H + 8)
    for q in range(4): k(f'v_cvt_pk_bf16_f32 {v(CA+2*q)}, {v(H+8+2*q)}, {v(H+8+2*q+1)}')
    k(f'''{Lc}:
    s_waitcnt lgkmcnt(0)
    v_readfirstlane_b32 {s(swin)}, {v(S+6)}
    s_cmp_lg_u32 {s(swin)}, {s(st2)}
    s_cbranch_scc1 {Lnw}
    buffer_store_dwordx4 {v(CA,4)}, {v(vh0)}, {s(rws,4)}, {s(so)} offen sc1
    buffer_store_dwordx4 {v(CA+4,4)}, {v(vh0)}, {s(rws,4)}, {s(so)} offen offset:1024 sc1
    {Lnw}:''')
    stamp(4, {0})
    Ld_ = k.label('rd'); Le_ = k.label('re')
    k(f's_cmp_gt_u32 {s(sk+1)}, {s(sk)}\ns_cbranch_scc1 {Ld_}')
    hcalc(1, H + 8)
    k(f's_branch {Le_}\n{Ld_}:')
    hcalc(0, H)
    k(f'{Le_}:')
    for e in range(16): k(f'v_fma_f32 {v(O+e)}, {v(CK+32+(e&7))}, {v(H+e)}, {v(XF+e)}')
    for q in range(8): k(f'v_cvt_pk_bf16_f32 {v(H+q)}, {v(O+2*q)}, {v(O+2*q+1)}')
    k(f'''ds_write_b64 {v(vx0)}, {v(H,2)}
    ds_write_b64 {v(vx0)}, {v(H+4,2)} offset:896
    s_mov_b32 exec_lo, 0x0fff0fff
    s_mov_b32 exec_hi, 0x0fff0fff
    ds_write_b64 {v(vx0)}, {v(H+2,2)} offset:512
    ds_write_b64 {v(vx0)}, {v(H+6,2)} offset:{896+512}
    s_bfm_b64 exec, 56, 0
    s_waitcnt lgkmcnt(0)
    ds_read_b128 {v(H,4)}, {v(vx1)}
    ds_read_b128 {v(H+4,4)}, {v(vx1)} offset:896
    s_add_u32 {s(st)}, {s(sxo)}, 57344
    s_waitcnt lgkmcnt(0)
    s_cmp_eq_u32 {s(swin)}, {s(st2)}
    s_cbranch_scc1 {Lend}w''')
    osc = {'plain': '', 'none': None}.get(OPT['OUT'], OPT['OUT'])
    if osc is not None:
        k(f'''buffer_store_dwordx4 {v(H,4)}, {v(vh0)}, {s(r3,4)}, {s(sxo)} offen {osc}
        buffer_store_dwordx4 {v(H+4,4)}, {v(vh0)}, {s(r3,4)}, {s(st)} offen {osc}''')
    k(f'''s_branch {Lend}
    {Lend}w:
    buffer_store_dwordx4 {v(H,4)}, {v(vh0)}, {s(r3,4)}, {s(sxo)} offen sc1
    buffer_store_dwordx4 {v(H+4,4)}, {v(vh0)}, {s(r3,4)}, {s(st)} offen sc1
    s_waitcnt vmcnt(0)
    v_lshlrev_b32 {v(vt)}, 2, {v(vl)}
    s_bfm_b64 exec, 32, 0
    buffer_store_dword {v(vtag)}, {v(vt)}, {s(rws,4)}, {s(so)} offen offset:2048 sc1
    s_branch {Lend}''')
    sg = smir; skey = sones
    def modtouch():
        k.srd(r4, pc + 2, 448 * 5376)
        k(f'''s_sub_u32 {s(st)}, {s(sa)}, 16
        s_sub_u32 {s(st2)}, {s(sa)}, 18
        s_cmp_ge_u32 {s(sa)}, 25
        s_cselect_b32 {s(st2)}, {s(st2)}, {s(st)}
        s_lshl_b32 {s(st)}, {s(st)}, 1
        s_lshl_b32 {s(st2)}, {s(st2)}, 2
        s_cmp_eq_u32 {s(sb)}, 7
        s_cselect_b32 {s(st)}, {s(st2)}, {s(st)}
        s_cselect_b32 {s(sflag)}, 4, 2
        s_cselect_b32 {s(st2)}, 37, 52
        s_cselect_b32 {s(scnt)}, 7, 5
        s_add_u32 {s(st)}, {s(st)}, {s(sw)}
        s_mul_i32 {s(st2)}, {s(st2)}, {s(st)}
        s_lshr_b32 {s(st2)}, {s(st2)}, 8
        s_mul_i32 {s(scnt)}, {s(scnt)}, {s(st2)}
        s_sub_u32 {s(st)}, {s(st)}, {s(scnt)}
        s_lshl_b32 {s(scnt)}, {s(st)}, 3
        s_add_u32 {s(scnt)}, {s(scnt)}, {s(sb)}
        s_add_u32 {s(so)}, {s(st)}, 35
        s_cmp_lt_u32 {s(st)}, 5
        s_cselect_b32 {s(scnt)}, {s(scnt)}, {s(so)}
        s_lshl_b32 {s(scnt)}, {s(scnt)}, 7
        s_sub_u32 {s(st2)}, 6, {s(st2)}
        s_mul_i32 {s(st2)}, {s(st2)}, {64*5376}
        s_add_u32 {s(scnt)}, {s(scnt)}, {s(st2)}
        s_cmp_lt_u32 {s(sw)}, {s(sflag) if OPT['HELP'] else 0}
        s_cselect_b32 {s(r4+2)}, {s(r4+2)}, 0
        v_mul_u32_u24 {v(vt)}, 5376, {v(vl)}''')
        if OPT['MDELAY'] & 8: k(f's_load_dword {s(st)}, {s(pc,2)}, 0\ns_waitcnt lgkmcnt(0)')
        k(f'buffer_load_dword {v(vt2)}, {v(vt)}, {s(r4,4)}, {s(scnt)} offen')
    def keymax(KR):
        k(f'v_max_u32 {v(vt2)}, {v(KR)}, {v(KR+2)}')
        for r in (8, 4, 2, 1): k(f'v_max_u32_dpp {v(vt2)}, {v(vt2)}, {v(vt2)} row_ror:{r} row_mask:0xf bank_mask:0xf')
        k(f'''v_readlane_b32 {s(skey)}, {v(vt2)}, 0
        v_readlane_b32 {s(st)}, {v(vt2)}, 16
        v_readlane_b32 {s(st2)}, {v(vt2)}, 32
        v_readlane_b32 {s(sj)}, {v(vt2)}, 48
        s_max_u32 {s(skey)}, {s(skey)}, {s(st)}
        s_max_u32 {s(st2)}, {s(st2)}, {s(sj)}
        s_max_u32 {s(skey)}, {s(skey)}, {s(st2)}''')
    def key2slot(dst):
        k(f'''s_and_b32 {s(sj)}, {s(skey)}, 2047
        s_sub_u32 {s(sj)}, 2047, {s(sj)}
        s_and_b32 {s(st)}, {s(sj)}, 63
        s_sub_u32 {s(st2)}, 64, {s(st)}
        s_and_b32 {s(st2)}, {s(st2)}, 31
        s_cmp_ge_u32 {s(st)}, 32
        s_cselect_b32 {s(st)}, {s(st2)}, {s(st)}
        s_cselect_b32 {s(st2)}, 16, 0
        s_and_b32 {s(dst)}, {s(st)}, 7
        s_add_u32 {s(dst)}, {s(dst)}, {s(st2)}
        s_lshr_b32 {s(st)}, {s(st)}, 3
        s_lshl_b32 {s(st)}, {s(st)}, 5
        s_add_u32 {s(dst)}, {s(dst)}, {s(st)}
        s_lshr_b32 {s(st)}, {s(sj)}, 10
        s_lshl_b32 {s(st)}, {s(st)}, 3
        s_add_u32 {s(dst)}, {s(dst)}, {s(st)}
        s_mul_i32 {s(dst)}, {s(dst)}, {SLS}
        s_add_u32 {s(dst)}, {s(dst)}, {SLOT}''')
    keyloads = lambda KR: f'''buffer_load_dwordx2 {v(KR,2)}, {v(vt)}, {s(rws,4)}, {s(sflag)} offen sc1
        buffer_load_dwordx2 {v(KR+2,2)}, {v(vt)}, {s(rws,4)}, {s(so)} offen sc1'''
    def keysetup(): k(f"v_mul_u32_u24 {v(vt)}, {KS}, {v(vl)}\ns_mul_i32 {s(sflag)}, {s(sb)}, {KRS}\ns_add_u32 {s(sflag)}, {s(sflag)}, {KEYS}\ns_add_u32 {s(so)}, {s(sflag)}, {64*KS}")
    def partials(ACC, va):
        k(f's_mov_b32 exec_lo, 0x00010001\ns_mov_b32 exec_hi, 0x00010001\nds_write_b128 {v(va)}, {v(ACC,4)}\ns_mov_b64 exec, -1')
    k(f'{Lsp}:\ns_waitcnt lgkmcnt(0)'); modtouch(); k(f's_branch {Lend}')
    k.nv = VBASE
    AFR = k.valloc(28, 4); GR = k.valloc(40, 4); ACC = k.valloc(4, 4); E = k.valloc(8, 4); vp = k.valloc(); va1 = k.valloc(); va2 = k.valloc(2)
    def wtouch():
        if not OPT['TOUCHW']: return
        k(f"""s_sub_u32 {s(st)}, {s(sa)}, 16
        s_lshl_b32 {s(st)}, {s(st)}, 3
        s_add_u32 {s(st)}, {s(st)}, {s(sw)}
        s_cmp_ge_u32 {s(st)}, 28
        s_cselect_b32 {s(r3)}, {s(pw+4)}, {s(pw+2)}
        s_cselect_b32 {s(r3+1)}, {s(pw+5)}, {s(pw+3)}
        s_cselect_b32 {s(st2)}, 28, 0
        s_cmp_ge_u32 {s(st)}, 56
        s_cselect_b32 {s(r3)}, {s(pw+6)}, {s(r3)}
        s_cselect_b32 {s(r3+1)}, {s(pw+7)}, {s(r3+1)}
        s_cselect_b32 {s(st2)}, 56, {s(st2)}
        s_cselect_b64 vcc, -1, 0
        s_cselect_b32 {s(scnt)}, 2, 7
        s_mov_b32 {s(r3+2)}, {448*3584}
        s_mov_b32 {s(r3+3)}, 0x00020000
        s_sub_u32 {s(st)}, {s(st)}, {s(st2)}
        s_mul_i32 {s(st)}, {s(st)}, 57344
        s_mul_i32 {s(scnt)}, {s(scnt)}, {s(sb)}
        s_lshr_b32 {s(scnt)}, {s(scnt)}, 1
        s_lshl_b32 {s(scnt)}, {s(scnt)}, 7
        s_add_u32 {s(st)}, {s(st)}, {s(scnt)}
        v_lshrrev_b32 {v(vt)}, 2, {v(vl)}
        v_mul_u32_u24 {v(vt)}, 3584, {v(vt)}
        v_and_b32 {v(vt3)}, 3, {v(vl)}
        v_lshl_add_u32 {v(vt)}, {v(vt3)}, 7, {v(vt)}
        v_mul_u32_u24 {v(vt3)}, 896, {v(vl)}
        v_cndmask_b32 {v(vt)}, {v(vt)}, {v(vt3)}, vcc
        s_waitcnt vmcnt(0)
        s_barrier
        buffer_load_dword {v(vt2)}, {v(vt)}, {s(r3,4)}, {s(st)} offen""")
    def slowstart(stride):
        if not OPT['SLOW']: return
        L = k.label('ss')
        k(f's_cmp_lg_u32 {s(sw)}, 7\ns_cbranch_scc1 {L}\nv_mul_u32_u24 {v(vt)}, {stride}, {v(vl)}\ns_mov_b32 {s(scnt)}, {s(so)}\ns_waitcnt vmcnt(0)')
        for r in range(OPT['SLOW']):
            k(f'buffer_load_dword {v(vt2)}, {v(vt)}, {s(r3,4)}, {s(scnt)} offen\ns_add_u32 {s(scnt)}, {s(scnt)}, {32*stride}\ns_waitcnt vmcnt(0)')
        k(f'{L}:')
    def wtrig():
        if not OPT['WTRIG']: return
        L = k.label('wt')
        k(f's_waitcnt lgkmcnt(0)'); tagcalc()
        k(f"""s_cmp_lg_u32 {s(sw)}, 0
        s_cbranch_scc1 {L}
        s_mul_i32 {s(sflag)}, {s(sb)}, {FRS}
        s_add_u32 {s(sflag)}, {s(sflag)}, {FLAG1 + (128 if OPT['WTRIG'] == 1 else 0)*FS}
        v_mul_u32_u24 {v(vt)}, {FS}, {v(vl)}""")
        if OPT['WTRIG'] == 3:
            k(f's_add_u32 {s(so)}, {s(sflag)}, {64*FS}')
            poll(f'buffer_load_dword {v(E)}, {v(vt)}, {s(rws,4)}, {s(sflag)} offen sc1\nbuffer_load_dword {v(E+1)}, {v(vt)}, {s(rws,4)}, {s(so)} offen sc1', [E, E+1], name='pw')
        else: poll(f'buffer_load_dword {v(E)}, {v(vt)}, {s(rws,4)}, {s(sflag)} offen sc1', [E], 42 if OPT['WTRIG'] == 1 else 64, name='pw')
        k.stamp(2)
        k(f'{L}:')
    SCR = 57344; RED = SCR + 4096
    k(f'{LG}:\ns_waitcnt lgkmcnt(0)')
    if OPT['MDELAY'] & 2: nonce(); k('s_waitcnt lgkmcnt(0)'); modtouch()
    else: modtouch(); nonce()
    k.srd(rws, pws, WSB); wtouch(); wtrig()
    k(f'''s_mul_i32 {s(sg)}, {s(sb)}, 7
    s_add_u32 {s(sg)}, {s(sg)}, {s(sa)}
    s_sub_u32 {s(sg)}, {s(sg)}, 16
    s_lshl_b32 {s(st)}, {s(sg)}, 2
    s_xor_b32 {s(sj)}, {s(sw)}, {s(st)}
    s_and_b32 {s(sj)}, {s(sj)}, 7
    s_bitcmp1_b32 {s(sj)}, 2
    s_cselect_b32 {s(r3)}, {s(pw+4)}, {s(pw+2)}
    s_cselect_b32 {s(r3+1)}, {s(pw+5)}, {s(pw+3)}
    s_mov_b32 {s(r3+2)}, {448*3584}
    s_mov_b32 {s(r3+3)}, 0x00020000
    v_lshrrev_b32 {v(vt)}, 2, {v(vl)}
    v_mul_u32_u24 {v(vo)}, 3584, {v(vt)}
    v_and_b32 {v(vt)}, 3, {v(vl)}
    v_lshl_add_u32 {v(vo)}, {v(vt)}, 4, {v(vo)}
    s_and_b32 {s(st)}, {s(sw)}, 3
    s_mul_i32 {s(so)}, {s(st)}, {112*3584}
    s_lshl_b32 {s(st2)}, {s(sg)}, 6
    s_add_u32 {s(so)}, {s(so)}, {s(st2)}
    s_mul_i32 {s(st)}, {s(sj)}, 7168''')
    slowstart(3584)
    k('s_waitcnt vmcnt(0) lgkmcnt(0)\ns_barrier')
    for i in range(7):
        k(f's_mov_b32 m0, {s(st)}\ns_add_u32 {s(st)}, {s(st)}, 1024')
        k(f'buffer_load_dwordx4 {v(vo)}, {s(r3,4)}, {s(so)} offen lds\ns_add_u32 {s(so)}, {s(so)}, {16*3584}')
    if not OPT['WTRIG']: tagcalc()
    sact = k.salloc(); sact2 = k.salloc()
    k(f'''v_lshlrev_b32 {v(vt)}, 9, {v(vg)}
    v_bfe_u32 {v(vt2)}, {v(vl)}, 2, 2
    v_lshl_add_u32 {v(vt)}, {v(vt2)}, 6, {v(vt)}
    v_and_b32 {v(vt2)}, 3, {v(vl)}
    v_lshl_add_u32 {v(vt)}, {v(vt2)}, 3, {v(vt)}
    s_and_b32 {s(st)}, {s(sw)}, 1
    s_mul_i32 {s(st)}, {s(st)}, 28672
    s_bfe_u32 {s(st2)}, {s(sw)}, 0x10001
    s_lshl_b32 {s(st2)}, {s(st2)}, 5
    s_add_u32 {s(st)}, {s(st)}, {s(st2)}
    s_lshr_b32 {s(st2)}, {s(sw)}, 2
    s_mul_i32 {s(scnt)}, {s(st2)}, 448
    s_mul_i32 {s(st2)}, {s(st2)}, {224*64}
    s_add_u32 {s(st)}, {s(st)}, {s(st2)}
    v_add_u32 {v(vt)}, {s(st)}, {v(vt)}
    s_add_u32 {s(scnt)}, {s(scnt)}, {SCR}
    v_lshl_add_u32 {v(E+6)}, {v(vg)}, 4, {s(scnt)}
    v_bfe_u32 {v(E+7)}, {v(vl)}, 4, 1
    v_lshlrev_b32 {v(E+7)}, 7, {v(E+7)}
    v_lshl_add_u32 {v(E+7)}, {v(vn)}, 2, {v(E+7)}
    s_lshl_b32 {s(st)}, {s(sw)}, 6
    s_add_u32 {s(st)}, {s(st)}, {RED}
    v_lshl_add_u32 {v(vp)}, {v(vg)}, 4, {s(st)}
    v_mul_u32_u24 {v(va1)}, {ARS}, {v(vg)}
    v_lshl_add_u32 {v(va1)}, {v(vn)}, 3, {v(va1)}
    v_lshlrev_b32 {v(va2)}, 3, {v(vn)}
    s_lshl_b32 {s(sact)}, {s(sg)}, 7
    s_add_u32 {s(sact)}, {s(sact)}, {ACT}
    s_add_u32 {s(sact2)}, {s(sact)}, {4*ARS}
    v_mov_b32 {v(E+5)}, {v(vtag)}
    v_mov_b32 {v(E)}, 0
    v_mov_b32 {v(E+1)}, 0
    v_mov_b32 {v(E+2)}, {RED+1024}
    ds_write_b64 {v(E+2)}, {v(E,2)}
    s_waitcnt vmcnt(0) lgkmcnt(0)
    s_barrier''')
    for i in range(7):
        for hh in range(2): k(f'ds_read_b64_tr_b16 {v(AFR+4*i+2*hh,2)}, {v(vt)} offset:{2048*i+256*hh}')
    Lg1 = k.label('g1'); Lgp = k.label('gp'); Lw1 = k.label('w1'); Lr = k.label('r'); Lrs = k.label('rs')
    sprev = k.salloc()
    CTL = RED + 1024
    NPW = OPT['NPW']; KPW = 128 // NPW
    k(f'''v_mov_b32 {v(va2+1)}, {CTL}
    s_cmp_eq_u32 {s(sw)}, 7
    s_cbranch_scc1 {Lw1}
    s_cmp_ge_u32 {s(sw)}, {NPW}
    s_cbranch_scc1 {Lg1}''')
    k.stamp(5); k.dstamp(1)
    k(f'''v_mul_u32_u24 {v(vt)}, {KS}, {v(vl)}
    s_mul_i32 {s(sflag)}, {s(sb)}, {KRS}
    s_mul_i32 {s(st)}, {s(sw)}, {KPW*KS}
    s_add_u32 {s(sflag)}, {s(sflag)}, {s(st)}
    s_add_u32 {s(sflag)}, {s(sflag)}, {KEYS}
    s_bfm_b64 {s(sr,2)}, {KPW}, 0
    s_mov_b32 {s(scnt)}, 0
    v_mov_b32 {v(GR+2)}, 1
    {Lgp}:
    s_mov_b64 exec, {s(sr,2)}
    buffer_load_dwordx2 {v(GR,2)}, {v(vt)}, {s(rws,4)}, {s(sflag)} offen sc1
    s_add_u32 {s(scnt)}, {s(scnt)}, 1
    s_waitcnt vmcnt(0)
    v_cmp_eq_u32 vcc, {s(stag)}, {v(GR+1)}
    s_andn2_b64 {s(sr,2)}, {s(sr,2)}, vcc
    s_mov_b64 exec, vcc
    ds_max_u32 {v(va2+1)}, {v(GR)}
    s_cmp_ge_u32 {s(scnt)}, 0x200000
    s_cselect_b64 {s(sr,2)}, 0, {s(sr,2)}
    s_cmp_lg_u64 {s(sr,2)}, 0
    s_cbranch_scc1 {Lgp}
    s_mov_b64 exec, 1
    ds_add_u32 {v(va2+1)}, {v(GR+2)} offset:4
    s_mov_b64 exec, -1''')
    k.stamp(3); k.dstamp(2)
    k(f'''s_branch {Lg1}
    {Lw1}:
    v_lshlrev_b32 {v(vo)}, 4, {v(vl)}
    v_lshlrev_b32 {v(E+1)}, 5, {v(vn)}
    v_lshl_add_u32 {v(E+1)}, {v(vg)}, 3, {v(E+1)}
    v_add_u32 {v(E+1)}, {SCR}, {v(E+1)}
    s_mov_b32 {s(sprev)}, 0
    s_mov_b32 {s(scnt)}, 0
    {Lr}:
    ds_read_b64 {v(GR,2)}, {v(va2+1)}
    s_add_u32 {s(scnt)}, {s(scnt)}, 1
    s_cmp_ge_u32 {s(scnt)}, 0x2000000
    s_cbranch_scc1 {Lg1}
    s_waitcnt lgkmcnt(0)
    v_readfirstlane_b32 {s(skey)}, {v(GR)}
    v_readfirstlane_b32 {s(st)}, {v(GR+1)}
    s_cmp_lg_u32 {s(skey)}, {s(sprev)}
    s_cbranch_scc1 {Lrs}
    s_cmp_lg_u32 {s(st)}, {NPW}
    s_cbranch_scc1 {Lr}
    s_branch {Lg1}
    {Lrs}:''')
    key2slot(ss2)
    k(f'''buffer_load_dwordx4 {v(GR+4,4)}, {v(vo)}, {s(rws,4)}, {s(ss2)} offen sc1
    buffer_load_dwordx4 {v(GR+8,4)}, {v(vo)}, {s(rws,4)}, {s(ss2)} offen offset:1024 sc1''')
    k.stamp(2)
    k('s_waitcnt vmcnt(0)')
    k.stamp(3)
    check([GR+5, GR+7, GR+9, GR+11])
    k(f'''s_cbranch_vccnz {Lr}
    s_mov_b32 {s(sprev)}, {s(skey)}
    v_mov_b32 {v(GR+5)}, {v(GR+6)}
    v_mov_b32 {v(GR+9)}, {v(GR+10)}
    ds_write_b64 {v(E+1)}, {v(GR+4,2)}
    ds_write_b64 {v(E+1)}, {v(GR+8,2)} offset:512
    s_branch {Lr}
    {Lg1}:
    s_waitcnt lgkmcnt(0)
    s_barrier''')
    k.stamp(6); k.dstamp(3)
    for i in range(7): k(f'ds_read_b128 {v(GR+12+4*i,4)}, {v(E+6)} offset:{64*i}')
    for i in range(7):
        k(f's_waitcnt lgkmcnt({6-i})')
        k(f'v_mfma_f32_16x16x32_bf16 {v(ACC,4)}, {v(AFR+4*i,4)}, {v(GR+12+4*i,4)}, {"0" if i == 0 else v(ACC,4)}')
    partials(ACC, vp)
    k(f'''s_waitcnt lgkmcnt(0)
    s_barrier
    s_cmp_lg_u32 {s(sw)}, 0
    s_cbranch_scc1 {Lend}
    ds_read_b32 {v(E)}, {v(E+7)} offset:{RED}
    ds_read_b32 {v(E+1)}, {v(E+7)} offset:{RED+256}
    ds_read_b32 {v(E+2)}, {v(E+7)} offset:{RED+64}
    ds_read_b32 {v(E+3)}, {v(E+7)} offset:{RED+64+256}
    s_waitcnt lgkmcnt(2)
    v_add_f32 {v(E)}, {v(E)}, {v(E+1)}''')
    rb1(k, E, E)
    k(f'''v_mul_f32 {v(E+1)}, 0xbfb8aa3b, {v(E)}
    v_exp_f32 {v(E+1)}, {v(E+1)}
    s_waitcnt lgkmcnt(0)
    v_add_f32 {v(E+2)}, {v(E+2)}, {v(E+3)}
    v_add_f32 {v(E+1)}, 1.0, {v(E+1)}
    v_rcp_f32 {v(E+1)}, {v(E+1)}''')
    rb1(k, E + 2, E + 2)
    k(f'v_mul_f32 {v(E)}, {v(E)}, {v(E+1)}')
    rb1(k, E, E)
    k(f'''v_mul_f32 {v(E)}, {v(E)}, {v(E+2)}
    v_mov_b32_dpp {v(E+1)}, {v(E)} quad_perm:[1,0,3,2] row_mask:0xf bank_mask:0xf
    v_cvt_pk_bf16_f32 {v(E+4)}, {v(E)}, {v(E+1)}
    ds_bpermute_b32 {v(E+4)}, {v(va2)}, {v(E+4)}
    s_waitcnt lgkmcnt(0)
    buffer_store_dwordx2 {v(E+4,2)}, {v(va1)}, {s(rws,4)}, {s(sact)} offen sc1
    buffer_store_dwordx2 {v(E+4,2)}, {v(va1)}, {s(rws,4)}, {s(sact2)} offen sc1''')
    k.stamp(7); k.dstamp(4)
    k(f's_branch {Lend}')
    sro = sprev
    k(f'{LD}:\ns_waitcnt lgkmcnt(0)')
    if OPT['MDELAY'] & 2: nonce(); k('s_waitcnt lgkmcnt(0)'); modtouch()
    else: modtouch(); nonce()
    k.srd(rws, pws, WSB); wtouch(); wtrig()
    k(f's_lshl_b32 {s(sg)}, {s(sb)}, 2\ns_add_u32 {s(sg)}, {s(sg)}, {s(sa)}\ns_sub_u32 {s(sg)}, {s(sg)}, 23')
    k.srd(r3, pw + 6, 1792 * 896); k.srd(r4, pout, 1835008)
    k(f'''v_lshrrev_b32 {v(vt)}, 1, {v(vl)}
    v_mul_u32_u24 {v(vo)}, 896, {v(vt)}
    v_and_b32 {v(vt)}, 1, {v(vl)}
    v_lshl_add_u32 {v(vo)}, {v(vt)}, 4, {v(vo)}
    s_lshl_b32 {s(st)}, {s(sg)}, 1
    s_add_u32 {s(ss2)}, {s(sw)}, {s(st)}
    s_and_b32 {s(ss2)}, {s(ss2)}, 7
    s_mul_i32 {s(so)}, {s(ss2)}, {224*896}
    s_lshl_b32 {s(st2)}, {s(sg)}, 5
    s_add_u32 {s(so)}, {s(so)}, {s(st2)}
    s_mul_i32 {s(st)}, {s(sw)}, 7168
    v_lshlrev_b32 {v(E+4)}, 1, {v(vn)}
    s_mov_b32 {s(sro)}, {HUGE}''')
    slowstart(896)
    k('s_waitcnt vmcnt(0) lgkmcnt(0)\ns_barrier')
    for i in range(7):
        k(f's_mov_b32 m0, {s(st)}\ns_add_u32 {s(st)}, {s(st)}, 1024')
        k(f'buffer_load_dwordx4 {v(vo)}, {s(r3,4)}, {s(so)} offen lds\ns_add_u32 {s(so)}, {s(so)}, {32*896}')
    if not OPT['WTRIG']: tagcalc()
    Ldr = k.label('dr')
    k(f'''s_cmp_lg_u32 {s(sw)}, 1
    s_cbranch_scc1 {Ldr}
    s_lshl_b32 {s(st)}, {s(sg)}, 5
    s_add_u32 {s(st)}, {s(st)}, {DRDY}
    v_mov_b32 {v(vt)}, 0
    s_mov_b64 exec, 1
    buffer_store_dword {v(vtag)}, {v(vt)}, {s(rws,4)}, {s(st)} offen sc1
    s_mov_b64 exec, -1
    {Ldr}:''')
    k(f'''v_lshlrev_b32 {v(vt)}, 8, {v(vg)}
    v_lshl_add_u32 {v(vt)}, {v(vn)}, 3, {v(vt)}
    s_mul_i32 {s(st)}, {s(sw)}, 7168
    v_add_u32 {v(vt)}, {s(st)}, {v(vt)}
    s_mul_i32 {s(sact)}, {s(ss2)}, 896
    s_add_u32 {s(sact)}, {s(sact)}, {ACT}
    s_mul_i32 {s(st)}, {s(sb)}, {ARS}
    s_add_u32 {s(sact)}, {s(sact)}, {s(st)}
    s_lshl_b32 {s(st)}, {s(sw)}, 6
    s_add_u32 {s(st)}, {s(st)}, {RED}
    v_lshl_add_u32 {v(vp)}, {v(vg)}, 4, {s(st)}
    v_lshlrev_b32 {v(va2)}, 2, {v(vn)}
    s_waitcnt vmcnt(0)''')
    for i in range(7):
        for hh in range(2): k(f'ds_read_b64_tr_b16 {v(AFR+4*i+2*hh,2)}, {v(vt)} offset:{1024*i+128*hh}')
    Ld1 = k.label('d1')
    k(f's_cmp_lg_u32 {s(sw)}, 0\ns_cbranch_scc1 {Ld1}')
    k.stamp(5); k.dstamp(1)
    Ld0 = k.label('d0')
    k(f's_cmp_lg_u32 {s(sg)}, 0\ns_cbranch_scc1 {Ld0}\nv_lshlrev_b32 {v(vt)}, 5, {v(vl)}\ns_mov_b32 {s(sflag)}, {DRDY}')
    poll(f'buffer_load_dword {v(GR)}, {v(vt)}, {s(rws,4)}, {s(sflag)} offen sc1', [GR], 28, name='pr')
    k(f'{Ld0}:')
    keysetup()
    poll(keyloads(GR), [GR+1, GR+3], name='pk')
    keymax(GR); key2slot(ss2)
    k(f'''s_lshl_b32 {s(st)}, {s(sg)}, 6
    s_add_u32 {s(so)}, {s(st)}, {MODV+5*1792}
    v_mov_b32 {v(E+7)}, 0
    buffer_load_dword {v(E+6)}, {v(va2)}, {s(rws,4)}, {s(so)} offen sc1
    s_and_b32 {s(st)}, {s(skey)}, 0xfffff800
    s_or_b32 {s(st)}, {s(st)}, 0x400
    s_ashr_i32 {s(st2)}, {s(st)}, 31
    s_not_b32 {s(st2)}, {s(st2)}
    s_or_b32 {s(st2)}, {s(st2)}, 0x80000000
    s_xor_b32 {s(st)}, {s(st)}, {s(st2)}
    v_mov_b32 {v(E+2)}, {s(st)}''')
    rb1(k, E + 2, E + 2)
    k(f'''v_mul_f32 {v(E+2)}, 0xbfb8aa3b, {v(E+2)}
    v_exp_f32 {v(E+2)}, {v(E+2)}
    v_add_f32 {v(E+2)}, 1.0, {v(E+2)}
    v_rcp_f32 {v(E+2)}, {v(E+2)}''')
    rb1(k, E + 2, E + 2)
    k(f's_add_u32 {s(sflag)}, {s(ss2)}, 2048')
    poll(f'buffer_load_dword {v(E+3)}, {v(E+7)}, {s(rws,4)}, {s(sflag)} offen sc1', [E+3], name='pf')
    k(f'''s_mul_i32 {s(sro)}, {s(sj)}, 896
    s_lshl_b32 {s(st)}, {s(sg)}, 5
    s_add_u32 {s(sro)}, {s(sro)}, {s(st)}
    buffer_load_ushort {v(E)}, {v(E+4)}, {s(r4,4)}, {s(sro)} offen sc1
    {Ld1}:''')
    k.stamp(6); k.dstamp(2)
    k(f'v_lshlrev_b32 {v(vt)}, 4, {v(vl)}\ns_lshl_b32 {s(st)}, {s(sw)}, 9\ns_add_u32 {s(st)}, {s(st)}, {SCR}\nv_lshl_add_u32 {v(vo)}, {v(vl)}, 3, {s(st)}\nv_lshl_add_u32 {v(GR+6)}, {v(vg)}, 4, {s(st)}')
    poll(f'buffer_load_dwordx4 {v(GR,4)}, {v(vt)}, {s(rws,4)}, {s(sact)} offen sc1', [GR+1, GR+3], 56, name='pg')
    k.stamp(7); k.dstamp(3)
    k(f'v_mov_b32 {v(GR+1)}, {v(GR+2)}\nds_write_b64 {v(vo)}, {v(GR,2)}\ns_waitcnt lgkmcnt(0)')
    for i in range(7): k(f'ds_read_b128 {v(GR+8+4*i,4)}, {v(GR+6)} offset:{64*i}')
    for i in range(7):
        k(f's_waitcnt lgkmcnt({6-i})')
        k(f'v_mfma_f32_16x16x32_bf16 {v(ACC,4)}, {v(AFR+4*i,4)}, {v(GR+8+4*i,4)}, {"0" if i == 0 else v(ACC,4)}')
    partials(ACC, vp)
    k(f'''s_waitcnt lgkmcnt(0)
    s_barrier
    s_cmp_lg_u32 {s(sw)}, 0
    s_cbranch_scc1 {Lend}''')
    for i in range(8): k(f'ds_read_b32 {v(GR+i)}, {v(va2)} offset:{RED+64*i}')
    k(f'v_lshlrev_b32 {v(E)}, 16, {v(E)}')
    for i in (1, 3, 5, 7): k(f's_waitcnt lgkmcnt({7-i})\nv_add_f32 {v(GR+i-1)}, {v(GR+i-1)}, {v(GR+i)}')
    k(f'v_add_f32 {v(GR)}, {v(GR)}, {v(GR+2)}\nv_add_f32 {v(GR+4)}, {v(GR+4)}, {v(GR+6)}\nv_add_f32 {v(GR)}, {v(GR)}, {v(GR+4)}')
    rb1(k, GR, GR); k(f'v_mul_f32 {v(GR)}, {v(GR)}, {v(E+2)}'); rb1(k, GR, GR)
    k(f'''v_fma_f32 {v(GR)}, {v(GR)}, {v(E+6)}, {v(E)}
    v_cvt_pk_bf16_f32 {v(GR)}, {v(GR)}, {v(GR)}
    s_bfm_b64 exec, 16, 0
    buffer_store_short {v(GR)}, {v(E+4)}, {s(r4,4)}, {s(sro)} offen sc1
    s_cmp_lg_u32 {s(sg)}, 0
    s_cbranch_scc1 {Lend}
    s_mov_b64 exec, 1
    v_mov_b32 {v(vt)}, {NONCE}
    buffer_store_dword {v(vtag)}, {v(vt)}, {s(rws,4)}, 0 offen sc1''')
    k(f'{Lend}:'); k.dump(); k.ddump(82, sw, 184); k('s_endpgm')
    return k
if __name__ == '__main__':
    K.diag = '--diag' in sys.argv; K.dbg = '--dbg' in sys.argv
    for a in sys.argv[2:]:
        if '=' in a:
            kk, vv = a.split('='); assert kk in OPT; OPT[kk] = int(vv) if vv.lstrip('-').isdigit() else vv
    k = gen()
    k.lines, n = hazard.fix(k.lines); print(k.name, 'vgpr', k.vmax, 'sgpr', k.ns, 'nops', n, 'lines', len(k.lines), 'lds', LDS)
    open(sys.argv[1], 'w').write(emit([k], [(NAME, 256, 512, LDS)]))
```

```python
import sys, struct
from asmlib import *
import hazard
NAME = 'adaLN_cond__spectral_fnet__moe_arch_mod__prompt_kernel'
MODV = 0x1C0000; NONCE = 0x1C8000; DRDY = 0x1C9000; FLAG1 = 0x280000; FRS = 0x6000; KEYS = 0x2B0000; KRS = 0x4000; ACT = 0x1F0000; ARS = 0x2000; SLOT = 0x200000; SLS = 4096
WSB = 0x300000
HUGE = 0x3ff00000
OPT = dict(ST=0, FS=32, KS=32, SLEEP=1, HELP=1, EARLY=4, LATE=4, WTRIG=0, MDELAY=7, PD=1, TOUCHW=0, PREP=0, FW=0, DAFIRST=1, SLOW=0, NPW=4, OUT='sc1', MFIRST=0, PRIO=1, A2=0, CPF=1, PSL=1, HPRE=0, GSL=0, MIM=0, OD=0, IL=1, PP=0, AB=1, PADE=1, WNT='nt', XNT='', MNT='nt', TNT='nt', RNT='', ZNT='')
ZS = 928
UB = 64 * ZS; CB_ = UB + 32768; CAB = CB_ + 5 * 2048; MISC = CAB + 3584; XB = MISC + 64
LDS = XB + 16 * 896 + 128
XS = 288
def fl(x): return '0x%08x' % struct.unpack('<I', struct.pack('<f', x))[0]
def rb1(k, dst, src): k(f'v_cvt_pk_bf16_f32 {v(dst)}, {v(src)}, {v(src)}\nv_and_b32 {v(dst)}, 0xffff0000, {v(dst)}')
def ln_scalars(k, vm, vr, mimic=False):
    if mimic:
        k(f'''v_mul_f32 {v(vm)}, {fl(1/448)}, {v(vm)}
        v_mul_f32 {v(vr)}, {fl(1/448)}, {v(vr)}
        v_fma_f32 {v(vr)}, -{v(vm)}, {v(vm)}, {v(vr)}
        v_max_f32 {v(vr)}, 0, {v(vr)}''')
        rb1(k, vr, vr); k(f'v_add_f32 {v(vr)}, 0x3727c5ac, {v(vr)}'); rb1(k, vr, vr)
        k(f'v_sqrt_f32 {v(vr)}, {v(vr)}'); rb1(k, vm, vm); rb1(k, vr, vr); k(f'v_rcp_f32 {v(vr)}, {v(vr)}')
        k(f'v_mul_f32 {v(vm)}, {v(vm)}, {v(vr)}')
        return
    k(f'''v_mul_f32 {v(vm)}, {fl(1/448)}, {v(vm)}
    v_mul_f32 {v(vr)}, {fl(1/448)}, {v(vr)}
    v_fma_f32 {v(vr)}, -{v(vm)}, {v(vm)}, {v(vr)}
    v_max_f32 {v(vr)}, 0, {v(vr)}
    v_add_f32 {v(vr)}, 0x3727c5ac, {v(vr)}
    v_rsq_f32 {v(vr)}, {v(vr)}
    v_mul_f32 {v(vm)}, {v(vm)}, {v(vr)}''')

def gen():
    FS = OPT['FS']; KS = OPT['KS']; SLEEP = OPT['SLEEP']
    k = K(NAME); k.ns = 3; k.nv = 1
    def stamp(i, mode):
        if OPT['ST'] in mode: k.stamp(i)
    Lend = k.label('end'); Lmod = k.label('mod'); LG = k.label('G'); LD = k.label('D'); Lsp = k.label('sp')
    k.stamp(0, True); k.stamp(1)
    if K.dbg:
        k.dstamp(0)
        for i in range(1, 5): k(f's_mov_b32 s{84+2*i}, 0')
        k('s_lshr_b32 s83, s2, 3\ns_cmp_lt_u32 s83, 27\ns_cselect_b32 s82, 10, 14\ns_cmp_lt_u32 s83, 23\ns_cselect_b32 s82, 6, s82\ns_cmp_lt_u32 s83, 16\ns_cselect_b32 s82, 2, s82')
    px = k.salloc(2); pws = k.salloc(2); pw = k.salloc(8); pc = k.salloc(4); pout = k.salloc(2)
    stag = k.salloc(); sw = k.salloc(); sa = k.salloc(); sb = k.salloc(); st = k.salloc(); st2 = k.salloc(); so = k.salloc(); scnt = k.salloc()
    sj = k.salloc(); ss2 = k.salloc(); sones = k.salloc(); sflag = k.salloc()
    rx = k.salloc(4); rws = k.salloc(4); r3 = k.salloc(4); r4 = k.salloc(4)
    vl = k.valloc(); vg = k.valloc(); vn = k.valloc(); vt = k.valloc(); vt2 = k.valloc(); vo = k.valloc(); vtag = k.valloc(); vt3 = k.valloc()
    VBASE = k.nv
    k(f'''s_load_dwordx2 {s(px,2)}, s[0:1], 0
    s_load_dwordx4 {s(pc,4)}, s[0:1], 80
    s_load_dwordx2 {s(pws,2)}, s[0:1], 112
    s_load_dwordx8 {s(pw,8)}, s[0:1], 48
    s_load_dwordx2 {s(pout,2)}, s[0:1], 96
    v_lshrrev_b32 {v(vt)}, 6, v0
    v_and_b32 {v(vl)}, 63, v0
    v_readfirstlane_b32 {s(sw)}, {v(vt)}
    v_lshrrev_b32 {v(vg)}, 4, {v(vl)}
    v_and_b32 {v(vn)}, 15, {v(vl)}
    s_lshr_b32 {s(sa)}, s2, 3
    s_and_b32 {s(sb)}, s2, 7
    s_cmp_ge_u32 {s(sa)}, 16
    s_cbranch_scc1 {k.name}_DISP''')
    def check(check_regs):
        r0 = check_regs[0]
        if len(check_regs) == 1: k(f'v_cmp_ne_u32 vcc, {s(stag)}, {v(r0)}')
        else:
            k(f'v_xor_b32 {v(vt3)}, {s(stag)}, {v(r0)}')
            for r in check_regs[1:]: k(f'v_xor_b32 {v(vt2)}, {s(stag)}, {v(r)}\nv_or_b32 {v(vt3)}, {v(vt3)}, {v(vt2)}')
            k(f'v_cmp_ne_u32 vcc, 0, {v(vt3)}')
    def poll(load, check_regs, nlanes=64, name='poll', wait='vmcnt(0)'):
        Lp = k.label(name); Ld = k.label(name + 'd')
        k(f's_mov_b32 {s(scnt)}, 0')
        if nlanes < 64: k(f's_bfm_b64 exec, {nlanes}, 0')
        k(f'{Lp}:'); k(load); k(f's_add_u32 {s(scnt)}, {s(scnt)}, 1\ns_waitcnt {wait}')
        check(check_regs)
        k(f's_cbranch_vccz {Ld}')
        if SLEEP: k(f's_sleep {SLEEP}')
        k(f's_cmp_lt_u32 {s(scnt)}, 0x200000\ns_cbranch_scc1 {Lp}\n{Ld}:')
        if nlanes < 64: k('s_mov_b64 exec, -1')
    def ppoll(loadf, nld, regsf, depth, nlanes=64, name='pp'):
        if depth == 1: return poll(loadf(0), regsf(0), nlanes, name)
        Lp = k.label(name); Ld = k.label(name + 'd')
        k(f's_mov_b32 {s(scnt)}, 0')
        if nlanes < 64: k(f's_bfm_b64 exec, {nlanes}, 0')
        for i in range(depth - 1): k(loadf(i)); k('s_sleep 1')
        k(f'{Lp}:')
        for i in range(depth):
            k(loadf((i + depth - 1) % depth)); k(f's_waitcnt vmcnt({nld*(depth-1)})'); check(regsf(i)); k(f's_cbranch_vccz {Ld}\ns_sleep 1')
        k(f's_add_u32 {s(scnt)}, {s(scnt)}, 1\ns_cmp_lt_u32 {s(scnt)}, 0x100000\ns_cbranch_scc1 {Lp}\n{Ld}:')
        if nlanes < 64: k('s_mov_b64 exec, -1')
    assert st2 == st + 1 and st % 2 == 0
    def nonce(): k(f's_add_u32 {s(st)}, {s(pws)}, {NONCE}\ns_addc_u32 {s(st2)}, {s(pws+1)}, 0\ns_load_dword {s(stag)}, {s(st,2)}, 0')
    def tagcalc(): k(f's_mul_i32 {s(stag)}, {s(stag)}, 0x9E3779B1\ns_add_u32 {s(stag)}, {s(stag)}, 0x7F4A7C15\nv_mov_b32 {v(vtag)}, {s(stag)}')
    def flagprep(vf): k(f's_mul_i32 {s(sflag)}, {s(sflag)}, {FS}\ns_add_u32 {s(sflag)}, {s(sflag)}, {FLAG1}\nv_mul_u32_u24 {v(vf)}, {FRS}, {v(vl)}')
    def sendflag(vf): k(f's_mov_b64 exec, 0xff\nbuffer_store_dword {v(vtag)}, {v(vf)}, {s(rws,4)}, {s(sflag)} offen sc1\ns_mov_b64 exec, -1')
    k.nv = VBASE
    F0 = k.valloc(16, 4); FB = k.valloc(16, 4); AD = k.valloc(24, 4); XF = k.valloc(16, 4)
    vstep = k.valloc(); vbase = k.valloc(); aU = k.valloc(4); aV = k.valloc(2); aT = k.valloc(); vx0 = k.valloc(); vx1 = k.valloc(); aC = k.valloc(); aK = k.valloc()
    vh0 = k.valloc(); vh1 = k.valloc(); vki = k.valloc(); vkm = k.valloc(); vsb = k.valloc(); vf = k.valloc()
    AZ = k.valloc(32, 4); PR = k.valloc(16, 4); PI = k.valloc(16, 4); CA = k.valloc(16, 4); CK = k.valloc(40, 4); BP = k.valloc(16, 4)
    XR = BP
    Fre0 = F0; Fim0 = F0 + 4; Fre1 = F0 + 8; Fim1 = F0 + 12
    X = AZ; T = PR; BF = CA; a1 = CA + 8; a2 = CA + 10; vs1 = CA + 12; aW = CA + 13; aR = CA + 14; aZ = CA + 15; aT1 = CK; aT2 = CK + 1; TG = PI
    soff = k.salloc(7); sslot = k.salloc(); st0 = k.salloc(); smir = k.salloc(); sxl = k.salloc(); sxo = k.salloc(); sz1 = k.salloc(); sz2 = k.salloc(); skx = k.salloc()
    k(f'''{k.name}_S1:
    s_lshr_b32 {s(ss2)}, {s(sa)}, 2
    s_lshl_b32 {s(st)}, {s(sb)}, 2
    s_add_u32 {s(ss2)}, {s(ss2)}, {s(st)}
    s_and_b32 {s(sj)}, {s(sa)}, 3
    s_lshl_b32 {s(sj)}, {s(sj)}, 1
    s_mul_i32 {s(so)}, {s(ss2)}, 896
    s_lshl_b32 {s(st)}, {s(sj)}, 7
    s_add_u32 {s(soff)}, {s(so)}, {s(st)}
    s_add_u32 {s(st2)}, {s(so)}, 896''')
    for i in range(1, 7):
        k(f's_add_u32 {s(soff+i)}, {s(soff+i-1)}, 128\ns_cmp_ge_u32 {s(soff+i)}, {s(st2)}\ns_cselect_b32 {s(soff+i)}, {s(so)}, {s(soff+i)}')
    k(f'''s_add_u32 {s(st)}, {s(sw)}, {s(sj)}
    s_and_b32 {s(st)}, {s(st)}, 7
    s_lshl_b32 {s(st)}, {s(st)}, 3
    v_lshrrev_b32 {v(vs1)}, 3, {v(vl)}
    v_add_u32 {v(vs1)}, {s(st)}, {v(vs1)}
    v_mul_u32_u24 {v(vt)}, 28672, {v(vs1)}
    v_and_b32 {v(vt2)}, 7, v0
    v_lshl_add_u32 {v(vo)}, {v(vt2)}, 4, {v(vt)}
    s_waitcnt lgkmcnt(0)''')
    k.srd(rx, px, 1835008)
    def xloads():
        for i in range(7): k(f'buffer_load_dwordx4 {v(X+4*i,4)}, {v(vo)}, {s(rx,4)}, {s(soff+i)} offen {OPT["XNT"]}')
    Lx1 = k.label('x1'); Lx2 = k.label('x2')
    k(f"s_cmp_ge_u32 {s(sw)}, {OPT['LATE']}\ns_cbranch_scc1 {Lx1}"); xloads()
    k(f's_branch {Lx1}\n{k.name}_DISP:')
    if OPT['CPF']:
        Lc = k.label('cpf')
        k(f'''s_cmp_lg_u32 {s(sa)}, 16
        s_cbranch_scc1 {Lc}
        s_sub_u32 {s(st)}, {s(sw)}, 4
        s_cmp_ge_u32 {s(st)}, 2
        s_cbranch_scc1 {Lc}
        s_getpc_b64 {s(rws,2)}
        {Lc}a:
        s_sub_u32 {s(rws)}, {s(rws)}, {Lc}a-{k.name}
        s_subb_u32 {s(rws+1)}, {s(rws+1)}, 0
        s_lshl_b32 {s(st)}, {s(st)}, 13
        v_lshlrev_b32 {v(vt)}, 7, {v(vl)}
        v_add_u32 {v(vt)}, {s(st)}, {v(vt)}
        v_min_u32 {v(vt)}, {Lend}-{k.name}, {v(vt)}
        global_load_dword {v(vt2)}, {v(vt)}, {s(rws,2)}
        {Lc}:''')
    k(f'''s_cmp_ge_u32 s2, 256
    s_cbranch_scc1 {Lend}
    s_cmp_lt_u32 {s(sa)}, 23
    s_cbranch_scc1 {LG}
    s_sub_u32 {s(ss2)}, s2, 216
    s_cmp_ge_u32 {s(sa)}, 27
    s_cbranch_scc1 {Lmod}
    s_cmp_lg_u32 {s(sb)}, 7
    s_cbranch_scc1 {LD}
    s_add_u32 {s(ss2)}, {s(sa)}, 17
    s_cmp_ge_u32 {s(sa)}, 25
    s_cbranch_scc1 {Lsp}
    s_branch {Lmod}''')
    k(f'{Lx1}:')
    nonce(); k.srd(rws, pws, WSB)
    stamp(2, {1})
    k(f'''s_lshl_b32 {s(sflag)}, {s(ss2)}, 2
    s_lshr_b32 {s(st)}, {s(sj)}, 1
    s_add_u32 {s(sflag)}, {s(sflag)}, {s(st)}
    s_mov_b32 {s(sones)}, 0x3f803f80
    s_and_b32 {s(st)}, {s(sw)}, 1
    s_lshl_b32 {s(st)}, {s(st)}, 4
    v_add_u32 {v(vt3)}, {s(st)}, {v(vn)}
    v_cvt_f32_u32 {v(vstep)}, {v(vt3)}
    s_bitcmp1_b32 {s(sw)}, 1
    s_cselect_b32 {s(st)}, {fl(0.25)}, 0
    s_cselect_b32 {s(st2)}, {fl(32.0)}, 0
    v_mov_b32 {v(vbase)}, {s(st)}
    v_mov_b32 {v(vt)}, {s(st2)}
    v_cmp_eq_u32 vcc, 0, {v(vt3)}
    v_cndmask_b32 {v(vstep)}, {v(vstep)}, {v(vt)}, vcc
    v_cndmask_b32 {v(vbase)}, {v(vbase)}, 0, vcc
    v_mul_f32 {v(vstep)}, {fl(1/64)}, {v(vstep)}
    v_lshlrev_b32 {v(vt)}, 2, {v(vg)}
    v_cvt_f32_u32 {v(vt)}, {v(vt)}
    v_fmac_f32 {v(vbase)}, {v(vstep)}, {v(vt)}''')
    for e in range(16):
        o = 32 * (e >> 3) + 16 * ((e >> 2) & 1) + (e & 3)
        k(f'v_fmamk_f32 {v(T+e)}, {v(vstep)}, {fl(o)}, {v(vbase)}')
    for e in range(16): k(f'v_cos_f32 {v(T+e)}, {v(T+e)}')
    for e in range(8): k(f'v_cvt_pk_bf16_f32 {v(BF+e)}, {v(T+2*e)}, {v(T+2*e+1)}')
    flagprep(vf)
    k(f'''v_mov_b32 {v(a1)}, 0
    v_mov_b32 {v(a1+1)}, 0
    v_mov_b32 {v(a2)}, 0
    v_mov_b32 {v(a2+1)}, 0
    v_mov_b32 {v(vt)}, {MISC}
    ds_write_b128 {v(vt)}, {v(a1,4)}
    v_mul_u32_u24 {v(aW)}, {XS}, {v(vs1)}
    v_and_b32 {v(vt2)}, 7, v0
    v_lshl_add_u32 {v(aW)}, {v(vt2)}, 4, {v(aW)}
    v_lshrrev_b32 {v(vt)}, 2, {v(vl)}
    v_mul_u32_u24 {v(aR)}, {XS}, {v(vt)}
    v_and_b32 {v(vt3)}, 3, {v(vl)}
    v_lshl_add_u32 {v(aR)}, {v(vt3)}, 3, {v(aR)}
    s_lshr_b32 {s(st)}, {s(sw)}, 2
    s_lshl_b32 {s(st)}, {s(st)}, 7
    v_add_u32 {v(aR)}, {s(st)}, {v(aR)}
    v_lshrrev_b32 {v(vt)}, 3, {v(vl)}
    v_mul_u32_u24 {v(aZ)}, 57344, {v(vt)}
    v_lshl_add_u32 {v(aZ)}, {v(vt2)}, 4, {v(aZ)}
    s_mul_i32 {s(scnt)}, {s(sw)}, 2304
    s_add_u32 {s(scnt)}, {s(scnt)}, {64*XS}
    v_mul_u32_u24 {v(aT1)}, 144, {v(vn)}
    v_lshl_add_u32 {v(aT1)}, {v(vg)}, 3, {v(aT1)}
    v_add_u32 {v(aT1)}, {s(scnt)}, {v(aT1)}
    v_mul_u32_u24 {v(aT2)}, 144, {v(vt)}
    v_lshl_add_u32 {v(aT2)}, {v(vt2)}, 4, {v(aT2)}
    v_add_u32 {v(aT2)}, {s(scnt)}, {v(aT2)}
    s_bfe_u32 {s(st2)}, {s(sw)}, 0x10001
    s_mul_i32 {s(st2)}, {s(st2)}, 28672
    s_add_u32 {s(sz1)}, {s(soff)}, {s(st2)}
    s_add_u32 {s(sz1)}, {s(sz1)}, {s(st)}
    s_and_b32 {s(st2)}, {s(sw)}, 1
    s_mul_i32 {s(st2)}, {s(st2)}, {16*57344}
    s_add_u32 {s(sz1)}, {s(sz1)}, {s(st2)}
    s_lshr_b32 {s(st)}, {s(sw)}, 2
    s_add_u32 {s(st)}, {s(st)}, {s(sj)}
    s_cmp_eq_u32 {s(st)}, 7
    s_cselect_b32 {s(sz1)}, {HUGE}, {s(sz1)}
    s_add_u32 {s(sz2)}, {s(sz1)}, {8*57344}''')
    assert a2 == a1 + 2 and a1 % 4 == 0
    k(f'''s_lshr_b32 {s(st)}, {s(sa)}, 2
    s_lshl_b32 {s(st)}, {s(st)}, 3
    s_add_u32 {s(sslot)}, {s(sb)}, {s(st)}
    s_bfe_u32 {s(smir)}, {s(sa)}, 0x10001
    s_sub_u32 {s(st)}, 64, {s(sslot)}
    s_cmp_eq_u32 {s(sslot)}, 0
    s_cselect_b32 {s(st)}, 32, {s(st)}
    s_cmp_eq_u32 {s(smir)}, 1
    s_cselect_b32 {s(st0)}, {s(st)}, {s(sslot)}
    s_and_b32 {s(st)}, {s(sa)}, 1
    s_lshl_b32 {s(st)}, {s(st)}, 10
    s_add_u32 {s(st0)}, {s(st0)}, {s(st)}
    s_lshl_b32 {s(st)}, {s(sw)}, 7
    s_add_u32 {s(st)}, {s(st)}, {s(st0)}
    s_mul_i32 {s(sxo)}, {s(st)}, 896
    s_sub_u32 {s(skx)}, 2047, {s(st)}
    s_mul_i32 {s(sxl)}, {s(sw)}, 1792
    s_add_u32 {s(sxl)}, {s(sxl)}, {XB}
    v_lshlrev_b32 {v(vh0)}, 4, {v(vl)}
    v_mov_b32 {v(vt2)}, {HUGE}''')
    def psetup():
        k(f'''v_and_b32 {v(vki)}, 32, {v(vl)}
    v_lshlrev_b32 {v(vki)}, 1, {v(vki)}
    v_sub_u32 {v(vki)}, {s(skx)}, {v(vki)}
    v_mov_b32 {v(vkm)}, 0xfffff800
    v_lshlrev_b32 {v(vt)}, 5, {v(vn)}
    v_lshl_add_u32 {v(vt)}, {v(vg)}, 3, {v(vt)}
    v_add_u32 {v(vx0)}, {s(sxl)}, {v(vt)}
    v_add_u32 {v(vx1)}, {s(sxl)}, {v(vh0)}
    v_add_u32 {v(aK)}, {CB_}, {v(vh0)}
    s_lshr_b32 {s(st)}, {s(sw)}, 1
    v_lshlrev_b32 {v(vt)}, 2, {v(vg)}
    v_xor_b32 {v(vt)}, {v(vt)}, {v(vn)}
    v_and_b32 {v(vt)}, 7, {v(vt)}
    v_xor_b32 {v(vt)}, {s(st)}, {v(vt)}
    v_lshlrev_b32 {v(aU)}, 4, {v(vt)}
    v_lshl_add_u32 {v(aU)}, {v(vn)}, 11, {v(aU)}
    v_lshl_add_u32 {v(aU)}, {v(vg)}, 9, {v(aU)}
    s_and_b32 {s(st)}, {s(sw)}, 1
    s_lshl_b32 {s(st)}, {s(st)}, 3
    s_add_u32 {s(st)}, {s(st)}, {UB}
    v_add_u32 {v(aU)}, {s(st)}, {v(aU)}
    v_xor_b32 {v(aU+1)}, 16, {v(aU)}
    v_xor_b32 {v(aU+2)}, 32, {v(aU)}
    v_xor_b32 {v(aU+3)}, 48, {v(aU)}
    s_lshl_b32 {s(st)}, {s(sw)}, 1
    v_xor_b32 {v(vt)}, {v(vg)}, {v(vn)}
    v_xor_b32 {v(vt)}, {s(st)}, {v(vt)}
    v_and_b32 {v(vt)}, 7, {v(vt)}
    v_lshlrev_b32 {v(aV)}, 4, {v(vt)}
    v_lshl_add_u32 {v(aV)}, {v(vn)}, 7, {v(aV)}
    s_lshl_b32 {s(st)}, {s(sw)}, 12
    s_add_u32 {s(st)}, {s(st)}, {UB}
    v_add_u32 {v(aV)}, {s(st)}, {v(aV)}
    v_xor_b32 {v(aV+1)}, 16, {v(aV)}
    v_lshrrev_b32 {v(vt)}, 2, {v(vl)}
    v_mul_u32_u24 {v(aT)}, {ZS}, {v(vt)}
    v_and_b32 {v(vt)}, 3, {v(vl)}
    v_mul_u32_u24 {v(vt)}, 56, {v(vt)}
    s_lshl_b32 {s(st)}, {s(sw)}, 3
    v_add3_u32 {v(aT)}, {v(aT)}, {v(vt)}, {s(st)}
    v_mul_u32_u24 {v(aC)}, 112, {v(vg)}
    s_lshl_b32 {s(st)}, {s(sw)}, 4
    s_add_u32 {s(st)}, {s(st)}, {CAB}
    v_add_u32 {v(aC)}, {s(st)}, {v(aC)}''')
    v7a = vsb; v7b = k.valloc(); v7c = PI + 10
    k.srd(r4, pw, 896)
    k(f'''s_cmp_eq_u32 {s(sw)}, 7
    s_cselect_b32 {s(r4+2)}, {s(r4+2)}, 0
    v_lshlrev_b32 {v(v7a)}, 3, {v(vl)}
    v_add_u32 {v(v7b)}, 512, {v(v7a)}
    v_cmp_gt_u32 vcc, 48, {v(vl)}
    v_cndmask_b32 {v(v7b)}, {v(vt2)}, {v(v7b)}, vcc''')
    def gen_f28():
        k(f'''v_cvt_f32_u32 {v(vstep)}, {v(vn)}
        v_mul_f32 {v(vstep)}, {fl(1/28)}, {v(vstep)}
        v_lshlrev_b32 {v(vt)}, 3, {v(vg)}
        v_cvt_f32_u32 {v(vt)}, {v(vt)}
        v_cmp_gt_u32 vcc, 12, {v(vn)}''')
        for b in range(2):
            if b == 1: k(f'v_add_f32 {v(vstep)}, {fl(16/28)}, {v(vstep)}')
            k(f'v_mul_f32 {v(vbase)}, {v(vt)}, {v(vstep)}')
            for e in range(8): k(f'v_fmamk_f32 {v(TG+e)}, {v(vstep)}, {fl(e)}, {v(vbase)}')
            for e in range(8): k(f'v_sin_f32 {v(TG+8+e)}, {v(TG+e)}\nv_cos_f32 {v(TG+e)}, {v(TG+e)}')
            for e in range(4): k(f'v_cvt_pk_bf16_f32 {v(FB+8*b+e)}, {v(TG+2*e)}, {v(TG+2*e+1)}\nv_cvt_pk_bf16_f32 {v(FB+8*b+4+e)}, -{v(TG+8+2*e)}, -{v(TG+9+2*e)}')
        for e in range(8): k(f'v_cndmask_b32 {v(FB+8+e)}, 0, {v(FB+8+e)}, vcc')
    sx1 = k.salloc(); sx2 = k.salloc(); sm0 = sx1; sm1 = sx2; ssw = k.salloc(2)
    def gen_w():
        k(f'''v_lshlrev_b32 {v(vt)}, 6, {v(vn)}
        v_add_u32 {v(vt)}, {s(st0)}, {v(vt)}
        v_cvt_f32_u32 {v(vstep)}, {v(vt)}
        v_mul_f32 {v(vstep)}, {fl(1/2048)}, {v(vstep)}
        v_lshlrev_b32 {v(vt)}, 2, {v(vg)}
        v_cvt_f32_u32 {v(vbase)}, {v(vt)}
        v_mul_f32 {v(vbase)}, {v(vbase)}, {v(vstep)}''')
        for e in range(8): k(f'v_fmamk_f32 {v(TG+e)}, {v(vstep)}, {fl(16*(e>>2)+(e&3))}, {v(vbase)}')
        for e in range(8): k(f'v_sin_f32 {v(TG+8+e)}, {v(TG+e)}\nv_cos_f32 {v(TG+e)}, {v(TG+e)}')
        for e in range(4): k(f'v_cvt_pk_bf16_f32 {v(Fre0+e)}, {v(TG+2*e)}, {v(TG+2*e+1)}\nv_cvt_pk_bf16_f32 {v(Fim0+e)}, -{v(TG+8+2*e)}, -{v(TG+9+2*e)}')
        Lns = k.label('ns'); Lnx = k.label('nx')
        k(f'''s_cmp_eq_u32 {s(smir)}, 1
        s_cselect_b32 {s(sx1)}, 0, 0x80008000
        s_cselect_b32 {s(sx2)}, 0x80008000, 0
        s_cmp_eq_u32 {s(sslot)}, 0
        s_cbranch_scc1 {Lns}''')
        for q in range(4): k(f'v_xor_b32 {v(Fre1+q)}, {s(sx1)}, {v(Fim0+q)}\nv_xor_b32 {v(Fim1+q)}, {s(sx2)}, {v(Fre0+q)}')
        k(f's_branch {Lnx}\n{Lns}:\ns_cmp_eq_u32 {s(smir)}, 1\ns_cselect_b32 {s(sm0)}, 0, -1\ns_cselect_b32 {s(sm1)}, -1, 0')
        for q in range(4):
            k(f'''v_and_b32 {v(Fre1+q)}, {s(sm1)}, {v(Fre0+q)}
            v_and_b32 {v(Fim1+q)}, {s(sm1)}, {v(Fim0+q)}
            v_and_b32 {v(Fre0+q)}, {s(sm0)}, {v(Fre0+q)}
            v_and_b32 {v(Fim0+q)}, {s(sm0)}, {v(Fim0+q)}''')
        k(f'{Lnx}:')
    def gen_da(TT):
        k(f'''v_cvt_f32_u32 {v(vstep)}, {v(vn)}
        v_mul_f32 {v(vstep)}, {fl(1/448)}, {v(vstep)}
        v_mul_u32_u24 {v(vt)}, 28, {v(vg)}
        s_lshl_b32 {s(st)}, {s(sw)}, 2
        v_add_u32 {v(vt)}, {s(st)}, {v(vt)}
        v_cvt_f32_u32 {v(vbase)}, {v(vt)}
        v_mul_f32 {v(vbase)}, {v(vbase)}, {v(vstep)}''')
        for q in range(4):
            for T_ in range(4): k(f'v_fmamk_f32 {v(TT+4*q+T_)}, {v(vstep)}, {fl(112*T_+q)}, {v(vbase)}')
        for e in range(16): k(f'v_sin_f32 {v(TT+16+e)}, {v(TT+e)}\nv_cos_f32 {v(TT+e)}, {v(TT+e)}')
        for q in range(4):
            A_ = AD + 6 * q
            k(f'''v_cvt_pk_bf16_f32 {v(A_)}, {v(TT+4*q)}, {v(TT+4*q+1)}
            v_cvt_pk_bf16_f32 {v(A_+1)}, {v(TT+4*q+2)}, {v(TT+4*q+3)}
            v_cvt_pk_bf16_f32 {v(A_+2)}, {v(TT+16+4*q)}, {v(TT+16+4*q+1)}
            v_cvt_pk_bf16_f32 {v(A_+3)}, {v(TT+16+4*q+2)}, {v(TT+16+4*q+3)}
            v_xor_b32 {v(A_+4)}, 0x80008000, {v(A_)}
            v_xor_b32 {v(A_+5)}, 0x80008000, {v(A_+1)}''')
    if OPT['EARLY'] & 8: psetup()
    if OPT['EARLY'] & 1: gen_w()
    k(f"s_cmp_lt_u32 {s(sw)}, {OPT['LATE']}\ns_cbranch_scc1 {Lx2}"); xloads(); k(f'{Lx2}:')
    if OPT['EARLY'] & 2: gen_f28()
    stamp(5, {1})
    if OPT['PRIO']: k('s_setprio 2')
    for i in range(7):
        k(f's_waitcnt vmcnt({6-i})')
        if i < 2:
            for q in range(4): k(f'v_lshlrev_b32 {v(T+8*i+2*q)}, 16, {v(X+4*i+q)}\nv_and_b32 {v(T+8*i+2*q+1)}, 0xffff0000, {v(X+4*i+q)}')
        for q in range(4):
            k(f'v_dot2c_f32_bf16 {v(a1+(q&1))}, {s(sones)}, {v(X+4*i+q)}')
            k(f'v_dot2c_f32_bf16 {v(a2+(q&1))}, {v(X+4*i+q)}, {v(X+4*i+q)}')
    stamp(3, {1}); k.dstamp(1)
    k(f'''s_mov_b32 m0, {s(sxl)}
    s_add_u32 {s(st)}, {s(sxo)}, {57344-896}
    s_bfm_b64 exec, 56, 0
    buffer_load_dwordx4 {v(vh0)}, {s(rx,4)}, {s(sxo)} offen {OPT['RNT']} lds
    buffer_load_dwordx4 {v(vh0)}, {s(rx,4)}, {s(st)} offen offset:896 {OPT['RNT']} lds
    s_mov_b64 exec, -1
    buffer_load_dwordx2 {v(XF,2)}, {v(v7a)}, {s(r4,4)}, 0 offen
    buffer_load_dwordx2 {v(XF+2,2)}, {v(v7b)}, {s(r4,4)}, 0 offen''')
    if OPT['PREP']:
        Lpp = k.label('prep')
        k(f'''s_cmp_lt_u32 {s(sw)}, 5
        s_cbranch_scc1 {Lpp}
        s_mul_i32 {s(st)}, {s(sb)}, {FRS}
        s_sub_u32 {s(st2)}, {s(sw)}, 5
        s_mul_i32 {s(st2)}, {s(st2)}, {64*FS}
        s_add_u32 {s(st)}, {s(st)}, {s(st2)}
        s_add_u32 {s(st)}, {s(st)}, {FLAG1}
        v_mul_u32_u24 {v(XF+5)}, {FS}, {v(vl)}
        buffer_load_dword {v(XF+4)}, {v(XF+5)}, {s(rws,4)}, {s(st)} offen sc1
        {Lpp}:''')
    k(f'v_add_f32 {v(a1)}, {v(a1)}, {v(a1+1)}\nv_add_f32 {v(a2)}, {v(a2)}, {v(a2+1)}')
    for dp in ('quad_perm:[1,0,3,2]', 'quad_perm:[2,3,0,1]', 'row_half_mirror'):
        k(f'v_add_f32_dpp {v(a1)}, {v(a1)}, {v(a1)} {dp} row_mask:0xf bank_mask:0xf')
        k(f'v_add_f32_dpp {v(a2)}, {v(a2)}, {v(a2)} {dp} row_mask:0xf bank_mask:0xf')
    ln_scalars(k, a1, a2, OPT['MIM'] & 1)
    for h in range(2):
        for q in range(8): k(f'v_fma_f32 {v(T+8*h+q)}, {v(T+8*h+q)}, {v(a2)}, -{v(a1)}')
        for q in range(4): k(f'v_cvt_pk_bf16_f32 {v(X+4*h+q)}, {v(T+8*h+2*q)}, {v(T+8*h+2*q+1)}')
        k(f'ds_write_b128 {v(aW)}, {v(X+4*h,4)} offset:{128*h}')
    k(f's_waitcnt lgkmcnt(0)\ns_barrier')
    stamp(6, {1})
    AF = X
    for tau in range(4):
        for ks in range(2):
            for hh in range(2):
                k(f'ds_read_b64_tr_b16 {v(AF+8*tau+4*ks+2*hh,2)}, {v(aR)} offset:{(32*ks+16*hh)*XS+32*tau}')
    tagcalc()
    for tau in range(4):
        k(f's_waitcnt lgkmcnt({12-4*tau})')
        k(f'v_mfma_f32_16x16x32_bf16 {v(T+4*tau,4)}, {v(AF+8*tau,4)}, {v(BF,4)}, 0')
        k(f'v_mfma_f32_16x16x32_bf16 {v(T+4*tau,4)}, {v(AF+8*tau+4,4)}, {v(BF+4,4)}, {v(T+4*tau,4)}')
    for tau in range(4):
        k(f'v_cvt_pk_bf16_f32 {v(PI+2*tau)}, {v(T+4*tau)}, {v(T+4*tau+1)}\nv_cvt_pk_bf16_f32 {v(PI+2*tau+1)}, {v(T+4*tau+2)}, {v(T+4*tau+3)}')
        k(f'ds_write_b64 {v(aT1)}, {v(PI+2*tau,2)} offset:{32*tau}')
    k(f's_waitcnt lgkmcnt(0)\nds_read_b128 {v(X,4)}, {v(aT2)}\nds_read_b128 {v(X+4,4)}, {v(aT2)} offset:{8*144}')
    for h in range(2):
        k(f's_waitcnt lgkmcnt({1-h})\nbuffer_store_dwordx4 {v(X+4*h,4)}, {v(aZ)}, {s(rws,4)}, {s(sz1 if h == 0 else sz2)} offen sc1')
    stamp(4, {1})
    if OPT['PRIO']: k('s_setprio 0')
    if OPT['EARLY'] & 4: gen_f28()
    if not OPT['EARLY'] & 8 and not OPT['PSL']: psetup()
    k.srd(r3, pout, 1835008)
    k(f'''s_and_b32 {s(sj)}, {s(sb)}, 7
    s_mul_i32 {s(sj)}, {s(sj)}, {FRS}
    s_add_u32 {s(sj)}, {s(sj)}, {FLAG1}
    v_mul_u32_u24 {v(vo)}, {FS}, {v(vl)}
    s_waitcnt vmcnt(0)
    s_barrier''')
    stamp(7, {1}); k.dstamp(2)
    Lnf = k.label('nf')
    k(f"s_cmp_lg_u32 {s(sw)}, {OPT['FW']}\ns_cbranch_scc1 {Lnf}"); sendflag(vf)
    if OPT['ST'] == 2: k('s_waitcnt vmcnt(0)'); k.stamp(2)
    k(f'{Lnf}:')
    if not OPT['EARLY'] & 8 and OPT['PSL']: psetup()
    T = AZ
    Lp7 = k.label('p7'); LA = k.label('A')
    k(f'''s_lshl_b32 {s(st)}, {s(sa)}, 1
    s_add_u32 {s(st)}, {s(st)}, {s(sw)}
    s_and_b32 {s(st)}, {s(st)}, 7
    s_mul_i32 {s(sz1)}, {s(st)}, {4*ZS}
    s_mul_i32 {s(sz2)}, {s(sslot)}, 57344
    s_mul_i32 {s(st2)}, {s(st)}, {4*896}
    s_add_u32 {s(sz2)}, {s(sz2)}, {s(st2)}
    s_mul_i32 {s(st)}, {s(st)}, {16*FS}
    v_add_u32 {v(vt)}, {112*FS}, {v(vo)}
    v_add_u32 {v(vo)}, {s(st)}, {v(vo)}
    v_cmp_gt_u32 vcc, 16, {v(vl)}
    v_cndmask_b32 {v(vo)}, {v(vt)}, {v(vo)}, vcc
    s_cmp_eq_u32 {s(sw)}, 7
    s_cbranch_scc1 {Lp7}''')
    def xunpack():
        for r in range(2): k(f'ds_read_b64 {v(XR+4*r,2)}, {v(vx0)} offset:{896*r}\nds_read_b64 {v(XR+4*r+2,2)}, {v(vx0)} offset:{896*r+512}')
        k(f'v_cmp_gt_u32 vcc, 12, {v(vn)}\ns_waitcnt lgkmcnt(0)')
        for r in range(2):
            for q in (2, 3): k(f'v_cndmask_b32 {v(XR+4*r+q)}, 0, {v(XR+4*r+q)}, vcc')
        for q in range(8): k(f'v_lshlrev_b32 {v(XF+2*q)}, 16, {v(XR+q)}\nv_and_b32 {v(XF+2*q+1)}, 0xffff0000, {v(XR+q)}')
    def zdma():
        k('s_bfm_b64 exec, 56, 0')
        for c in range(2):
            for j in range(4):
                k(f's_add_u32 {s(st)}, {s(sz1)}, {(32*c+j)*ZS}\ns_add_u32 {s(st2)}, {s(sz2)}, {(32*c+j)*896}\ns_mov_b32 m0, {s(st)}\ns_nop 0')
                k(f'buffer_load_dwordx4 {v(vh0)}, {s(rws,4)}, {s(st2)} offen sc1 lds')
        k('s_mov_b64 exec, -1')
    if not OPT['EARLY'] & 1: gen_w()
    if OPT['DAFIRST']: gen_da(AZ)
    xunpack()
    poll(f'buffer_load_dword {v(CK)}, {v(vo)}, {s(rws,4)}, {s(sj)} offen sc1', [CK], 16, name='pz')
    stamp(5, {0})
    zdma()
    if not OPT['DAFIRST']: gen_da(AZ)
    k(f'''v_mov_b32 {v(vt)}, {MISC}
    v_mov_b32 {v(vt2)}, 1
    s_mov_b64 exec, 1
    s_waitcnt vmcnt(0)
    ds_add_u32 {v(vt)}, {v(vt2)} offset:8
    s_mov_b64 exec, -1
    s_branch {LA}
    {Lp7}:''')
    sdz = sx1; sdm = sx2
    L7 = k.label('l7'); L7a = k.label('l7a'); L7b = k.label('l7b'); L7c = k.label('l7c')
    k(f'''v_lshlrev_b32 {v(v7b)}, 1, {v(v7b)}
    v_and_b32 {v(v7c)}, 3, {v(vl)}
    v_lshlrev_b32 {v(v7c)}, 8, {v(v7c)}
    v_lshrrev_b32 {v(vt)}, 2, {v(vl)}
    v_lshl_add_u32 {v(v7c)}, {v(vt)}, 4, {v(v7c)}
    v_add_u32 {v(v7c)}, {CB_}, {v(v7c)}
    s_mov_b32 {s(sdz)}, 0
    s_mov_b32 {s(sdm)}, 0
    s_mov_b32 {s(scnt)}, 0''')
    k(f'v_mov_b32 {v(PR)}, 0\nv_mov_b32 {v(PR+1)}, 0')
    def padw():
        for i in range(4): k(f'ds_write_b64 {v(aU+i)}, {v(PR,2)} offset:{128*i}\nv_xor_b32 {v(aU+i)}, 64, {v(aU+i)}')
        for i in range(4): k(f'ds_write_b64 {v(aU+i)}, {v(PR,2)} offset:{128*i}')
    if OPT['PADE']: padw()
    for q in range(4): k(f'v_lshlrev_b32 {v(T+2*q)}, 16, {v(XF+q)}\nv_and_b32 {v(T+2*q+1)}, 0xffff0000, {v(XF+q)}')
    xunpack()
    def mjob():
        k(f's_mov_b32 m0, {CAB}\ns_mov_b32 {s(st2)}, {MODV}')
        for i in range(4):
            if i == 3: k('s_bfm_b64 exec, 32, 0')
            k(f'buffer_load_dwordx4 {v(vh0)}, {s(rws,4)}, {s(st2)} offen offset:{1024*i} sc1 lds')
        k('s_mov_b64 exec, -1')
        for (slot_, sec) in ((2, 4), (3, 3), (0, 2), (4, 5)):
            k(f's_mov_b32 {s(st2)}, {MODV+sec*1792}')
            k(f'buffer_load_dwordx4 {v(CK+8*slot_,4)}, {v(vh0)}, {s(rws,4)}, {s(st2)} offen sc1\nbuffer_load_dwordx4 {v(CK+8*slot_+4,4)}, {v(v7b)}, {s(rws,4)}, {s(st2)} offen sc1')
    k(f'''{L7}:
    s_bfm_b64 exec, 58, 0
    buffer_load_dword {v(PI)}, {v(vo)}, {s(rws,4)}, {s(sj)} offen sc1
    s_add_u32 {s(scnt)}, {s(scnt)}, 1
    s_waitcnt vmcnt(0)
    v_cmp_ne_u32 vcc, {s(stag)}, {v(PI)}
    s_mov_b64 exec, -1
    s_cmp_ge_u32 {s(scnt)}, 0x200000
    s_cselect_b64 vcc, 0, vcc
    s_and_b32 {s(sdz)}, vcc_lo, 0xffff
    s_lshr_b64 {s(ssw,2)}, vcc, 16
    s_or_b32 {s(ssw)}, {s(ssw)}, {s(sdm)}
    s_cmp_lg_u64 {s(ssw,2)}, 0
    s_cbranch_scc1 {L7a}
    s_mov_b32 {s(sdm)}, 1''')
    stamp(5, {0})
    mjob()
    k(f'{L7a}:\ns_cmp_lg_u32 {s(sdz)}, 0\ns_cbranch_scc1 {L7}')
    zdma()
    k(f'''s_cmp_eq_u32 {s(sdm)}, 1
    s_cbranch_scc1 {L7c}
    v_mov_b32 {v(vt)}, {MISC}
    {L7b}:
    s_bfm_b64 exec, 58, 0
    buffer_load_dword {v(PI)}, {v(vo)}, {s(rws,4)}, {s(sj)} offen sc1
    s_waitcnt vmcnt(0)
    ds_read_b32 {v(PI+1)}, {v(vt)} offset:8
    v_cmp_ne_u32 vcc, {s(stag)}, {v(PI)}
    s_mov_b64 exec, -1
    s_cbranch_vccz {L7b}m
    s_waitcnt lgkmcnt(0)
    v_readfirstlane_b32 {s(st)}, {v(PI+1)}
    s_cmp_lt_u32 {s(st)}, 7
    s_cbranch_scc1 {L7b}
    s_branch {LA}
    {L7b}m:
    s_mov_b32 {s(sdm)}, 1''')
    stamp(5, {0})
    mjob()
    k(f's_branch {LA}\n{L7c}:\ns_waitcnt vmcnt(0)')
    k(f'{LA}:')
    if not OPT['EARLY'] & 6: gen_f28()
    stamp(3, {0})
    k('s_barrier')
    stamp(6, {0, 2, 3}); k.dstamp(3)
    def kreads():
        for c in range(5): k(f'ds_read_b128 {v(CK+8*c,4)}, {v(aK)} offset:{2048*c}\nds_read_b128 {v(CK+8*c+4,4)}, {v(aK)} offset:{2048*c+1024}')
        k(f'v_mov_b32 {v(vt2)}, {MISC}\nds_read_b32 {v(vsb)}, {v(vt2)} offset:4')
    Lw7 = k.label('w7'); Ljoin = k.label('join')
    k(f's_cmp_eq_u32 {s(sw)}, 7\ns_cbranch_scc1 {Lw7}')
    if OPT['PP']:
        Lpp = k.label('pp'); k(f"s_cmp_{'ge' if OPT['PP'] == 1 else 'lt'}_u32 {s(sw)}, 4\ns_cbranch_scc1 {Lpp}\ns_setprio 1\n{Lpp}:")
    for T_ in range(4):
        for ks in range(2):
            for hh in range(2):
                k(f'ds_read_b64_tr_b16 {v(AZ+8*T_+4*ks+2*hh,2)}, {v(aT)} offset:{(32*ks+16*hh)*ZS+224*T_}')
    if OPT['IL'] == 2:
        Lsa = k.label('sa'); Lsab = k.label('sab'); AB = OPT['AB']
        def muls(T_):
            for i in range(4): k(f'v_mul_f32 {v(PR+4*T_+i)}, {v(PR+4*T_+i)}, {v(CA+4*T_+i)}\nv_mul_f32 {v(PI+4*T_+i)}, {v(PI+4*T_+i)}, {v(CA+4*T_+i)}')
        done = 0
        for T_ in range(4):
            k(f's_waitcnt lgkmcnt({12-4*T_ + (4 if T_ > AB else 0)})')
            k(f'''v_mfma_f32_16x16x32_bf16 {v(PR+4*T_,4)}, {v(AZ+8*T_,4)}, {v(Fre0,4)}, 0
            v_mfma_f32_16x16x32_bf16 {v(PI+4*T_,4)}, {v(AZ+8*T_,4)}, {v(Fim0,4)}, 0
            v_mfma_f32_16x16x32_bf16 {v(PR+4*T_,4)}, {v(AZ+8*T_+4,4)}, {v(Fre1,4)}, {v(PR+4*T_,4)}
            v_mfma_f32_16x16x32_bf16 {v(PI+4*T_,4)}, {v(AZ+8*T_+4,4)}, {v(Fim1,4)}, {v(PI+4*T_,4)}''')
            if T_ == AB:
                k('s_barrier')
                for t2 in range(4): k(f'ds_read_b128 {v(CA+4*t2,4)}, {v(aC)} offset:{1792+448*t2}')
            elif T_ == 3:
                k('s_waitcnt lgkmcnt(0)')
                for t2 in range(3): muls(t2)
        if AB == 3:
            k('s_waitcnt lgkmcnt(0)')
            for t2 in range(3): muls(t2)
        muls(3)
    else:
        for T_ in range(4):
            k(f's_waitcnt lgkmcnt({12-4*T_})')
            k(f'''v_mfma_f32_16x16x32_bf16 {v(PR+4*T_,4)}, {v(AZ+8*T_,4)}, {v(Fre0,4)}, 0
            v_mfma_f32_16x16x32_bf16 {v(PR+4*T_,4)}, {v(AZ+8*T_+4,4)}, {v(Fre1,4)}, {v(PR+4*T_,4)}''')
        Lsa = k.label('sa'); Lsab = k.label('sab')
        if OPT['IL']:
            k('s_barrier')
            for t2 in range(4): k(f'ds_read_b128 {v(CA+4*t2,4)}, {v(aC)} offset:{1792+448*t2}')
            for T_ in range(4):
                k(f'''v_mfma_f32_16x16x32_bf16 {v(PI+4*T_,4)}, {v(AZ+8*T_,4)}, {v(Fim0,4)}, 0
                v_mfma_f32_16x16x32_bf16 {v(PI+4*T_,4)}, {v(AZ+8*T_+4,4)}, {v(Fim1,4)}, {v(PI+4*T_,4)}''')
                if T_ > 0:
                    k(f's_waitcnt lgkmcnt({4-T_})')
                    for i in range(4): k(f'v_mul_f32 {v(PR+4*T_-4+i)}, {v(PR+4*T_-4+i)}, {v(CA+4*T_-4+i)}')
            k('s_waitcnt lgkmcnt(0)')
            for i in range(4): k(f'v_mul_f32 {v(PR+12+i)}, {v(PR+12+i)}, {v(CA+12+i)}')
        else:
            for T_ in range(4):
                k(f'''v_mfma_f32_16x16x32_bf16 {v(PI+4*T_,4)}, {v(AZ+8*T_,4)}, {v(Fim0,4)}, 0
                v_mfma_f32_16x16x32_bf16 {v(PI+4*T_,4)}, {v(AZ+8*T_+4,4)}, {v(Fim1,4)}, {v(PI+4*T_,4)}''')
                if T_ == OPT['A2']:
                    k('s_barrier')
                    for t2 in range(4): k(f'ds_read_b128 {v(CA+4*t2,4)}, {v(aC)} offset:{1792+448*t2}')
            for T_ in range(4):
                k(f's_waitcnt lgkmcnt({3-T_})')
                for i in range(4): k(f'v_mul_f32 {v(PR+4*T_+i)}, {v(PR+4*T_+i)}, {v(CA+4*T_+i)}')
    stamp(2, {3})
    k(f's_cmp_eq_u32 {s(st0)}, 0\ns_cbranch_scc1 {Lsa}\n{Lsab}:')
    if OPT['IL'] != 2:
        for i in range(4):
            k(f'v_cvt_pk_bf16_f32 {v(BP+4*i)}, {v(PR+i)}, {v(PR+4+i)}\nv_cvt_pk_bf16_f32 {v(BP+4*i+1)}, {v(PR+8+i)}, {v(PR+12+i)}')
    UR = AZ; VV = AZ + 16
    for i in range(4):
        B = BP + 4 * i
        if OPT['IL'] == 2: k(f'v_cvt_pk_bf16_f32 {v(B)}, {v(PR+i)}, {v(PR+4+i)}\nv_cvt_pk_bf16_f32 {v(B+1)}, {v(PR+8+i)}, {v(PR+12+i)}')
        if OPT['IL'] != 2:
            for T_ in range(4): k(f'v_mul_f32 {v(PI+4*T_+i)}, {v(PI+4*T_+i)}, {v(CA+4*T_+i)}')
        k(f'''v_cvt_pk_bf16_f32 {v(B+2)}, {v(PI+i)}, {v(PI+4+i)}
        v_cvt_pk_bf16_f32 {v(B+3)}, {v(PI+8+i)}, {v(PI+12+i)}''')
        if i > 0:
            k(f'''v_mfma_f32_16x16x32_bf16 {v(UR+4*(i-1),4)}, {v(AD+6*(i-1),4)}, {v(B-4,4)}, 0
            v_mfma_f32_16x16x32_bf16 {v(VV+4*(i-1),4)}, {v(AD+6*(i-1)+2,4)}, {v(B-4,4)}, 0''')
    k(f'''v_mfma_f32_16x16x32_bf16 {v(UR+12,4)}, {v(AD+18,4)}, {v(BP+12,4)}, 0
    v_mfma_f32_16x16x32_bf16 {v(VV+12,4)}, {v(AD+20,4)}, {v(BP+12,4)}, 0''')
    UP = PR
    stamp(5, {3})
    for i in range(4): k(f'v_cvt_pk_bf16_f32 {v(UP+2*i)}, {v(UR+i)}, {v(UR+4+i)}\nv_cvt_pk_bf16_f32 {v(UP+8+2*i)}, {v(VV+i)}, {v(VV+4+i)}')
    for i in range(4):
        k(f'v_cvt_pk_bf16_f32 {v(UP+2*i+1)}, {v(UR+8+i)}, {v(UR+12+i)}\nds_write_b64 {v(aU+i)}, {v(UP+2*i,2)} offset:{128*i}\nv_xor_b32 {v(aU+i)}, 64, {v(aU+i)}')
    for i in range(4):
        k(f'v_cvt_pk_bf16_f32 {v(UP+8+2*i+1)}, {v(VV+8+i)}, {v(VV+12+i)}\nds_write_b64 {v(aU+i)}, {v(UP+8+2*i,2)} offset:{128*i}')
    k(f's_branch {Ljoin}')
    k(f'{Lsa}:')
    for t2 in range(4): k(f'ds_read_b128 {v(BP+4*t2,4)}, {v(aC)} offset:{448*t2}')
    k(f's_mov_b32 exec_lo, 0x00010001\ns_mov_b32 exec_hi, 0x00010001\ns_waitcnt lgkmcnt(0)')
    for e in range(16): k(f'v_add_f32 {v(PR+e)}, {v(PR+e)}, {v(BP+e)}')
    k(f's_mov_b64 exec, -1\ns_nop 1\ns_branch {Lsab}')
    k(f'{Lw7}:')
    L7m = k.label('l7m')
    k(f's_cmp_eq_u32 {s(sdm)}, 1\ns_cbranch_scc1 {L7m}\nv_mul_u32_u24 {v(vo)}, {FS}, {v(vl)}\ns_add_u32 {s(so)}, {s(sj)}, {128*FS}')
    poll(f'buffer_load_dword {v(PI)}, {v(vo)}, {s(rws,4)}, {s(so)} offen sc1', [PI], 42, name='pm')
    stamp(5, {0})
    mjob()
    k(f'{L7m}:\ns_waitcnt vmcnt(8)\ns_barrier\ns_waitcnt vmcnt(0)')
    for e in range(8): k(f'v_mul_f32 {v(CK+8+e)}, {v(T+e)}, {v(CK+16+e)}')
    k(f'v_add_f32 {v(T+8)}, {v(CK+8)}, {v(CK+9)}\nv_mul_f32 {v(T+9)}, {v(T)}, {v(CK+24)}')
    for e in range(2, 8): k(f'v_add_f32 {v(T+8)}, {v(T+8)}, {v(CK+8+e)}\nv_fmac_f32 {v(T+9)}, {v(T+e-1)}, {v(CK+24+e-1)}')
    k(f'v_fmac_f32 {v(T+9)}, {v(T+7)}, {v(CK+31)}')
    for c in (2, 3, 0, 4): k(f'ds_write_b128 {v(v7c)}, {v(CK+8*c,4)} offset:{2048*c}\nds_write_b128 {v(v7c)}, {v(CK+8*c+4,4)} offset:{2048*c+1024}')
    k(f'v_permlane32_swap_b32 {v(T+8)}, {v(T+9)}\nv_add_f32 {v(T+8)}, {v(T+8)}, {v(T+9)}\nv_mov_b32 {v(T+9)}, {v(T+8)}\nv_permlane16_swap_b32 {v(T+8)}, {v(T+9)}\nv_add_f32 {v(T+8)}, {v(T+8)}, {v(T+9)}')
    for r in (8, 4, 2, 1): k(f'v_add_f32_dpp {v(T+8)}, {v(T+8)}, {v(T+8)} row_ror:{r} row_mask:0xf bank_mask:0xf')
    k(f'''v_readlane_b32 {s(st)}, {v(T+8)}, 0
    v_readlane_b32 {s(st2)}, {v(T+8)}, 32
    v_mov_b32 {v(T+9)}, {fl(-1/448)}
    v_mul_f32 {v(T+9)}, {s(st)}, {v(T+9)}
    v_cmp_gt_u32 vcc, 48, {v(vl)}
    v_cndmask_b32 {v(T+11)}, 0, {v(T+9)}, vcc
    v_mov_b32 {v(T+10)}, {s(st2)}
    v_mov_b32 {v(vt2)}, {MISC}
    ds_write_b32 {v(vt2)}, {v(T+10)} offset:4''')
    for e in range(8): k(f'v_add_f32 {v(CK+8+e)}, {v(CK+8+e)}, {v(T+9 if e < 4 else T+11)}')
    k(f'ds_write_b128 {v(v7c)}, {v(CK+8,4)} offset:2048\nds_write_b128 {v(v7c)}, {v(CK+12,4)} offset:{2048+1024}')
    if not OPT['PADE']: padw()
    k(f'{Ljoin}:')
    k(f'''v_xor_b32 {v(vt)}, 64, {v(aV)}
    v_xor_b32 {v(vt2)}, 64, {v(aV+1)}
    v_mov_b32 {v(CA+1)}, {v(vtag)}
    v_mov_b32 {v(CA+3)}, {v(vtag)}
    v_mov_b32 {v(CA+5)}, {v(vtag)}
    v_mov_b32 {v(CA+7)}, {v(vtag)}''')
    stamp(3, {3})
    k('s_waitcnt lgkmcnt(0)')
    stamp(4, {3})
    k('s_barrier')
    stamp(7, {0, 3})
    BD = AZ; Y = PI
    k(f'''ds_read_b128 {v(BD,4)}, {v(aV)}
    ds_read_b128 {v(BD+4,4)}, {v(vt)}
    ds_read_b128 {v(BD+8,4)}, {v(aV+1)} offset:2048
    ds_read_b128 {v(BD+12,4)}, {v(vt2)} offset:2048
    s_mul_i32 {s(so)}, s2, {SLS}
    s_add_u32 {s(so)}, {s(so)}, {SLOT}
    s_mul_i32 {s(sj)}, s2, {KS}
    s_add_u32 {s(sj)}, {s(sj)}, {KEYS}
    v_mul_u32_u24 {v(vo)}, {KRS}, {v(vl)}''')
    kreads()
    for r in range(2):
        k(f's_waitcnt lgkmcnt({11+3-2*r})')
        for b in range(2): k(f'v_mfma_f32_16x16x32_bf16 {v(Y+8*r+4*b,4)}, {v(BD+8*r,4)}, {v(FB+8*b,4)}, 0')
        k(f's_waitcnt lgkmcnt({11+2-2*r})')
        for b in range(2): k(f'v_mfma_f32_16x16x32_bf16 {v(Y+8*r+4*b,4)}, {v(BD+8*r+4,4)}, {v(FB+8*b+4,4)}, {v(Y+8*r+4*b,4)}')
    S = PR
    k('s_waitcnt lgkmcnt(7)')
    for r in range(2):
        for e in range(8):
            x1 = XF + 8 * r + e
            k(f'v_fmac_f32 {v(x1)}, {v(CK+e)}, {v(Y+8*r+e)}')
            if e == 0: k(f'v_mul_f32 {v(S+2+r)}, {v(x1)}, {v(x1)}\nv_mul_f32 {v(S+4+r)}, {v(x1)}, {v(CK+8)}')
            else: k(f'v_fmac_f32 {v(S+2+r)}, {v(x1)}, {v(x1)}\nv_fmac_f32 {v(S+4+r)}, {v(x1)}, {v(CK+8+e)}')
            if e == 1: k(f'v_add_f32 {v(S+r)}, {v(x1-1)}, {v(x1)}')
            elif e > 1: k(f'v_add_f32 {v(S+r)}, {v(S+r)}, {v(x1)}')
    k(f'''v_permlane32_swap_b32 {v(S+4)}, {v(S+5)}
    v_permlane32_swap_b32 {v(S+2)}, {v(S+3)}
    v_permlane32_swap_b32 {v(S)}, {v(S+1)}
    v_add_f32 {v(S+4)}, {v(S+4)}, {v(S+5)}
    v_add_f32 {v(S+2)}, {v(S+2)}, {v(S+3)}
    v_add_f32 {v(S)}, {v(S)}, {v(S+1)}
    v_mov_b32 {v(S+5)}, {v(S+4)}
    v_permlane16_swap_b32 {v(S)}, {v(S+2)}
    v_permlane16_swap_b32 {v(S+4)}, {v(S+5)}
    v_add_f32 {v(S)}, {v(S)}, {v(S+2)}
    v_add_f32 {v(S+4)}, {v(S+4)}, {v(S+5)}''')
    for r in (8, 4, 2, 1):
        k(f'v_add_f32_dpp {v(S)}, {v(S)}, {v(S)} row_ror:{r} row_mask:0xf bank_mask:0xf\nv_add_f32_dpp {v(S+4)}, {v(S+4)}, {v(S+4)} row_ror:{r} row_mask:0xf bank_mask:0xf')
    k(f'v_mov_b32 {v(S+2)}, {v(S)}\nv_permlane16_swap_b32 {v(S)}, {v(S+2)}')
    k('s_waitcnt lgkmcnt(0)')
    ln_scalars(k, S, S + 2, OPT['MIM'] & 2)
    sr = k.salloc(2); sm = k.salloc(2); sk = k.salloc(2); swin = k.salloc()
    k(f'''v_fma_f32 {v(S+4)}, {v(S+4)}, {v(S+2)}, {v(vsb)}
    v_readlane_b32 {s(sr)}, {v(S+2)}, 0
    v_ashrrev_i32 {v(vt)}, 31, {v(S+4)}
    v_readlane_b32 {s(sr+1)}, {v(S+2)}, 32
    v_or_b32 {v(vt)}, 0x80000000, {v(vt)}
    v_readlane_b32 {s(sm)}, {v(S)}, 0
    v_xor_b32 {v(vt)}, {v(vt)}, {v(S+4)}
    v_readlane_b32 {s(sm+1)}, {v(S)}, 32
    v_and_or_b32 {v(vt)}, {v(vt)}, {v(vkm)}, {v(vki)}
    s_mov_b32 exec_lo, 1
    s_mov_b32 exec_hi, 1
    ds_max_u32 {v(vt2)}, {v(vt)}
    s_mov_b64 exec, -1
    v_readlane_b32 {s(sk)}, {v(vt)}, 0
    v_readlane_b32 {s(sk+1)}, {v(vt)}, 32''')
    H = AZ; O = AZ + 16
    def hcalc(r, dst):
        k(f'v_mov_b32 {v(PI+8)}, {s(sm+r)}')
        for e in range(8): k(f'v_fma_f32 {v(PI+e)}, {v(XF+8*r+e)}, {s(sr+r)}, -{v(PI+8)}')
        for e in range(8): k(f'v_fma_f32 {v(dst+e)}, {v(PI+e)}, {v(CK+16+e)}, {v(CK+24+e)}')
    Lb = k.label('rb'); Lc = k.label('rc'); Lnw = k.label('nw')
    if not OPT['HPRE']:
        k(f'v_mov_b32 {v(S+7)}, {v(vtag)}\ns_waitcnt lgkmcnt(0)\ns_barrier\nds_read_b32 {v(S+6)}, {v(vt2)}')
        stamp(2, {0}); k.dstamp(4)
        Lk0 = k.label('k0')
        k(f'''s_cmp_lg_u32 {s(sw)}, 0
        s_cbranch_scc1 {Lk0}
        s_mov_b64 exec, 0xff
        s_waitcnt lgkmcnt(0)
        buffer_store_dwordx2 {v(S+6,2)}, {v(vo)}, {s(rws,4)}, {s(sj)} offen sc1
        s_mov_b64 exec, -1
        {Lk0}:''')
    k(f's_max_u32 {s(st2)}, {s(sk)}, {s(sk+1)}\ns_cmp_gt_u32 {s(sk+1)}, {s(sk)}\ns_cbranch_scc1 {Lb}')
    hcalc(0, H)
    for q in range(4): k(f'v_cvt_pk_bf16_f32 {v(CA+2*q)}, {v(H+2*q)}, {v(H+2*q+1)}')
    k(f's_branch {Lc}\n{Lb}:')
    hcalc(1, H + 8)
    for q in range(4): k(f'v_cvt_pk_bf16_f32 {v(CA+2*q)}, {v(H+8+2*q)}, {v(H+8+2*q+1)}')
    k(f'{Lc}:')
    if OPT['HPRE']:
        k(f'v_mov_b32 {v(S+7)}, {v(vtag)}\ns_waitcnt lgkmcnt(0)\ns_barrier\nds_read_b32 {v(S+6)}, {v(vt2)}')
        stamp(2, {0}); k.dstamp(4)
        Lk0 = k.label('k0')
        k(f'''s_cmp_lg_u32 {s(sw)}, 0
        s_cbranch_scc1 {Lk0}
        s_mov_b64 exec, 0xff
        s_waitcnt lgkmcnt(0)
        buffer_store_dwordx2 {v(S+6,2)}, {v(vo)}, {s(rws,4)}, {s(sj)} offen sc1
        s_mov_b64 exec, -1
        {Lk0}:''')
    k(f'''s_waitcnt lgkmcnt(0)
    v_readfirstlane_b32 {s(swin)}, {v(S+6)}
    s_cmp_lg_u32 {s(swin)}, {s(st2)}
    s_cbranch_scc1 {Lnw}
    buffer_store_dwordx4 {v(CA,4)}, {v(vh0)}, {s(rws,4)}, {s(so)} offen sc1
    buffer_store_dwordx4 {v(CA+4,4)}, {v(vh0)}, {s(rws,4)}, {s(so)} offen offset:1024 sc1
    {Lnw}:''')
    stamp(4, {0})
    Ld_ = k.label('rd'); Le_ = k.label('re')
    k(f's_cmp_gt_u32 {s(sk+1)}, {s(sk)}\ns_cbranch_scc1 {Ld_}')
    hcalc(1, H + 8)
    k(f's_branch {Le_}\n{Ld_}:')
    hcalc(0, H)
    k(f'{Le_}:')
    for e in range(16): k(f'v_fma_f32 {v(O+e)}, {v(CK+32+(e&7))}, {v(H+e)}, {v(XF+e)}')
    for q in range(8): k(f'v_cvt_pk_bf16_f32 {v(H+q)}, {v(O+2*q)}, {v(O+2*q+1)}')
    k(f'''ds_write_b64 {v(vx0)}, {v(H,2)}
    ds_write_b64 {v(vx0)}, {v(H+4,2)} offset:896
    s_mov_b32 exec_lo, 0x0fff0fff
    s_mov_b32 exec_hi, 0x0fff0fff
    ds_write_b64 {v(vx0)}, {v(H+2,2)} offset:512
    ds_write_b64 {v(vx0)}, {v(H+6,2)} offset:{896+512}
    s_bfm_b64 exec, 56, 0
    s_waitcnt lgkmcnt(0)
    ds_read_b128 {v(H,4)}, {v(vx1)}
    ds_read_b128 {v(H+4,4)}, {v(vx1)} offset:896
    s_add_u32 {s(st)}, {s(sxo)}, 57344
    s_waitcnt lgkmcnt(0)
    s_cmp_eq_u32 {s(swin)}, {s(st2)}
    s_cbranch_scc1 {Lend}w''')
    osc = {'plain': '', 'none': None, 'sc1nt': 'sc1 nt'}.get(OPT['OUT'], OPT['OUT'])
    if OPT['OD']: k('s_waitcnt vmcnt(0)\ns_barrier')
    if osc is not None:
        k(f'''buffer_store_dwordx4 {v(H,4)}, {v(vh0)}, {s(r3,4)}, {s(sxo)} offen {osc}
        buffer_store_dwordx4 {v(H+4,4)}, {v(vh0)}, {s(r3,4)}, {s(st)} offen {osc}''')
    k(f'''s_branch {Lend}
    {Lend}w:
    buffer_store_dwordx4 {v(H,4)}, {v(vh0)}, {s(r3,4)}, {s(sxo)} offen sc1
    buffer_store_dwordx4 {v(H+4,4)}, {v(vh0)}, {s(r3,4)}, {s(st)} offen sc1
    {"s_barrier" if OPT['OD'] == 1 else ""}
    s_waitcnt vmcnt(0)
    {"s_barrier" if OPT['OD'] == 2 else ""}
    v_lshlrev_b32 {v(vt)}, 2, {v(vl)}
    s_bfm_b64 exec, 32, 0
    buffer_store_dword {v(vtag)}, {v(vt)}, {s(rws,4)}, {s(so)} offen offset:2048 sc1
    s_branch {Lend}''')
    sg = smir; skey = sones
    def modtouch():
        k.srd(r4, pc + 2, 448 * 5376)
        k(f'''s_sub_u32 {s(st)}, {s(sa)}, 16
        s_sub_u32 {s(st2)}, {s(sa)}, 18
        s_cmp_ge_u32 {s(sa)}, 25
        s_cselect_b32 {s(st2)}, {s(st2)}, {s(st)}
        s_lshl_b32 {s(st)}, {s(st)}, 1
        s_lshl_b32 {s(st2)}, {s(st2)}, 2
        s_cmp_eq_u32 {s(sb)}, 7
        s_cselect_b32 {s(st)}, {s(st2)}, {s(st)}
        s_cselect_b32 {s(sflag)}, 4, 2
        s_cselect_b32 {s(st2)}, 37, 52
        s_cselect_b32 {s(scnt)}, 7, 5
        s_add_u32 {s(st)}, {s(st)}, {s(sw)}
        s_mul_i32 {s(st2)}, {s(st2)}, {s(st)}
        s_lshr_b32 {s(st2)}, {s(st2)}, 8
        s_mul_i32 {s(scnt)}, {s(scnt)}, {s(st2)}
        s_sub_u32 {s(st)}, {s(st)}, {s(scnt)}
        s_lshl_b32 {s(scnt)}, {s(st)}, 3
        s_add_u32 {s(scnt)}, {s(scnt)}, {s(sb)}
        s_add_u32 {s(so)}, {s(st)}, 35
        s_cmp_lt_u32 {s(st)}, 5
        s_cselect_b32 {s(scnt)}, {s(scnt)}, {s(so)}
        s_lshl_b32 {s(scnt)}, {s(scnt)}, 7
        s_sub_u32 {s(st2)}, 6, {s(st2)}
        s_mul_i32 {s(st2)}, {s(st2)}, {64*5376}
        s_add_u32 {s(scnt)}, {s(scnt)}, {s(st2)}
        s_cmp_lt_u32 {s(sw)}, {s(sflag) if OPT['HELP'] else 0}
        s_cselect_b32 {s(r4+2)}, {s(r4+2)}, 0
        v_mul_u32_u24 {v(vt)}, 5376, {v(vl)}''')
        if OPT['MDELAY'] & 8: k(f's_load_dword {s(st)}, {s(pc,2)}, 0\ns_waitcnt lgkmcnt(0)')
        k(f'buffer_load_dword {v(vt2)}, {v(vt)}, {s(r4,4)}, {s(scnt)} offen {OPT["TNT"]}')
    def keymax(KR):
        k(f'v_max_u32 {v(vt2)}, {v(KR)}, {v(KR+2)}')
        for r in (8, 4, 2, 1): k(f'v_max_u32_dpp {v(vt2)}, {v(vt2)}, {v(vt2)} row_ror:{r} row_mask:0xf bank_mask:0xf')
        k(f'''v_readlane_b32 {s(skey)}, {v(vt2)}, 0
        v_readlane_b32 {s(st)}, {v(vt2)}, 16
        v_readlane_b32 {s(st2)}, {v(vt2)}, 32
        v_readlane_b32 {s(sj)}, {v(vt2)}, 48
        s_max_u32 {s(skey)}, {s(skey)}, {s(st)}
        s_max_u32 {s(st2)}, {s(st2)}, {s(sj)}
        s_max_u32 {s(skey)}, {s(skey)}, {s(st2)}''')
    def key2slot(dst):
        k(f'''s_and_b32 {s(sj)}, {s(skey)}, 2047
        s_sub_u32 {s(sj)}, 2047, {s(sj)}
        s_and_b32 {s(st)}, {s(sj)}, 63
        s_sub_u32 {s(st2)}, 64, {s(st)}
        s_and_b32 {s(st2)}, {s(st2)}, 31
        s_cmp_ge_u32 {s(st)}, 32
        s_cselect_b32 {s(st)}, {s(st2)}, {s(st)}
        s_cselect_b32 {s(st2)}, 16, 0
        s_and_b32 {s(dst)}, {s(st)}, 7
        s_add_u32 {s(dst)}, {s(dst)}, {s(st2)}
        s_lshr_b32 {s(st)}, {s(st)}, 3
        s_lshl_b32 {s(st)}, {s(st)}, 5
        s_add_u32 {s(dst)}, {s(dst)}, {s(st)}
        s_lshr_b32 {s(st)}, {s(sj)}, 10
        s_lshl_b32 {s(st)}, {s(st)}, 3
        s_add_u32 {s(dst)}, {s(dst)}, {s(st)}
        s_mul_i32 {s(dst)}, {s(dst)}, {SLS}
        s_add_u32 {s(dst)}, {s(dst)}, {SLOT}''')
    keyloads = lambda KR: f'''buffer_load_dwordx2 {v(KR,2)}, {v(vt)}, {s(rws,4)}, {s(sflag)} offen sc1
        buffer_load_dwordx2 {v(KR+2,2)}, {v(vt)}, {s(rws,4)}, {s(so)} offen sc1'''
    def keysetup(): k(f"v_mul_u32_u24 {v(vt)}, {KS}, {v(vl)}\ns_mul_i32 {s(sflag)}, {s(sb)}, {KRS}\ns_add_u32 {s(sflag)}, {s(sflag)}, {KEYS}\ns_add_u32 {s(so)}, {s(sflag)}, {64*KS}")
    def partials(ACC, va):
        k(f's_mov_b32 exec_lo, 0x00010001\ns_mov_b32 exec_hi, 0x00010001\nds_write_b128 {v(va)}, {v(ACC,4)}\ns_mov_b64 exec, -1')
    k(f'{Lsp}:\ns_waitcnt lgkmcnt(0)'); modtouch(); k(f's_branch {Lend}')
    k.nv = VBASE
    AFR = k.valloc(28, 4); GR = k.valloc(40, 4); ACC = k.valloc(4, 4); E = k.valloc(8, 4); vp = k.valloc(); va1 = k.valloc(); va2 = k.valloc(2)
    def wtouch():
        if not OPT['TOUCHW']: return
        k(f"""s_sub_u32 {s(st)}, {s(sa)}, 16
        s_lshl_b32 {s(st)}, {s(st)}, 3
        s_add_u32 {s(st)}, {s(st)}, {s(sw)}
        s_cmp_ge_u32 {s(st)}, 28
        s_cselect_b32 {s(r3)}, {s(pw+4)}, {s(pw+2)}
        s_cselect_b32 {s(r3+1)}, {s(pw+5)}, {s(pw+3)}
        s_cselect_b32 {s(st2)}, 28, 0
        s_cmp_ge_u32 {s(st)}, 56
        s_cselect_b32 {s(r3)}, {s(pw+6)}, {s(r3)}
        s_cselect_b32 {s(r3+1)}, {s(pw+7)}, {s(r3+1)}
        s_cselect_b32 {s(st2)}, 56, {s(st2)}
        s_cselect_b64 vcc, -1, 0
        s_cselect_b32 {s(scnt)}, 2, 7
        s_mov_b32 {s(r3+2)}, {448*3584}
        s_mov_b32 {s(r3+3)}, 0x00020000
        s_sub_u32 {s(st)}, {s(st)}, {s(st2)}
        s_mul_i32 {s(st)}, {s(st)}, 57344
        s_mul_i32 {s(scnt)}, {s(scnt)}, {s(sb)}
        s_lshr_b32 {s(scnt)}, {s(scnt)}, 1
        s_lshl_b32 {s(scnt)}, {s(scnt)}, 7
        s_add_u32 {s(st)}, {s(st)}, {s(scnt)}
        v_lshrrev_b32 {v(vt)}, 2, {v(vl)}
        v_mul_u32_u24 {v(vt)}, 3584, {v(vt)}
        v_and_b32 {v(vt3)}, 3, {v(vl)}
        v_lshl_add_u32 {v(vt)}, {v(vt3)}, 7, {v(vt)}
        v_mul_u32_u24 {v(vt3)}, 896, {v(vl)}
        v_cndmask_b32 {v(vt)}, {v(vt)}, {v(vt3)}, vcc
        s_waitcnt vmcnt(0)
        s_barrier
        buffer_load_dword {v(vt2)}, {v(vt)}, {s(r3,4)}, {s(st)} offen""")
    def slowstart(stride):
        if not OPT['SLOW']: return
        L = k.label('ss')
        k(f's_cmp_lg_u32 {s(sw)}, 7\ns_cbranch_scc1 {L}\nv_mul_u32_u24 {v(vt)}, {stride}, {v(vl)}\ns_mov_b32 {s(scnt)}, {s(so)}\ns_waitcnt vmcnt(0)')
        for r in range(OPT['SLOW']):
            k(f'buffer_load_dword {v(vt2)}, {v(vt)}, {s(r3,4)}, {s(scnt)} offen\ns_add_u32 {s(scnt)}, {s(scnt)}, {32*stride}\ns_waitcnt vmcnt(0)')
        k(f'{L}:')
    def wtrig():
        if not OPT['WTRIG']: return
        L = k.label('wt')
        k(f's_waitcnt lgkmcnt(0)'); tagcalc()
        k(f"""s_cmp_lg_u32 {s(sw)}, 0
        s_cbranch_scc1 {L}
        s_mul_i32 {s(sflag)}, {s(sb)}, {FRS}
        s_add_u32 {s(sflag)}, {s(sflag)}, {FLAG1 + (128 if OPT['WTRIG'] == 1 else 0)*FS}
        v_mul_u32_u24 {v(vt)}, {FS}, {v(vl)}""")
        if OPT['WTRIG'] == 3:
            k(f's_add_u32 {s(so)}, {s(sflag)}, {64*FS}')
            poll(f'buffer_load_dword {v(E)}, {v(vt)}, {s(rws,4)}, {s(sflag)} offen sc1\nbuffer_load_dword {v(E+1)}, {v(vt)}, {s(rws,4)}, {s(so)} offen sc1', [E, E+1], name='pw')
        else: poll(f'buffer_load_dword {v(E)}, {v(vt)}, {s(rws,4)}, {s(sflag)} offen sc1', [E], 42 if OPT['WTRIG'] == 1 else 64, name='pw')
        k.stamp(2)
        k(f'{L}:')
    SCR = 57344; RED = SCR + 4096
    k(f'{LG}:')
    k('s_waitcnt lgkmcnt(0)')
    if OPT['MDELAY'] & 2: nonce(); k('s_waitcnt lgkmcnt(0)'); modtouch()
    else: modtouch(); nonce()
    k.srd(rws, pws, WSB); wtouch(); wtrig()
    k(f'''s_mul_i32 {s(sg)}, {s(sb)}, 7
    s_add_u32 {s(sg)}, {s(sg)}, {s(sa)}
    s_sub_u32 {s(sg)}, {s(sg)}, 16
    s_lshl_b32 {s(st)}, {s(sg)}, 2
    s_xor_b32 {s(sj)}, {s(sw)}, {s(st)}
    s_and_b32 {s(sj)}, {s(sj)}, 7
    s_bitcmp1_b32 {s(sj)}, 2
    s_cselect_b32 {s(r3)}, {s(pw+4)}, {s(pw+2)}
    s_cselect_b32 {s(r3+1)}, {s(pw+5)}, {s(pw+3)}
    s_mov_b32 {s(r3+2)}, {448*3584}
    s_mov_b32 {s(r3+3)}, 0x00020000
    v_lshrrev_b32 {v(vt)}, 2, {v(vl)}
    v_mul_u32_u24 {v(vo)}, 3584, {v(vt)}
    v_and_b32 {v(vt)}, 3, {v(vl)}
    v_lshl_add_u32 {v(vo)}, {v(vt)}, 4, {v(vo)}
    s_and_b32 {s(st)}, {s(sw)}, 3
    s_mul_i32 {s(so)}, {s(st)}, {112*3584}
    s_lshl_b32 {s(st2)}, {s(sg)}, 6
    s_add_u32 {s(so)}, {s(so)}, {s(st2)}
    s_mul_i32 {s(st)}, {s(sj)}, 7168''')
    slowstart(3584)
    k('s_waitcnt vmcnt(0) lgkmcnt(0)\ns_barrier')
    for i in range(7):
        k(f's_mov_b32 m0, {s(st)}\ns_add_u32 {s(st)}, {s(st)}, 1024')
        k(f'buffer_load_dwordx4 {v(vo)}, {s(r3,4)}, {s(so)} offen {OPT["WNT"]} lds\ns_add_u32 {s(so)}, {s(so)}, {16*3584}')
    if not OPT['WTRIG']: tagcalc()
    sact = k.salloc(); sact2 = k.salloc()
    k(f'''v_lshlrev_b32 {v(vt)}, 9, {v(vg)}
    v_bfe_u32 {v(vt2)}, {v(vl)}, 2, 2
    v_lshl_add_u32 {v(vt)}, {v(vt2)}, 6, {v(vt)}
    v_and_b32 {v(vt2)}, 3, {v(vl)}
    v_lshl_add_u32 {v(vt)}, {v(vt2)}, 3, {v(vt)}
    s_and_b32 {s(st)}, {s(sw)}, 1
    s_mul_i32 {s(st)}, {s(st)}, 28672
    s_bfe_u32 {s(st2)}, {s(sw)}, 0x10001
    s_lshl_b32 {s(st2)}, {s(st2)}, 5
    s_add_u32 {s(st)}, {s(st)}, {s(st2)}
    s_lshr_b32 {s(st2)}, {s(sw)}, 2
    s_mul_i32 {s(scnt)}, {s(st2)}, 448
    s_mul_i32 {s(st2)}, {s(st2)}, {224*64}
    s_add_u32 {s(st)}, {s(st)}, {s(st2)}
    v_add_u32 {v(vt)}, {s(st)}, {v(vt)}
    s_add_u32 {s(scnt)}, {s(scnt)}, {SCR}
    v_lshl_add_u32 {v(E+6)}, {v(vg)}, 4, {s(scnt)}
    v_bfe_u32 {v(E+7)}, {v(vl)}, 4, 1
    v_lshlrev_b32 {v(E+7)}, 7, {v(E+7)}
    v_lshl_add_u32 {v(E+7)}, {v(vn)}, 2, {v(E+7)}
    s_lshl_b32 {s(st)}, {s(sw)}, 6
    s_add_u32 {s(st)}, {s(st)}, {RED}
    v_lshl_add_u32 {v(vp)}, {v(vg)}, 4, {s(st)}
    v_mul_u32_u24 {v(va1)}, {ARS}, {v(vg)}
    v_lshl_add_u32 {v(va1)}, {v(vn)}, 3, {v(va1)}
    v_lshlrev_b32 {v(va2)}, 3, {v(vn)}
    s_lshl_b32 {s(sact)}, {s(sg)}, 7
    s_add_u32 {s(sact)}, {s(sact)}, {ACT}
    s_add_u32 {s(sact2)}, {s(sact)}, {4*ARS}
    v_mov_b32 {v(E+5)}, {v(vtag)}
    v_mov_b32 {v(E)}, 0
    v_mov_b32 {v(E+1)}, 0
    v_mov_b32 {v(E+2)}, {RED+1024}
    ds_write_b64 {v(E+2)}, {v(E,2)}
    s_waitcnt vmcnt(0) lgkmcnt(0)
    s_barrier''')
    for i in range(7):
        for hh in range(2): k(f'ds_read_b64_tr_b16 {v(AFR+4*i+2*hh,2)}, {v(vt)} offset:{2048*i+256*hh}')
    Lg1 = k.label('g1'); Lgp = k.label('gp'); Lw1 = k.label('w1'); Lr = k.label('r'); Lrs = k.label('rs')
    sprev = k.salloc()
    CTL = RED + 1024
    NPW = OPT['NPW']; KPW = 128 // NPW if NPW != 7 else 20
    k(f'''v_mov_b32 {v(va2+1)}, {CTL}
    s_cmp_eq_u32 {s(sw)}, 7
    s_cbranch_scc1 {Lw1}
    s_cmp_ge_u32 {s(sw)}, {NPW}
    s_cbranch_scc1 {Lg1}''')
    k.stamp(5); k.dstamp(1)
    k(f'''v_mul_u32_u24 {v(vt)}, {KS}, {v(vl)}
    s_mul_i32 {s(sflag)}, {s(sb)}, {KRS}
    s_mul_i32 {s(st)}, {s(sw)}, {KPW*KS}
    s_add_u32 {s(sflag)}, {s(sflag)}, {s(st)}
    s_add_u32 {s(sflag)}, {s(sflag)}, {KEYS}
    s_cmp_eq_u32 {s(sw)}, {NPW-1}
    s_cselect_b32 {s(st)}, {128-(NPW-1)*KPW}, {KPW}
    s_bfm_b64 {s(sr,2)}, {s(st)}, 0
    s_mov_b32 {s(scnt)}, 0
    v_mov_b32 {v(GR+2)}, 1
    {Lgp}:
    s_mov_b64 exec, {s(sr,2)}
    buffer_load_dwordx2 {v(GR,2)}, {v(vt)}, {s(rws,4)}, {s(sflag)} offen sc1
    s_add_u32 {s(scnt)}, {s(scnt)}, 1
    s_waitcnt vmcnt(0)
    v_cmp_eq_u32 vcc, {s(stag)}, {v(GR+1)}
    s_andn2_b64 {s(sr,2)}, {s(sr,2)}, vcc
    s_mov_b64 exec, vcc
    ds_max_u32 {v(va2+1)}, {v(GR)}
    s_cmp_ge_u32 {s(scnt)}, 0x200000
    s_cselect_b64 {s(sr,2)}, 0, {s(sr,2)}
    s_cmp_lg_u64 {s(sr,2)}, 0
    {"s_sleep %d" % OPT['GSL'] if OPT['GSL'] else ""}
    s_cbranch_scc1 {Lgp}
    s_mov_b64 exec, 1
    ds_add_u32 {v(va2+1)}, {v(GR+2)} offset:4
    s_mov_b64 exec, -1''')
    k.stamp(3); k.dstamp(2)
    k(f'''s_branch {Lg1}
    {Lw1}:
    v_lshlrev_b32 {v(vo)}, 4, {v(vl)}
    v_lshlrev_b32 {v(E+1)}, 5, {v(vn)}
    v_lshl_add_u32 {v(E+1)}, {v(vg)}, 3, {v(E+1)}
    v_add_u32 {v(E+1)}, {SCR}, {v(E+1)}
    s_mov_b32 {s(sprev)}, 0
    s_mov_b32 {s(scnt)}, 0
    {Lr}:
    ds_read_b64 {v(GR,2)}, {v(va2+1)}
    s_add_u32 {s(scnt)}, {s(scnt)}, 1
    s_cmp_ge_u32 {s(scnt)}, 0x2000000
    s_cbranch_scc1 {Lg1}
    s_waitcnt lgkmcnt(0)
    v_readfirstlane_b32 {s(skey)}, {v(GR)}
    v_readfirstlane_b32 {s(st)}, {v(GR+1)}
    s_cmp_lg_u32 {s(skey)}, {s(sprev)}
    s_cbranch_scc1 {Lrs}
    s_cmp_lg_u32 {s(st)}, {NPW}
    s_cbranch_scc1 {Lr}
    s_branch {Lg1}
    {Lrs}:''')
    key2slot(ss2)
    k(f'''buffer_load_dwordx4 {v(GR+4,4)}, {v(vo)}, {s(rws,4)}, {s(ss2)} offen sc1
    buffer_load_dwordx4 {v(GR+8,4)}, {v(vo)}, {s(rws,4)}, {s(ss2)} offen offset:1024 sc1''')
    k.stamp(2)
    k('s_waitcnt vmcnt(0)')
    k.stamp(3)
    check([GR+5, GR+7, GR+9, GR+11])
    k(f'''s_cbranch_vccnz {Lr}
    s_mov_b32 {s(sprev)}, {s(skey)}
    v_mov_b32 {v(GR+5)}, {v(GR+6)}
    v_mov_b32 {v(GR+9)}, {v(GR+10)}
    ds_write_b64 {v(E+1)}, {v(GR+4,2)}
    ds_write_b64 {v(E+1)}, {v(GR+8,2)} offset:512
    s_branch {Lr}
    {Lg1}:
    s_waitcnt lgkmcnt(0)
    s_barrier''')
    k.stamp(6); k.dstamp(3)
    for i in range(7): k(f'ds_read_b128 {v(GR+12+4*i,4)}, {v(E+6)} offset:{64*i}')
    for i in range(7):
        k(f's_waitcnt lgkmcnt({6-i})')
        k(f'v_mfma_f32_16x16x32_bf16 {v(ACC,4)}, {v(AFR+4*i,4)}, {v(GR+12+4*i,4)}, {"0" if i == 0 else v(ACC,4)}')
    partials(ACC, vp)
    k(f'''s_waitcnt lgkmcnt(0)
    s_barrier
    s_cmp_lg_u32 {s(sw)}, 0
    s_cbranch_scc1 {Lend}
    ds_read_b32 {v(E)}, {v(E+7)} offset:{RED}
    ds_read_b32 {v(E+1)}, {v(E+7)} offset:{RED+256}
    ds_read_b32 {v(E+2)}, {v(E+7)} offset:{RED+64}
    ds_read_b32 {v(E+3)}, {v(E+7)} offset:{RED+64+256}
    s_waitcnt lgkmcnt(2)
    v_add_f32 {v(E)}, {v(E)}, {v(E+1)}''')
    rb1(k, E, E)
    k(f'''v_mul_f32 {v(E+1)}, 0xbfb8aa3b, {v(E)}
    v_exp_f32 {v(E+1)}, {v(E+1)}
    s_waitcnt lgkmcnt(0)
    v_add_f32 {v(E+2)}, {v(E+2)}, {v(E+3)}
    v_add_f32 {v(E+1)}, 1.0, {v(E+1)}
    v_rcp_f32 {v(E+1)}, {v(E+1)}''')
    rb1(k, E + 2, E + 2)
    k(f'v_mul_f32 {v(E)}, {v(E)}, {v(E+1)}')
    rb1(k, E, E)
    k(f'''v_mul_f32 {v(E)}, {v(E)}, {v(E+2)}
    v_mov_b32_dpp {v(E+1)}, {v(E)} quad_perm:[1,0,3,2] row_mask:0xf bank_mask:0xf
    v_cvt_pk_bf16_f32 {v(E+4)}, {v(E)}, {v(E+1)}
    ds_bpermute_b32 {v(E+4)}, {v(va2)}, {v(E+4)}
    s_waitcnt lgkmcnt(0)
    buffer_store_dwordx2 {v(E+4,2)}, {v(va1)}, {s(rws,4)}, {s(sact)} offen sc1
    buffer_store_dwordx2 {v(E+4,2)}, {v(va1)}, {s(rws,4)}, {s(sact2)} offen sc1''')
    k.stamp(7); k.dstamp(4)
    k(f's_branch {Lend}')
    sro = sprev
    k(f'{LD}:\ns_waitcnt lgkmcnt(0)')
    if OPT['MDELAY'] & 2: nonce(); k('s_waitcnt lgkmcnt(0)'); modtouch()
    else: modtouch(); nonce()
    k.srd(rws, pws, WSB); wtouch(); wtrig()
    k(f's_lshl_b32 {s(sg)}, {s(sb)}, 2\ns_add_u32 {s(sg)}, {s(sg)}, {s(sa)}\ns_sub_u32 {s(sg)}, {s(sg)}, 23')
    k.srd(r3, pw + 6, 1792 * 896); k.srd(r4, pout, 1835008)
    k(f'''v_lshrrev_b32 {v(vt)}, 1, {v(vl)}
    v_mul_u32_u24 {v(vo)}, 896, {v(vt)}
    v_and_b32 {v(vt)}, 1, {v(vl)}
    v_lshl_add_u32 {v(vo)}, {v(vt)}, 4, {v(vo)}
    s_lshl_b32 {s(st)}, {s(sg)}, 1
    s_add_u32 {s(ss2)}, {s(sw)}, {s(st)}
    s_and_b32 {s(ss2)}, {s(ss2)}, 7
    s_mul_i32 {s(so)}, {s(ss2)}, {224*896}
    s_lshl_b32 {s(st2)}, {s(sg)}, 5
    s_add_u32 {s(so)}, {s(so)}, {s(st2)}
    s_mul_i32 {s(st)}, {s(sw)}, 7168
    v_lshlrev_b32 {v(E+4)}, 1, {v(vn)}
    s_mov_b32 {s(sro)}, {HUGE}''')
    slowstart(896)
    k('s_waitcnt vmcnt(0) lgkmcnt(0)\ns_barrier')
    for i in range(7):
        k(f's_mov_b32 m0, {s(st)}\ns_add_u32 {s(st)}, {s(st)}, 1024')
        k(f'buffer_load_dwordx4 {v(vo)}, {s(r3,4)}, {s(so)} offen {OPT["WNT"]} lds\ns_add_u32 {s(so)}, {s(so)}, {32*896}')
    if not OPT['WTRIG']: tagcalc()
    Ldr = k.label('dr')
    k(f'''s_cmp_lg_u32 {s(sw)}, 1
    s_cbranch_scc1 {Ldr}
    s_lshl_b32 {s(st)}, {s(sg)}, 5
    s_add_u32 {s(st)}, {s(st)}, {DRDY}
    v_mov_b32 {v(vt)}, 0
    s_mov_b64 exec, 1
    buffer_store_dword {v(vtag)}, {v(vt)}, {s(rws,4)}, {s(st)} offen sc1
    s_mov_b64 exec, -1
    {Ldr}:''')
    k(f'''v_lshlrev_b32 {v(vt)}, 8, {v(vg)}
    v_lshl_add_u32 {v(vt)}, {v(vn)}, 3, {v(vt)}
    s_mul_i32 {s(st)}, {s(sw)}, 7168
    v_add_u32 {v(vt)}, {s(st)}, {v(vt)}
    s_mul_i32 {s(sact)}, {s(ss2)}, 896
    s_add_u32 {s(sact)}, {s(sact)}, {ACT}
    s_mul_i32 {s(st)}, {s(sb)}, {ARS}
    s_add_u32 {s(sact)}, {s(sact)}, {s(st)}
    s_lshl_b32 {s(st)}, {s(sw)}, 6
    s_add_u32 {s(st)}, {s(st)}, {RED}
    v_lshl_add_u32 {v(vp)}, {v(vg)}, 4, {s(st)}
    v_lshlrev_b32 {v(va2)}, 2, {v(vn)}
    s_waitcnt vmcnt(0)''')
    for i in range(7):
        for hh in range(2): k(f'ds_read_b64_tr_b16 {v(AFR+4*i+2*hh,2)}, {v(vt)} offset:{1024*i+128*hh}')
    Ld1 = k.label('d1')
    k(f's_cmp_lg_u32 {s(sw)}, 0\ns_cbranch_scc1 {Ld1}')
    k.stamp(5); k.dstamp(1)
    Ld0 = k.label('d0')
    k(f's_cmp_lg_u32 {s(sg)}, 0\ns_cbranch_scc1 {Ld0}\nv_lshlrev_b32 {v(vt)}, 5, {v(vl)}\ns_mov_b32 {s(sflag)}, {DRDY}')
    poll(f'buffer_load_dword {v(GR)}, {v(vt)}, {s(rws,4)}, {s(sflag)} offen sc1', [GR], 28, name='pr')
    k(f'{Ld0}:')
    keysetup()
    poll(keyloads(GR), [GR+1, GR+3], name='pk')
    keymax(GR); key2slot(ss2)
    k(f'''s_lshl_b32 {s(st)}, {s(sg)}, 6
    s_add_u32 {s(so)}, {s(st)}, {MODV+5*1792}
    v_mov_b32 {v(E+7)}, 0
    buffer_load_dword {v(E+6)}, {v(va2)}, {s(rws,4)}, {s(so)} offen sc1
    s_and_b32 {s(st)}, {s(skey)}, 0xfffff800
    s_or_b32 {s(st)}, {s(st)}, 0x400
    s_ashr_i32 {s(st2)}, {s(st)}, 31
    s_not_b32 {s(st2)}, {s(st2)}
    s_or_b32 {s(st2)}, {s(st2)}, 0x80000000
    s_xor_b32 {s(st)}, {s(st)}, {s(st2)}
    v_mov_b32 {v(E+2)}, {s(st)}''')
    rb1(k, E + 2, E + 2)
    k(f'''v_mul_f32 {v(E+2)}, 0xbfb8aa3b, {v(E+2)}
    v_exp_f32 {v(E+2)}, {v(E+2)}
    v_add_f32 {v(E+2)}, 1.0, {v(E+2)}
    v_rcp_f32 {v(E+2)}, {v(E+2)}''')
    rb1(k, E + 2, E + 2)
    k(f's_add_u32 {s(sflag)}, {s(ss2)}, 2048')
    poll(f'buffer_load_dword {v(E+3)}, {v(E+7)}, {s(rws,4)}, {s(sflag)} offen sc1', [E+3], name='pf')
    k(f'''s_mul_i32 {s(sro)}, {s(sj)}, 896
    s_lshl_b32 {s(st)}, {s(sg)}, 5
    s_add_u32 {s(sro)}, {s(sro)}, {s(st)}
    buffer_load_ushort {v(E)}, {v(E+4)}, {s(r4,4)}, {s(sro)} offen sc1
    {Ld1}:''')
    k.stamp(6); k.dstamp(2)
    k(f'v_lshlrev_b32 {v(vt)}, 4, {v(vl)}\ns_lshl_b32 {s(st)}, {s(sw)}, 9\ns_add_u32 {s(st)}, {s(st)}, {SCR}\nv_lshl_add_u32 {v(vo)}, {v(vl)}, 3, {s(st)}\nv_lshl_add_u32 {v(GR+6)}, {v(vg)}, 4, {s(st)}')
    poll(f'buffer_load_dwordx4 {v(GR,4)}, {v(vt)}, {s(rws,4)}, {s(sact)} offen sc1', [GR+1, GR+3], 56, name='pg')
    k.stamp(7); k.dstamp(3)
    k(f'v_mov_b32 {v(GR+1)}, {v(GR+2)}\nds_write_b64 {v(vo)}, {v(GR,2)}\ns_waitcnt lgkmcnt(0)')
    for i in range(7): k(f'ds_read_b128 {v(GR+8+4*i,4)}, {v(GR+6)} offset:{64*i}')
    for i in range(7):
        k(f's_waitcnt lgkmcnt({6-i})')
        k(f'v_mfma_f32_16x16x32_bf16 {v(ACC,4)}, {v(AFR+4*i,4)}, {v(GR+8+4*i,4)}, {"0" if i == 0 else v(ACC,4)}')
    partials(ACC, vp)
    k(f'''s_waitcnt lgkmcnt(0)
    s_barrier
    s_cmp_lg_u32 {s(sw)}, 0
    s_cbranch_scc1 {Lend}''')
    for i in range(8): k(f'ds_read_b32 {v(GR+i)}, {v(va2)} offset:{RED+64*i}')
    k(f'v_lshlrev_b32 {v(E)}, 16, {v(E)}')
    for i in (1, 3, 5, 7): k(f's_waitcnt lgkmcnt({7-i})\nv_add_f32 {v(GR+i-1)}, {v(GR+i-1)}, {v(GR+i)}')
    k(f'v_add_f32 {v(GR)}, {v(GR)}, {v(GR+2)}\nv_add_f32 {v(GR+4)}, {v(GR+4)}, {v(GR+6)}\nv_add_f32 {v(GR)}, {v(GR)}, {v(GR+4)}')
    rb1(k, GR, GR); k(f'v_mul_f32 {v(GR)}, {v(GR)}, {v(E+2)}'); rb1(k, GR, GR)
    k(f'''v_fma_f32 {v(GR)}, {v(GR)}, {v(E+6)}, {v(E)}
    v_cvt_pk_bf16_f32 {v(GR)}, {v(GR)}, {v(GR)}
    s_bfm_b64 exec, 16, 0
    buffer_store_short {v(GR)}, {v(E+4)}, {s(r4,4)}, {s(sro)} offen sc1
    s_cmp_lg_u32 {s(sg)}, 0
    s_cbranch_scc1 {Lend}
    s_mov_b64 exec, 1
    v_mov_b32 {v(vt)}, {NONCE}
    buffer_store_dword {v(vtag)}, {v(vt)}, {s(rws,4)}, 0 offen sc1''')
    k(f's_branch {Lend}')
    k.nv = VBASE
    X = k.valloc(28, 4); C = k.valloc(8); T = k.valloc(8); A = k.valloc(8); aM = k.valloc(); vf = k.valloc()
    sm_ = ss2; sadd = sj; smul = sones
    k(f'{Lmod}:')
    k(f'''s_mul_i32 {s(st)}, {s(sw)}, 56
    v_lshrrev_b32 {v(vt)}, 3, {v(vl)}
    v_add_u32 {v(vt2)}, {s(st)}, {v(vt)}
    v_mul_u32_u24 {v(vo)}, 5376, {v(vt2)}
    v_and_b32 {v(vt2)}, 7, v0
    v_lshl_add_u32 {v(vo)}, {v(vt2)}, 4, {v(vo)}
    v_add_u32 {v(vt3)}, {s(st)}, {v(vl)}
    v_lshlrev_b32 {v(vt3)}, 1, {v(vt3)}
    s_lshl_b32 {s(so)}, {s(sm_)}, 7
    s_waitcnt lgkmcnt(0)''')
    k.srd(r3, pc, 896); k.srd(r4, pc + 2, 448 * 5376)
    if OPT['MDELAY'] & 1: nonce(); k('s_waitcnt lgkmcnt(0)')
    k(f'buffer_load_ushort {v(C+7)}, {v(vt3)}, {s(r3,4)}, 0 offen')
    if OPT['MDELAY'] & 4: k('s_waitcnt vmcnt(0)')
    for i in range(7):
        k(f'buffer_load_dwordx4 {v(X+4*i,4)}, {v(vo)}, {s(r4,4)}, {s(so)} offen {OPT["MNT"]}')
        if i < 6: k(f's_add_u32 {s(so)}, {s(so)}, {8*5376}')
    if not OPT['MDELAY'] & 1: nonce()
    k.srd(rws, pws, WSB)
    k.stamp(2)
    k(f'''v_lshlrev_b32 {v(vt3)}, 2, {v(vt)}
    v_lshrrev_b32 {v(vt)}, 6, v0
    v_lshlrev_b32 {v(aM)}, 8, {v(vt)}
    v_lshl_add_u32 {v(aM)}, {v(vt2)}, 5, {v(aM)}
    v_bfe_u32 {v(vt2)}, v0, 4, 1
    v_lshl_add_u32 {v(aM)}, {v(vt2)}, 3, {v(aM)}
    v_bfe_u32 {v(vt2)}, v0, 5, 1
    v_lshl_add_u32 {v(aM)}, {v(vt2)}, 2, {v(aM)}
    s_mul_i32 {s(st2)}, {s(sm_)}, 37
    s_lshr_b32 {s(st2)}, {s(st2)}, 8
    s_cmp_eq_u32 {s(st2)}, 0
    s_cselect_b32 {s(smul)}, 0x45000000, 1.0
    s_cmp_eq_u32 {s(st2)}, 1
    s_cselect_b32 {s(sadd)}, 1.0, 0
    s_cmp_eq_u32 {s(st2)}, 4
    s_cselect_b32 {s(sadd)}, 1.0, {s(sadd)}
    s_lshl_b32 {s(so)}, {s(sm_)}, 8
    s_add_u32 {s(so)}, {s(so)}, {MODV}
    s_add_u32 {s(sflag)}, {s(sm_)}, 128
    v_lshlrev_b32 {v(vo)}, 2, v0''')
    flagprep(vf)
    k(f'''s_waitcnt vmcnt(7)
    v_lshlrev_b32 {v(C+7)}, 16, {v(C+7)}
    v_mul_f32 {v(T)}, 0xbfb8aa3b, {v(C+7)}
    v_exp_f32 {v(T)}, {v(T)}
    v_add_f32 {v(T)}, 1.0, {v(T)}
    v_rcp_f32 {v(T)}, {v(T)}
    v_mul_f32 {v(C+7)}, {v(C+7)}, {v(T)}''')
    rb1(k, C + 7, C + 7)
    for i in range(7): k(f'ds_bpermute_b32 {v(C+i)}, {v(vt3)}, {v(C+7)} offset:{32*i}')
    k('s_waitcnt lgkmcnt(0)'); tagcalc()
    for i in range(7):
        k(f's_waitcnt vmcnt({6-i})')
        for q in range(4):
            k(f'v_lshlrev_b32 {v(T+2*(q&1))}, 16, {v(X+4*i+q)}\nv_and_b32 {v(T+2*(q&1)+1)}, 0xffff0000, {v(X+4*i+q)}')
            if i == 0: k(f'v_mul_f32 {v(A+2*q)}, {v(T+2*(q&1))}, {v(C)}\nv_mul_f32 {v(A+2*q+1)}, {v(T+2*(q&1)+1)}, {v(C)}')
            else: k(f'v_fmac_f32 {v(A+2*q)}, {v(T+2*(q&1))}, {v(C+i)}\nv_fmac_f32 {v(A+2*q+1)}, {v(T+2*(q&1)+1)}, {v(C+i)}')
    k.stamp(4)
    for q in range(4): k(f'v_permlane32_swap_b32 {v(A+2*q)}, {v(A+2*q+1)}')
    for q in range(4): k(f'v_add_f32 {v(A+2*q)}, {v(A+2*q)}, {v(A+2*q+1)}')
    for p in range(2): k(f'v_permlane16_swap_b32 {v(A+4*p)}, {v(A+4*p+2)}')
    for p in range(2): k(f'v_add_f32 {v(A+4*p)}, {v(A+4*p)}, {v(A+4*p+2)}')
    for p in range(2): k(f'v_add_f32_dpp {v(A+4*p)}, {v(A+4*p)}, {v(A+4*p)} row_ror:8 row_mask:0xf bank_mask:0xf')
    k(f'''ds_write_b32 {v(aM)}, {v(A)}
    ds_write_b32 {v(aM)}, {v(A+4)} offset:16
    s_waitcnt lgkmcnt(0)
    s_barrier
    s_cmp_lg_u32 {s(sw)}, 0
    s_cbranch_scc1 {Lend}''')
    for i in range(8): k(f'ds_read_b32 {v(T+i)}, {v(vo)} offset:{256*i}')
    for i in (1, 3, 5, 7): k(f's_waitcnt lgkmcnt({7-i})\nv_add_f32 {v(T+i-1)}, {v(T+i-1)}, {v(T+i)}')
    k(f'v_add_f32 {v(T)}, {v(T)}, {v(T+2)}\nv_add_f32 {v(T+4)}, {v(T+4)}, {v(T+6)}\nv_add_f32 {v(T)}, {v(T)}, {v(T+4)}')
    rb1(k, T, T); k(f'v_add_f32 {v(T)}, {s(sadd)}, {v(T)}'); rb1(k, T, T)
    k(f'''v_mul_f32 {v(T)}, {s(smul)}, {v(T)}
    buffer_store_dword {v(T)}, {v(vo)}, {s(rws,4)}, {s(so)} offen sc1
    s_waitcnt vmcnt(0)''')
    sendflag(vf); k.dstamp(1)
    k(f's_branch {Lend}')
    k(f'{Lend}:'); k.dump(); k.ddump(82, sw, 184); k('s_endpgm')
    return k
if __name__ == '__main__':
    K.diag = '--diag' in sys.argv; K.dbg = '--dbg' in sys.argv
    for a in sys.argv[2:]:
        if '=' in a:
            kk, vv = a.split('='); assert kk in OPT; OPT[kk] = int(vv) if vv.lstrip('-').isdigit() else vv
    k = gen()
    k.lines, n = hazard.fix(k.lines); print(k.name, 'vgpr', k.vmax, 'sgpr', k.ns, 'nops', n, 'lines', len(k.lines), 'lds', LDS)
    open(sys.argv[1], 'w').write(emit([k], [(NAME, 256, 512, LDS)]))
```
